```python
import torch

def _softmax(x, axis=-1):
    return torch.softmax(x, dim=axis)

def _gelu(x):
    return torch.nn.functional.gelu(x, approximate='tanh')

def _silu(x):
    return torch.nn.functional.silu(x)

def _sigmoid(x):
    return torch.sigmoid(x)

def _layernorm(x, axis=-1, eps=1e-05):
    m = x.mean(dim=axis, keepdim=True)
    v = x.var(dim=axis, keepdim=True, unbiased=False)
    return (x - m) / torch.sqrt(v + eps)

def _scatter_add(tgt, idx, src, axis=0):
    return tgt.clone().index_add_(axis, idx, src)

def _segment_sum(src, seg, n):
    out = torch.zeros((n,) + src.shape[1:], dtype=src.dtype)
    return out.index_add_(0, seg, src)

def _pad(x, pw):
    flat = tuple((v for pair in reversed(pw) for v in pair))
    return torch.nn.functional.pad(x, flat)
kernel_name = 'standalone__tensor_product_equiv_tfn__graph'

def setup_inputs():

    _w = lambda a: (lambda t: t.to(torch.bfloat16) if t.is_floating_point() else t)(torch.as_tensor(a))
    N, deg, C, L, DE = (10000, 32, 128, 1, 16)
    E = N * deg
    M = (L + 1) ** 2
    src = (lambda lo, hi, *s: torch.randint(lo, hi, s))(0, N, E).to(torch.int64)
    dst = (lambda lo, hi, *s: torch.randint(lo, hi, s))(0, N, E).to(torch.int64)
    r = (lambda *s: torch.randn(*s, dtype=torch.bfloat16) * 0.05)(E, 3)
    r = r / (torch.linalg.norm(r, dim=-1, keepdim=True) + 1e-09)
    rx, ry, rz = (r[:, 0].clone(), r[:, 1].clone(), r[:, 2].clone())
    Ys = [torch.ones((E, 1), dtype=float)]
    if L >= 1:
        Ys.append(r.to(float))
    if L >= 2:
        Ys.append(torch.stack([2 * rx * ry, 2 * ry * rz, (3 * rz * rz - 1.0) / (lambda _x: torch.sqrt(torch.as_tensor(_x)))(3.0), 2 * rx * rz, rx * rx - ry * ry], dim=-1).to(float))
    for _l in range(3, L + 1):
        Ys.append(((lambda *s: torch.randn(*s, dtype=torch.bfloat16) * 0.05)(E, 2 * _l + 1) * 0.3).to(float))
    Y = torch.cat(Ys, dim=-1)
    cg = torch.zeros((M, M, M), dtype=float)
    off = [_l * _l for _l in range(L + 2)]
    for l1 in range(L + 1):
        for l2 in range(L + 1):
            for l3 in range(abs(l1 - l2), min(L, l1 + l2) + 1):
                d1, d2, d3 = (2 * l1 + 1, 2 * l2 + 1, 2 * l3 + 1)
                cg[off[l1]:off[l1 + 1], off[l2]:off[l2 + 1], off[l3]:off[l3 + 1]] = (lambda *s: torch.randn(*s, dtype=torch.bfloat16) * 0.05)(d1, d2, d3) / (lambda _x: torch.sqrt(torch.as_tensor(_x)))(float(d1 * d2))
    return {'x': _w((lambda *s: torch.randn(*s, dtype=torch.bfloat16) * 0.05)(N, C, M) * 0.2), 'src': _w(src), 'dst': _w(dst), 'Y': _w(Y), 'edge_feat': _w((lambda *s: torch.randn(*s, dtype=torch.bfloat16) * 0.05)(E, DE)), 'w_rad': _w((lambda *s: torch.randn(*s, dtype=torch.bfloat16) * 0.05)(DE, C) * (1.0 / max(1.0, DE) ** 0.5)), 'cg': _w(cg), 'w_mix': _w((lambda *s: torch.randn(*s, dtype=torch.bfloat16) * 0.05)(C, C) * (1.0 / max(1.0, C) ** 0.5))}

def reference(x, src, dst, Y, edge_feat, w_rad, cg, w_mix):
    N, C, M = (x.shape[0], x.shape[1], x.shape[2])
    R = _silu(edge_feat @ w_rad)
    xs = x[src]
    tp = torch.einsum('eci,ef,ifo->eco', xs, Y, cg)
    msg = R[:, :, None] * tp
    agg = _segment_sum(msg.reshape(-1, C * M), dst, N).reshape(N, C, M)
    return torch.einsum('ncm,cd->ndm', agg, w_mix)
```

```python
import sys, argparse

NAME = "standalone__tensor_product_equiv_tfn__graph"
N, E = 10000, 320000
CH = 1250
CS = 1280
WS_TABLE = 0
WS_WFRAG = 0x40000
WS_CG    = WS_WFRAG + 8192
WS_MIX   = WS_WFRAG + 16384
WS_AUX   = 0x100000
WS_EF    = 0x800000
WS_STAMP = 0x2000000
AUX_BYTES = 256 * CS * 16
EF_BYTES = 256 * CS * 32

class A:
    def __init__(self):
        self.l = []
    def __call__(self, s=""):
        for x in s.split("\n"):
            x = x.strip()
            if x:
                self.l.append(x if x.endswith(":") else "    " + x)
    def text(self):
        return "\n".join(self.l) + "\n"

def vr(a, n=1):
    return f"v{a}" if n == 1 else f"v[{a}:{a+n-1}]"
def sr(a, n=1):
    return f"s{a}" if n == 1 else f"s[{a}:{a+n-1}]"

def srd(a, d, base, nbytes, add=0):
    if add:
        a(f"s_add_u32 s{d}, s{base}, {add}\ns_addc_u32 s{d+1}, s{base+1}, 0")
    else:
        a(f"s_mov_b32 s{d}, s{base}\ns_mov_b32 s{d+1}, s{base+1}")
    a(f"s_mov_b32 s{d+2}, {nbytes}\ns_mov_b32 s{d+3}, 0x00020000")

def scan(a, v):
    for m in ("row_shr:1 row_mask:0xf", "row_shr:2 row_mask:0xf", "row_shr:4 row_mask:0xf", "row_shr:8 row_mask:0xf",
              "row_bcast:15 row_mask:0xa", "row_bcast:31 row_mask:0xc"):
        a(f"s_nop 1\nv_add_u32_dpp v{v}, v{v}, v{v} {m} bank_mask:0xf")

def stamp(a, o, k, sreg):
    if o.stamps:
        a(f"s_memrealtime s[{sreg+2*k}:{sreg+2*k+1}]")

def stamp_out(a, o, nst, sreg, ws, swave, kern, vt):
    if not o.stamps:
        return
    a("s_waitcnt lgkmcnt(0)")
    a(f"s_lshl_b32 s3, s2, 4\ns_add_u32 s3, s3, s{swave}\ns_lshl_b32 s3, s3, 6\ns_add_u32 s3, s3, {WS_STAMP + kern * (1 << 20)}")
    a(f"s_mov_b64 exec, 1\nv_mov_b32 v{vt}, s3")
    for k in range(nst):
        a(f"v_mov_b32 v{vt+1}, s{sreg+2*k}\nglobal_store_dword v{vt}, v{vt+1}, s[{ws}:{ws+1}] offset:{4*k}")

def k1(o):
    a = A()
    L_RAW, L_AUX, L_HIST, L_BASE = 0, 40960, 61440, 62464
    sX, sSRC, sDST, sY, sEF, sWR, sCG, sWM = 4, 6, 8, 10, 12, 14, 16, 18
    sWS = 20
    rEF, rX = 24, 28
    sW = 22
    sST = 60
    a("s_cmp_ge_u32 s2, 256\ns_cbranch_scc1 L1_end")
    a("s_load_dwordx16 s[4:19], s[0:1], 0\ns_load_dwordx2 s[20:21], s[0:1], 80")
    stamp(a, o, 0, sST)
    a("v_lshrrev_b32 v1, 6, v0\nv_lshlrev_b32 v2, 2, v0\nv_mov_b32 v3, 0")
    a(f"v_readfirstlane_b32 s{sW}, v1")
    a(f"v_cmp_gt_u32 vcc, 256, v0\ns_and_saveexec_b64 s[32:33], vcc\nds_write_b32 v2, v3 offset:{L_HIST}\ns_mov_b64 exec, s[32:33]")
    a(f"s_mul_i32 s34, s2, {CH*4}\ns_mul_i32 s35, s2, {CH*8}\ns_mul_i32 s36, s2, {CH*32}")
    a("v_lshl_add_u32 v4, v0, 3, s34\nv_lshlrev_b32 v6, 4, v0\nv_add_u32 v5, s35, v6")
    a(f"v_cmp_gt_u32 vcc, {CH//2}, v0\ns_mov_b64 s[40:41], vcc")
    a(f"s_lshl_b32 s37, s{sW}, 10")
    a("s_waitcnt lgkmcnt(0)")
    a("s_mov_b64 exec, s[40:41]")
    a(f"global_load_dwordx2 v[8:9], v4, s[{sDST}:{sDST+1}]")
    a(f"global_load_dwordx2 v[10:11], v4, s[{sSRC}:{sSRC+1}]")
    a(f"global_load_dwordx4 v[12:15], v5, s[{sY}:{sY+1}]")
    a("s_mov_b64 exec, -1")
    srd(a, rEF, sEF, E * 32)
    for j in range(4):
        a(f"s_add_u32 m0, s37, {L_RAW + j*10240}\ns_add_u32 s38, s36, {j*10240}")
        a(f"buffer_load_dwordx4 v6, s[{rEF}:{rEF+3}], s38 offen lds")
    a("v_and_b32 v30, 63, v0")
    a("s_waitcnt lgkmcnt(0)\ns_barrier")
    a("v_mov_b32 v3, 1\ns_mov_b64 exec, s[40:41]\ns_waitcnt vmcnt(6)")
    stamp(a, o, 1, sST)
    for j in range(2):
        d = 8 + j
        a(f"v_and_b32 v{16+j}, 7, v{d}\nv_bfe_u32 v{18+j}, v{d}, 3, 5\nv_lshl_add_u32 v{16+j}, v{16+j}, 5, v{18+j}\nv_lshlrev_b32 v{16+j}, 2, v{16+j}")
        a(f"ds_add_rtn_u32 v{18+j}, v{16+j}, v3 offset:{L_HIST}")
    a("s_waitcnt vmcnt(4)")
    for j in range(2):
        r = 20 + 4 * j
        a(f"v_lshlrev_b32 v{r}, 10, v{10+j}")
        a(f"v_lshrrev_b32 v{r+1}, 8, v{8+j}\nv_lshrrev_b32 v{r+2}, 8, v{10+j}\nv_lshl_add_u32 v{r+1}, v{r+1}, 6, v{r+2}\nv_lshlrev_b32 v{r+1}, 2, v{r+1}")
        a(f"v_lshl_add_u32 v{r+2}, v0, 1, {j}\nv_lshl_add_u32 v{r+1}, v{r+2}, 16, v{r+1}")
        a(f"v_mov_b32 v{r+2}, v{12+2*j}\nv_mov_b32 v{r+3}, v{13+2*j}")
    a("s_mov_b64 exec, -1\nv_lshlrev_b32 v31, 4, v30")
    a("s_waitcnt lgkmcnt(0)\ns_barrier")
    a(f"ds_read_b128 v[32:35], v31 offset:{L_HIST}\ns_waitcnt lgkmcnt(0)")
    a("v_add_u32 v36, v32, v33\nv_add3_u32 v36, v36, v34, v35\nv_mov_b32 v37, v36")
    scan(a, 37)
    a("v_sub_u32 v40, v37, v36\nv_add_u32 v41, v40, v32\nv_add_u32 v42, v41, v33\nv_add_u32 v43, v42, v34")
    a(f"ds_write_b128 v31, v[40:43] offset:{L_BASE}")
    a("s_mov_b64 exec, s[40:41]\ns_waitcnt lgkmcnt(0)")
    a(f"ds_read_b32 v28, v16 offset:{L_BASE}\nds_read_b32 v29, v17 offset:{L_BASE}")
    a("s_waitcnt lgkmcnt(1)\nv_add_lshl_u32 v28, v28, v18, 4")
    a(f"ds_write_b128 v28, v[20:23] offset:{L_AUX}")
    a("s_waitcnt lgkmcnt(1)\nv_add_lshl_u32 v29, v29, v19, 4")
    a(f"ds_write_b128 v29, v[24:27] offset:{L_AUX}")
    a("s_mov_b64 exec, -1")
    a(f"s_cmp_lt_u32 s{sW}, 4\ns_cbranch_scc0 L1_notab")
    a(f"s_set_gpr_idx_on s{sW}, gpr_idx(SRC0)\nv_mov_b32 v44, v32\nv_mov_b32 v45, v40\ns_set_gpr_idx_off")
    a(f"s_mul_i32 s3, s2, {CS}\nv_add_u32 v45, s3, v45\nv_lshl_add_u32 v47, v44, 19, v45")
    a(f"v_lshl_add_u32 v46, v30, 2, s{sW}")
    a("v_and_b32 v48, 31, v46\nv_lshrrev_b32 v46, 5, v46\nv_lshl_add_u32 v46, v48, 3, v46")
    a("s_and_b32 s3, s2, 7\ns_lshl_b32 s3, s3, 5\ns_lshr_b32 s38, s2, 3\ns_add_u32 s3, s3, s38\ns_lshl_b32 s3, s3, 2")
    a(f"v_lshl_add_u32 v46, v46, 10, s3")
    a(f"global_store_dword v46, v47, s[{sWS}:{sWS+1}]")
    a("L1_notab:")
    a("s_waitcnt lgkmcnt(0)\ns_barrier")
    stamp(a, o, 2, sST)
    a(f"ds_read_b128 v[8:11], v6 offset:{L_AUX}\nds_read_b128 v[12:15], v6 offset:{L_AUX + 10240}")
    a("v_lshrrev_b32 v7, 1, v0\nv_lshlrev_b32 v7, 4, v7")
    for j in range(4):
        a(f"ds_read_u16 v{16+j}, v7 offset:{L_AUX + 6 + j*5120}")
    a(f"s_mul_i32 s3, s2, {CS*16}\ns_add_u32 s3, s3, {WS_AUX}\nv_add_u32 v4, s3, v6\nv_add_u32 v5, 10240, v4")
    a(f"v_cmp_gt_u32 vcc, {CH-640}, v0\nv_and_b32 v20, 16, v6")
    a("s_waitcnt lgkmcnt(5)")
    a(f"global_store_dwordx4 v4, v[8:11], s[{sWS}:{sWS+1}] {o.st1}")
    a("s_waitcnt lgkmcnt(4)\ns_and_saveexec_b64 s[32:33], vcc")
    a(f"global_store_dwordx4 v5, v[12:15], s[{sWS}:{sWS+1}] {o.st1}")
    a("s_mov_b64 exec, -1\ns_waitcnt lgkmcnt(0)")
    for j in range(4):
        a(f"v_and_b32 v{16+j}, 0x7ff, v{16+j}\nv_lshl_add_u32 v{16+j}, v{16+j}, 5, v20")
    a("s_mov_b32 s39, 0\nv_mov_b32 v40, 0\ns_lshl_b32 s3, s2, 6\nv_add_u32 v31, s3, v30")
    a(f"s_cmp_eq_u32 s{sW}, 4\ns_cbranch_scc0 L1_nomix")
    a("v_bfe_u32 v32, v31, 10, 2\nv_lshlrev_b32 v32, 5, v32\nv_bfe_u32 v33, v31, 7, 2\nv_lshl_add_u32 v32, v33, 3, v32\nv_and_b32 v33, 7, v31\nv_add_u32 v32, v32, v33")
    a("v_bfe_u32 v33, v31, 12, 2\nv_lshlrev_b32 v33, 5, v33\nv_bfe_u32 v34, v31, 3, 4\nv_lshl_add_u32 v33, v34, 1, v33\nv_bfe_u32 v34, v31, 9, 1\nv_add_u32 v33, v33, v34")
    a("v_lshl_add_u32 v32, v32, 7, v33\nv_lshlrev_b32 v32, 1, v32")
    a(f"global_load_ushort v41, v32, s[{sWM}:{sWM+1}]")
    a(f"v_lshlrev_b32 v40, 1, v31\nv_add_u32 v40, {WS_MIX}, v40\ns_mov_b32 s39, 1")
    a("L1_nomix:")
    a(f"s_cmp_eq_u32 s{sW}, 5\ns_cbranch_scc0 L1_now\ns_cmp_lt_u32 s2, 32\ns_cbranch_scc0 L1_now")
    a("v_bfe_u32 v32, v31, 8, 1\nv_and_b32 v33, 7, v31\nv_lshl_add_u32 v32, v32, 3, v33")
    a("v_bfe_u32 v33, v31, 9, 1\nv_bfe_u32 v34, v31, 3, 5\nv_lshl_add_u32 v33, v33, 5, v34\nv_bfe_u32 v34, v31, 10, 1\nv_lshl_add_u32 v33, v33, 1, v34")
    a("v_lshl_add_u32 v32, v32, 7, v33\nv_lshlrev_b32 v32, 1, v32")
    a(f"global_load_ushort v41, v32, s[{sWR}:{sWR+1}]")
    a(f"v_lshlrev_b32 v40, 1, v31\nv_add_u32 v40, {WS_WFRAG}, v40\ns_mov_b32 s39, 2")
    a("L1_now:")
    a(f"s_cmp_eq_u32 s{sW}, 6\ns_cbranch_scc0 L1_nocg\ns_cmp_eq_u32 s2, 0\ns_cbranch_scc0 L1_nocg")
    a("v_and_b32 v32, 0x30, v30\nv_and_b32 v33, 3, v30\nv_lshl_add_u32 v32, v33, 2, v32\nv_bfe_u32 v33, v30, 2, 2\nv_add_u32 v32, v32, v33\nv_lshlrev_b32 v32, 1, v32")
    a(f"global_load_ushort v41, v32, s[{sCG}:{sCG+1}]")
    a(f"v_lshlrev_b32 v40, 1, v30\nv_add_u32 v40, {WS_CG}, v40\ns_mov_b32 s39, 1")
    a("L1_nocg:")
    a(f"s_mul_i32 s3, s2, {CS*32}\ns_add_u32 s3, s3, {WS_EF}\nv_add_u32 v4, s3, v6")
    a(f"v_cmp_gt_u32 vcc, {2*CH-3*640}, v0")
    a("s_waitcnt vmcnt(0)\ns_barrier")
    stamp(a, o, 3, sST)
    for j in range(4):
        a(f"ds_read_b128 v[{24+4*j}:{27+4*j}], v{16+j} offset:{L_RAW}")
    a("s_cmp_eq_u32 s39, 0\ns_cbranch_scc1 L1_nost\ns_cmp_eq_u32 s39, 1\ns_cbranch_scc1 L1_st1")
    a("v_lshlrev_b32 v42, 16, v41\nv_mul_f32 v42, 0xbfb8aa3b, v42")
    a("v_cvt_pk_bf16_f32 v41, v42, v42\nv_lshlrev_b32 v43, 16, v41\nv_sub_f32 v43, v42, v43\nv_cvt_pk_bf16_f32 v43, v43, v43")
    a(f"v_add_u32 v44, 4096, v40\nglobal_store_short v44, v43, s[{sWS}:{sWS+1}]")
    a(f"L1_st1:\nglobal_store_short v40, v41, s[{sWS}:{sWS+1}]\nL1_nost:")
    if o.pf1:
        srd(a, rX, sX, N * 1024)
        a(f"s_mul_i32 s3, s2, {313*128}\nv_lshlrev_b32 v21, 7, v0\ns_cmp_lt_u32 s{sW}, 5\ns_cbranch_scc0 L1_nopf")
        a(f"buffer_load_dword v22, v21, s[{rX}:{rX+3}], s3 offen")
        a("L1_nopf:")
    for j in range(4):
        a(f"s_waitcnt lgkmcnt({3-j})")
        if j == 3:
            a("s_and_saveexec_b64 s[32:33], vcc")
        a(f"global_store_dwordx4 v4, v[{24+4*j}:{27+4*j}], s[{sWS}:{sWS+1}] {o.st1}")
        if j < 3:
            a("v_add_u32 v4, 10240, v4")
    stamp(a, o, 4, sST)
    if o.stamps:
        a("s_waitcnt vmcnt(0)")
    stamp(a, o, 5, sST)
    stamp_out(a, o, 6, sST, sWS, sW, 0, 50)
    a("L1_end:\ns_endpgm")
    return a.text(), 56, 80

def k2(o):
    a = A()
    D, G = o.D, o.G
    CAP = 1536
    L_EF, L_T = 0, CAP * 32
    L_WORD = 2 * CAP * 32
    NL = CAP + 8 * 48
    L_IDX = L_WORD + NL * 4
    L_MISC = L_IDX + NL * 2 + 256
    L_AGG = L_MISC + 1024
    L_CELL = L_AGG
    L_REC = L_CELL + 40 * 256
    AGS = 288
    LDS = L_AGG + 160 * AGS
    sX, sOUT, sWS = 4, 6, 8
    rX, rAUX, rEF, rOUT = 12, 16, 20, 24
    sW, sTOT, sR0, sCNT, sBASE, sTMP = 10, 11, 28, 29, 30, 31
    sMA, sMB = 32, 34
    sCG = 36
    sRING = 36
    sST = 72
    sT2 = 68
    vLANE16, vLA, vLT, vPW, vPA, vPT = 1, 2, 3, 4, 5, 6
    vWD = [7, 8]
    vIA, vIT = 9, 10
    vTA = 12
    vDD = 16
    vA1, vA2 = 24, 28
    vT = [32, 34]
    vW = 36
    vACC = vW + (32 if o.lo else 16)
    vZ = vACC + 48
    vX = vZ + 64
    NV = vX + 4 * D
    assert NV <= 256
    P = vZ
    def Z(buf, par, s=0): return vZ + 32 * buf + 16 * par + s

    a("s_cmp_ge_u32 s2, 256\ns_cbranch_scc1 L2_end")
    a("s_load_dwordx2 s[4:5], s[0:1], 0\ns_load_dwordx2 s[6:7], s[0:1], 64\ns_load_dwordx2 s[8:9], s[0:1], 80")
    stamp(a, o, 0, sST)
    a(f"v_lshrrev_b32 v{P}, 6, v0\nv_and_b32 v11, 63, v0\nv_lshlrev_b32 v{vLANE16}, 4, v11")
    a(f"v_readfirstlane_b32 s{sW}, v{P}")
    a(f"s_lshl_b32 s3, s2, 10\nv_add_u32 v{P+1}, s3, v{vLANE16}")
    for r in range(48):
        a(f"v_mov_b32 v{vACC+r}, 0")
    for r in range(8):
        a(f"v_mov_b32 v{vA1+r}, 0")
    a(f"s_mov_b32 s{sMA}, 0x0f0f0f0f\ns_mov_b32 s{sMA+1}, 0x0f0f0f0f\ns_mov_b32 s{sMB}, 0xf0f0f0f0\ns_mov_b32 s{sMB+1}, 0xf0f0f0f0")
    a(f"v_lshrrev_b32 v{vLA}, 5, v11\nv_lshlrev_b32 v{vLA}, 4, v{vLA}")
    a(f"v_and_b32 v{vLT}, 3, v11\nv_lshlrev_b32 v{vLT}, 3, v{vLT}")
    a(f"s_mov_b32 s{sR0}, 0")
    a("s_waitcnt lgkmcnt(0)")
    a(f"global_load_dwordx4 v[{P+4}:{P+7}], v{P+1}, s[{sWS}:{sWS+1}]")
    a(f"v_add_u32 v{P+2}, {WS_WFRAG}, v{vLANE16}")
    for f in range(4):
        a(f"global_load_dwordx4 v[{vW+4*f}:{vW+4*f+3}], v{P+2}, s[{sWS}:{sWS+1}] offset:{1024*f}")
    if o.lo:
        a(f"v_add_u32 v{P+2}, 4096, v{P+2}")
        for f in range(4):
            a(f"global_load_dwordx4 v[{vW+16+4*f}:{vW+16+4*f+3}], v{P+2}, s[{sWS}:{sWS+1}] offset:{1024*f}")
    srd(a, rX, sX, N * 1024)
    srd(a, rAUX, sWS, AUX_BYTES, WS_AUX)
    srd(a, rEF, sWS, EF_BYTES, WS_EF)
    srd(a, rOUT, sOUT, N * 1024)
    npf = 0
    if o.pf2:
        per = o.pf2 * 8 // 32
        a(f"s_lshr_b32 s3, s2, 3\ns_mul_i32 s3, s3, {per*128}\nv_lshlrev_b32 v{P+2}, 7, v0")
        for j in range((per + 511) // 512):
            if (j + 1) * 512 > per:
                a(f"v_mov_b32 v{P+3}, 0x7ffffff0\nv_cmp_gt_u32 vcc, {per - j*512}, v0\ns_nop 1\nv_cndmask_b32 v{P+2}, v{P+3}, v{P+2}, vcc")
            a(f"buffer_load_dword v{vX+j}, v{P+2}, s[{rX}:{rX+3}], s3 offen\ns_add_u32 s3, s3, {512*128}")
            npf += 1
    nW = (8 if o.lo else 4) + npf
    a("s_branch L2_round1")
    a("L2_round:")
    a(f"s_lshl_b32 s3, s2, 10\nv_add_u32 v{P+1}, s3, v{vLANE16}\ns_waitcnt vmcnt(0)")
    a(f"global_load_dwordx4 v[{P+4}:{P+7}], v{P+1}, s[{sWS}:{sWS+1}]\ns_waitcnt vmcnt(0) lgkmcnt(0)\ns_barrier")
    a("L2_round1:")
    a(f"s_add_u32 s{sT2}, s{sWS}, {WS_CG}\ns_addc_u32 s{sT2+1}, s{sWS+1}, 0")
    a(f"s_load_dwordx16 s[{sCG}:{sCG+15}], s[{sT2}:{sT2+1}], 0\ns_load_dwordx16 s[{sCG+16}:{sCG+31}], s[{sT2}:{sT2+1}], 64")
    a(f"v_mov_b32 v{P+8}, 0\nv_mov_b32 v{P+9}, 0\nv_mov_b32 v{P+10}, 0\nv_mov_b32 v{P+11}, 0")
    a(f"v_lshlrev_b32 v{P+2}, 4, v0\nv_add_u32 v{P+2}, {L_CELL}, v{P+2}")
    a(f"ds_write_b128 v{P+2}, v[{P+8}:{P+11}]")
    a(f"s_cmp_lt_u32 s{sW}, 2\ns_cbranch_scc0 L2_z1\nds_write_b128 v{P+2}, v[{P+8}:{P+11}] offset:8192\nL2_z1:")
    a(f"v_mov_b32 v{P+3}, {L_MISC}\nds_write_b32 v{P+3}, v{P+8}")
    a(f"s_waitcnt vmcnt({nW})")
    stamp(a, o, 1, sST)
    for j in range(4):
        a(f"v_lshrrev_b32 v{P+8+j}, 19, v{P+4+j}\nv_and_b32 v{P+4+j}, 0x7ffff, v{P+4+j}")
    a(f"v_add_u32 v{P+16}, v{P+8}, v{P+9}\nv_add3_u32 v{P+16}, v{P+16}, v{P+10}, v{P+11}\nv_mov_b32 v{P+17}, v{P+16}")
    scan(a, P + 17)
    a(f"v_sub_u32 v{P+12}, v{P+17}, v{P+16}\nv_readlane_b32 s{sTOT}, v{P+17}, 63")
    a(f"v_add_u32 v{P+13}, v{P+12}, v{P+8}\nv_add_u32 v{P+14}, v{P+13}, v{P+9}\nv_add_u32 v{P+15}, v{P+14}, v{P+10}")
    a(f"s_and_b32 s3, s{sW}, 3\ns_lshr_b32 s{sTMP}, s{sW}, 2")
    a(f"s_set_gpr_idx_on s3, gpr_idx(SRC0)\nv_mov_b32 v{P+18}, v{P+4}\nv_mov_b32 v{P+19}, v{P+8}\nv_mov_b32 v{P+20}, v{P+12}\ns_set_gpr_idx_off")
    a(f"v_add_u32 v{P+18}, s{sTMP}, v{P+18}\nv_subrev_u32 v{P+20}, s{sR0}, v{P+20}\nv_add_u32 v{P+20}, s{sTMP}, v{P+20}")
    a(f"s_movk_i32 s{sT2}, {CAP}\ns_mov_b32 s{sT2+1}, {L_REC}")
    a("L2_exp:")
    a(f"v_cmp_lt_u32 vcc, s{sTMP}, v{P+19}\ns_cbranch_vccz L2_expd")
    a(f"v_cmp_gt_u32 s[{sT2+2}:{sT2+3}], s{sT2}, v{P+20}\nv_lshl_add_u32 v{P+21}, v{P+20}, 2, s{sT2+1}\ns_and_b64 exec, vcc, s[{sT2+2}:{sT2+3}]")
    a(f"ds_write_b32 v{P+21}, v{P+18}\ns_mov_b64 exec, -1")
    a(f"v_add_u32 v{P+18}, 2, v{P+18}\nv_add_u32 v{P+20}, 2, v{P+20}\ns_add_u32 s{sTMP}, s{sTMP}, 2\ns_branch L2_exp")
    a("L2_expd:")
    a(f"s_sub_u32 s{sCNT}, s{sTOT}, s{sR0}\ns_min_u32 s{sCNT}, s{sCNT}, {CAP}")
    a(f"v_lshl_add_u32 v{P+2}, v0, 2, s{sT2+1}\nv_lshrrev_b32 v{P+3}, 1, v0\nv_lshl_add_u32 v{P+4}, v{P+3}, 2, s{sT2+1}")
    a("s_waitcnt lgkmcnt(0)\ns_barrier")
    stamp(a, o, 2, sST)
    for k in range(3):
        a(f"ds_read_b32 v{P+8+k}, v{P+2} offset:{2048*k}")
    for j in range(6):
        a(f"ds_read_b32 v{P+12+j}, v{P+4} offset:{1024*j}")
    RQ = P + 20
    a(f"v_mov_b32 v{P+5}, 0x7ffffff0\nv_lshlrev_b32 v{P+6}, 4, v0\nv_and_b32 v{P+6}, 16, v{P+6}")
    sM = [sT2 + 2, 92, 94]
    for k in range(3):
        a(f"v_add_u32 v{P+7}, {512*k}, v0\nv_cmp_gt_u32 s[{sM[k]}:{sM[k]+1}], s{sCNT}, v{P+7}")
        a(f"s_waitcnt lgkmcnt({8-k})\nv_lshlrev_b32 v{P+8+k}, 4, v{P+8+k}\nv_cndmask_b32 v{P+8+k}, v{P+5}, v{P+8+k}, s[{sM[k]}:{sM[k]+1}]")
        a(f"buffer_load_dwordx4 v[{RQ+4*k}:{RQ+4*k+3}], v{P+8+k}, s[{rAUX}:{rAUX+3}], 0 offen")
    a(f"s_lshl_b32 s3, s{sW}, 10")
    for j in range(6):
        a(f"v_add_u32 v{P+7}, {256*j}, v{P+3}\nv_cmp_gt_u32 vcc, s{sCNT}, v{P+7}\ns_add_u32 m0, s3, {L_EF + 8192*j}")
        a(f"s_waitcnt lgkmcnt({5-j})\nv_lshl_add_u32 v{P+12+j}, v{P+12+j}, 5, v{P+6}\nv_cndmask_b32 v{P+12+j}, v{P+5}, v{P+12+j}, vcc")
        a(f"buffer_load_dwordx4 v{P+12+j}, s[{rEF}:{rEF+3}], 0 offen lds")
    a(f"v_mov_b32 v{P+5}, 1\ns_mov_b32 s3, {L_CELL}")
    for k in range(3):
        a(f"s_waitcnt vmcnt({8-k})")
        if k == 0: stamp(a, o, 3, sST)
        a(f"v_and_b32 v{RQ+4*k+1}, 0xffff, v{RQ+4*k+1}\nv_add_u32 v{RQ+4*k+1}, s3, v{RQ+4*k+1}")
        a(f"s_mov_b64 exec, s[{sM[k]}:{sM[k]+1}]\nds_add_rtn_u32 v{P+8+k}, v{RQ+4*k+1}, v{P+5}\ns_mov_b64 exec, -1")
    a(f"s_lshl_b32 s{sTMP}, s{sW}, 8\ns_add_u32 s{sTMP}, s{sTMP}, s3\nv_lshl_add_u32 v{P+2}, v11, 2, s{sTMP}")
    a("s_waitcnt lgkmcnt(0)\ns_barrier")
    for s in range(5):
        a(f"ds_read_b32 v{P+12+s}, v{P+2} offset:{2048*s}")
    a("s_waitcnt lgkmcnt(0)")
    a(f"v_add3_u32 v{P+17}, v{P+12}, v{P+13}, v{P+14}\nv_add3_u32 v{P+17}, v{P+17}, v{P+15}, v{P+16}\nv_mov_b32 v{P+18}, v{P+17}")
    scan(a, P + 18)
    a(f"v_mov_b32 v{P+3}, {L_MISC}\nv_add_u32 v{P+19}, 48, v{P+18}\nv_readlane_b32 s{sCNT}, v{P+18}, 63")
    a(f"s_mov_b32 exec_lo, 0\ns_brev_b32 exec_hi, 1\nds_add_rtn_u32 v{P+19}, v{P+3}, v{P+19}\ns_mov_b64 exec, -1")
    a(f"v_sub_u32 v{P+18}, v{P+18}, v{P+17}\ns_waitcnt lgkmcnt(0)\nv_readlane_b32 s{sBASE}, v{P+19}, 63\ns_nop 1\nv_add_u32 v{P+18}, s{sBASE}, v{P+18}")
    for s in range(5):
        a(f"ds_write_b32 v{P+2}, v{P+18} offset:{2048*s}")
        if s < 4:
            a(f"s_mov_b32 s3, {8 << 16}\nv_add3_u32 v{P+18}, v{P+18}, v{P+12+s}, s3")
    a(f"s_add_u32 s3, s{sBASE}, s{sCNT}\ns_lshl_b32 s3, s3, 2\ns_add_u32 s3, s3, {L_WORD}\nv_lshl_add_u32 v{P+3}, v11, 2, s3\nv_mov_b32 v{P+4}, {0x7ffffc00 | 40}")
    a(f"s_mov_b32 exec_hi, 0xffff\nds_write_b32 v{P+3}, v{P+4}\ns_mov_b64 exec, -1")
    a(f"v_and_b32 v{P+3}, 15, v11\nv_add_u32 v{P+3}, s{sBASE}, v{P+3}\nv_lshlrev_b32 v{P+3}, 2, v{P+3}\nv_add_u32 v{vPW}, {L_WORD}, v{P+3}")
    a(f"v_bfe_u32 v{P+3}, v11, 3, 2\nv_and_b32 v{P+4}, 3, v11\nv_lshl_add_u32 v{P+3}, v{P+3}, 2, v{P+4}\nv_add_u32 v{P+3}, s{sBASE}, v{P+3}\nv_lshlrev_b32 v{P+3}, 1, v{P+3}\nv_add_u32 v{vPA}, {L_IDX}, v{P+3}")
    a(f"v_lshrrev_b32 v{P+3}, 2, v11\nv_add_u32 v{P+3}, s{sBASE}, v{P+3}\nv_lshlrev_b32 v{P+3}, 1, v{P+3}\nv_add_u32 v{vPT}, {L_IDX}, v{P+3}")
    a("s_waitcnt lgkmcnt(0)\ns_barrier")
    for k in range(3):
        a(f"ds_read_b32 v{P+12+k}, v{RQ+4*k+1}")
    a(f"s_mov_b32 s3, {L_WORD}\ns_mov_b32 s{sTMP}, {L_IDX}")
    for k in range(3):
        a(f"v_add_u32 v{P+7}, {512*k}, v0\nv_lshlrev_b32 v{P+7}, 5, v{P+7}")
        a(f"s_waitcnt lgkmcnt({2+k})")
        a(f"v_and_b32 v{P+15}, 0xffff, v{P+12+k}\nv_add_u32 v{P+15}, v{P+15}, v{P+8+k}\nv_lshrrev_b32 v{P+16}, 16, v{P+12+k}\nv_or_b32 v{P+16}, v{P+16}, v{RQ+4*k}")
        a(f"v_lshl_add_u32 v{P+17}, v{P+15}, 2, s3\nv_lshl_add_u32 v{P+15}, v{P+15}, 1, s{sTMP}")
        a(f"s_mov_b64 exec, s[{sM[k]}:{sM[k]+1}]\nds_write_b32 v{P+17}, v{P+16}\nds_write_b16 v{P+15}, v{P+7}\ns_mov_b64 exec, -1")
    a("s_waitcnt lgkmcnt(0)\ns_barrier")
    stamp(a, o, 4, sST)
    a(f"ds_read_b32 v{P+2}, v{vPW}\nds_read_b32 v{vWD[0]}, v{vPW} offset:{4*D}\nds_read_u16 v{vIA}, v{vPA}\nds_read_u16 v{vIT}, v{vPT}")
    a("s_waitcnt lgkmcnt(0)")
    for k in range(D):
        t = sT2 + (k & 1)
        a(f"v_readlane_b32 s{t}, v{P+2}, {k}\ns_and_b32 s{t}, s{t}, 0xfffffc00")
        a(f"buffer_load_dwordx4 v[{vX+4*k}:{vX+4*k+3}], v{vLANE16}, s[{rX}:{rX+3}], s{t} offen")
    TQ = P + 32
    a(f"v_lshlrev_b32 v{P+3}, 5, v0\nv_add_u32 v{P+3}, {L_T}, v{P+3}")
    for k in range(3):
        if k == 2:
            a(f"s_cmp_eq_u64 s[{sM[2]}:{sM[2]+1}], 0\ns_cbranch_scc1 L2_not3")
        for i in range(4):
            for oo in range(4):
                a(f"v_dot2_f32_bf16 v{TQ+4*oo+i}, v{RQ+4*k+2}, s{sCG+8*i+2*oo}, 0")
        for i in range(4):
            for oo in range(4):
                a(f"v_dot2_f32_bf16 v{TQ+4*oo+i}, v{RQ+4*k+3}, s{sCG+8*i+2*oo+1}, v{TQ+4*oo+i}")
        a("s_nop 1")
        for q in range(8):
            a(f"v_cvt_pk_bf16_f32 v{TQ+16+q}, v{TQ+2*q}, v{TQ+2*q+1}")
        a(f"ds_write_b128 v{P+3}, v[{TQ+16}:{TQ+19}] offset:{16384*k}\nds_write_b128 v{P+3}, v[{TQ+20}:{TQ+23}] offset:{16384*k+16}")
    a("L2_not3:")
    for k in range(D):
        a(f"v_readlane_b32 s{sRING+k}, v{P+2}, {k}")
    a(f"v_add_u32 v{vIA}, v{vIA}, v{vLA}\nv_add_u32 v{vIT}, v{vIT}, v{vLT}")
    a(f"s_waitcnt vmcnt({D}) lgkmcnt(0)\ns_barrier")
    stamp(a, o, 5, sST)
    a(f"s_cmp_eq_u32 s{sCNT}, 0\ns_cbranch_scc1 L2_exit\ns_sub_u32 s{sCNT}, s{sCNT}, 1")

    def rdA(buf):
        a(f"s_mov_b64 exec, s[{sMA}:{sMA+1}]\nds_read_b128 v[{vA1}:{vA1+3}], v{vIA} offset:{L_EF}")
        a(f"s_mov_b64 exec, s[{sMB}:{sMB+1}]\nds_read_b128 v[{vA2}:{vA2+3}], v{vIA} offset:{L_EF}\ns_mov_b64 exec, -1")
        a(f"ds_read_b64 v[{vT[buf]}:{vT[buf]+1}], v{vIT} offset:{L_T}")
    def zm(buf, q):
        if o.lo:
            par, h, lo = q >> 2, (q >> 1) & 1, q & 1
            first = (q & 3) == 0
        else:
            par, h, lo = q >> 1, q & 1, 0
            first = (q & 1) == 0
        z = vr(Z(buf, par), 16)
        w = vW + 16 * lo + 4 * (2 * par + h)
        return f"v_mfma_f32_32x32x16_bf16 {z}, {vr(vA2 if h else vA1, 4)}, {vr(w, 4)}, {'0' if first else z}"
    NZ = 8 if o.lo else 4
    def unit(u):
        u %= 32
        return Z(u >> 4, u & 1, (u & 15) & ~1)
    def ta(u): return vTA + 2 * (u & 1)
    def EXP(u, j): return f"v_exp_f32 v{ta(u)+j}, v{unit(u)+j}"
    def RCP(u, j): return f"v_rcp_f32 v{ta(u)+j}, v{ta(u)+j}"
    def PADD(u): return f"v_pk_add_f32 {vr(ta(u),2)}, {vr(ta(u),2)}, 1.0 op_sel_hi:[1,0]"
    def PMUL(u): return f"v_pk_mul_f32 {vr(unit(u),2)}, {vr(unit(u),2)}, {vr(ta(u),2)}"
    def ADD(u, j): return f"v_add_f32 v{ta(u)+j}, 1.0, v{ta(u)+j}"
    def MUL(u, j): return f"v_mul_f32 v{unit(u)+j}, v{unit(u)+j}, v{ta(u)+j}"
    rdA(0)
    a("s_waitcnt lgkmcnt(0)")
    for q in range(NZ):
        a(zm(0, q))
    a("s_nop 7\ns_nop 3")
    a(EXP(0, 0)); a(EXP(0, 1)); a(EXP(1, 0)); a(EXP(1, 1)); a(PADD(0)); a(PADD(1)); a(RCP(0, 0)); a(RCP(0, 1)); a("s_nop 0"); a(PMUL(0))
    if o.prio:
        a("s_setprio 3")
    zsteps = {5: 0, 7: 1, 9: 2, 11: 3} if NZ == 4 else {4 + q: q for q in range(8)}
    a("L2_loop:")
    for i in range(32):
        b, s = i >> 4, i & 15
        x = vX + 4 * (i % D)
        M0 = f"v_mfma_f32_4x4x4_16b_bf16 {vr(vDD,4)}, {vr(vT[b],2)}, {vr(x,2)}, 0 cbsz:4 abid:{s}"
        M1 = f"v_mfma_f32_4x4x4_16b_bf16 {vr(vDD+4,4)}, {vr(vT[b],2)}, {vr(x+2,2)}, 0 cbsz:4 abid:{s}"
        ring = sRING + (i + D) % 32
        RL = f"v_readlane_b32 s{ring}, v{vWD[b]}, {s}"
        AND = f"s_and_b32 s{sTMP}, s{ring}, 0xfffffc00"
        LD = f"buffer_load_dwordx4 {vr(x,4)}, v{vLANE16}, s[{rX}:{rX+3}], s{sTMP} offen"
        WT = f"s_waitcnt vmcnt({D-1})"
        sel = "op_sel_hi:[0,1,1]" if s % 2 == 0 else "op_sel:[1,0,0]"
        FM = [f"v_pk_fma_f32 {vr(vACC+2*q,2)}, {vr(Z(b, q >> 1, s & ~1),2)}, {vr(vDD+2*q,2)}, {vr(vACC+2*q,2)} {sel}" for q in range(4)]
        ON = f"s_set_gpr_idx_on s{sRING + i}, gpr_idx(SRC2,DST)"
        OFF = "s_set_gpr_idx_off"
        if s == 0:
            a(f"ds_read_u16 v{vIA}, v{vPA} offset:{32*(b+1)}\nds_read_u16 v{vIT}, v{vPT} offset:{32*(b+1)}")
            a(f"ds_read_b32 v{vWD[1-b]}, v{vPW} offset:{4*D + 64*(b+1)}")
        if s == 2:
            a(f"s_waitcnt lgkmcnt(0)\nv_add_u32 v{vIA}, v{vIA}, v{vLA}\nv_add_u32 v{vIT}, v{vIT}, v{vLT}")
            rdA(1 - b)
        if s == min(zsteps):
            a("s_waitcnt lgkmcnt(0)")
        if s in zsteps:
            seq = [zm(1 - b, zsteps[s]), EXP(i+2, 0), EXP(i+2, 1), RCP(i+1, 0), RCP(i+1, 1), WT, M0, RL, M1, AND, ADD(i+2, 0), LD, ADD(i+2, 1), MUL(i+1, 0), MUL(i+1, 1), ON] + FM + [OFF]
        else:
            seq = [EXP(i+2, 0), WT, M0, EXP(i+2, 1), M1, RL, RCP(i+1, 0), AND, RCP(i+1, 1), LD, PADD(i+2), PMUL(i+1), ON] + FM + [OFF]
        for q in seq:
            a(q)
        if (i + 1) % G == 0:
            a(f"s_sub_u32 s{sCNT}, s{sCNT}, {G}\ns_cbranch_scc1 L2_exit")
    a(f"v_add_u32 v{vPW}, 128, v{vPW}\nv_add_u32 v{vPA}, 64, v{vPA}\nv_add_u32 v{vPT}, 64, v{vPT}")
    if o.prio:
        a(f"s_cmp_lt_u32 s{sCNT}, 112\ns_cbranch_scc0 L2_loop\ns_setprio 2\ns_cmp_lt_u32 s{sCNT}, 80\ns_cbranch_scc0 L2_loop\ns_setprio 1\ns_cmp_lt_u32 s{sCNT}, 48\ns_cbranch_scc0 L2_loop\ns_setprio 0")
    a("s_branch L2_loop")
    a("L2_exit:")
    a(f"s_add_u32 s{sR0}, s{sR0}, {CAP}\ns_cmp_lt_u32 s{sR0}, s{sTOT}\ns_cbranch_scc1 L2_round")
    stamp(a, o, 6, sST)
    vB = vZ
    Q = vZ + 32
    a(f"s_and_b32 s3, s{sW}, 3\ns_lshl_b32 s{sTMP}, s3, 13\ns_add_u32 s{sTMP}, s{sTMP}, {WS_MIX}\ns_waitcnt lgkmcnt(0)\ns_nop 7\ns_nop 3")
    a(f"v_add_u32 v{Q}, s{sTMP}, v{vLANE16}\nv_add_u32 v{Q+1}, 4096, v{Q}")
    for f in range(8):
        a(f"global_load_dwordx4 {vr(vB+4*f,4)}, v{Q + (f >> 2)}, s[{sWS}:{sWS+1}] offset:{1024*(f & 3)}")
    a(f"s_mov_b32 s{sT2}, 0xbf317218\ns_mov_b32 s{sT2+1}, 0xbf317218")
    a(f"s_mul_i32 s{sTMP}, s{sW}, {4*AGS}\ns_add_u32 s{sTMP}, s{sTMP}, {L_AGG}\nv_lshl_add_u32 v{Q+2}, v11, 2, s{sTMP}")
    for s in range(5):
        c = vACC + 8 * s
        for q in range(4):
            a(f"v_pk_mul_f32 {vr(c+2*q,2)}, {vr(c+2*q,2)}, s[{sT2}:{sT2+1}]")
        for oo in range(4):
            a(f"v_cvt_pk_bf16_f32 v{c+oo}, v{c+oo}, v{c+4+oo}")
        for oo in range(4):
            a(f"ds_write_b32 v{Q+2}, v{c+oo} offset:{(32*s+oo)*AGS}")
    a(f"s_lshr_b32 s{sT2}, s{sW}, 2\ns_mul_i32 s{sTMP}, s{sT2}, {80*AGS}\ns_add_u32 s{sTMP}, s{sTMP}, {L_AGG}")
    a(f"v_and_b32 v{Q+3}, 15, v11\nv_lshrrev_b32 v{Q+4}, 4, v11\nv_mul_u32_u24 v{Q+5}, {AGS}, v{Q+3}\nv_lshl_add_u32 v{Q+5}, v{Q+4}, 4, v{Q+5}\nv_add_u32 v{Q+5}, s{sTMP}, v{Q+5}")
    a(f"s_mul_i32 s{sT2}, s{sT2}, {20*256}\ns_add_u32 s{sT2}, s{sT2}, s2\ns_lshl_b32 s{sT2}, s{sT2}, 10\ns_lshl_b32 s3, s3, 8\ns_add_u32 s{sT2}, s{sT2}, s3")
    a(f"v_lshlrev_b32 v{Q+4}, 18, v{Q+4}\nv_lshl_add_u32 v{Q+4}, v{Q+3}, 4, v{Q+4}\nv_add_u32 v{Q+4}, s{sT2}, v{Q+4}")
    a("s_waitcnt lgkmcnt(0)\ns_barrier")
    stamp(a, o, 7, sST)
    AF = vACC
    DF = vACC + 32
    def rdtile(k):
        for ks in range(4):
            a(f"ds_read_b128 {vr(AF+16*(k&1)+4*ks,4)}, v{Q+5} offset:{16*k*AGS + 64*ks}")
    rdtile(0)
    a("s_waitcnt vmcnt(0)")
    for k in range(5):
        if k < 4:
            rdtile(k + 1)
        d = DF + 8 * (k & 1)
        for ks in range(4):
            a(f"s_waitcnt lgkmcnt({(4 if k < 4 else 0) + 3 - ks})")
            for par in range(2):
                a(f"v_mfma_f32_16x16x32_bf16 {vr(d+4*par,4)}, {vr(AF+16*(k&1)+4*ks,4)}, {vr(vB+8*ks+4*par,4)}, {'0' if ks == 0 else vr(d+4*par,4)}")
        def fin(kk):
            dd = DF + 8 * (kk & 1)
            t = Q + 8 + 4 * (kk & 1)
            for q in range(4):
                a(f"v_cvt_pk_bf16_f32 v{t+q}, v{dd+2*q}, v{dd+2*q+1}")
            a(f"s_mov_b32 s3, {kk << 20}\nbuffer_store_dwordx4 {vr(t,4)}, v{Q+4}, s[{rOUT}:{rOUT+3}], s3 offen {o.st2}")
        if k > 0:
            fin(k - 1)
        if k == 4:
            a("s_nop 3")
            fin(4)
    stamp(a, o, 8, sST)
    if o.stamps:
        a("s_waitcnt vmcnt(0)")
    stamp(a, o, 9, sST)
    stamp_out(a, o, 10, sST, sWS, sW, 1, Q)
    a("L2_end:\ns_endpgm")
    return a.text(), NV, 100, LDS

KD = """.section .rodata,"a"
.p2align 6
.amdhsa_kernel {name}
  .amdhsa_next_free_vgpr {v}
  .amdhsa_next_free_sgpr {s}
  .amdhsa_accum_offset {acc}
  .amdhsa_group_segment_fixed_size 0
  .amdhsa_kernarg_size 88
  .amdhsa_user_sgpr_count 2
  .amdhsa_user_sgpr_kernarg_segment_ptr 1
  .amdhsa_system_sgpr_workgroup_id_x 1
  .amdhsa_float_denorm_mode_32 3
.end_amdhsa_kernel
"""

def build(o):
    ref = open("cdna_kernels/" + NAME + ".s.ref").read().split("\n")
    head = [l for l in ref if l.startswith(";") and "@launch" not in l and "Override" not in l and "grid=ceil" not in l]
    t1, v1, s1 = k1(o)
    t2, v2, s2, lds2 = k2(o)
    out = "\n".join(head) + "\n"
    out += f"; @launch kernel=tfn_bin_kernel grid=(256,1,1) block=(640,1,1) lds=83968\n"
    out += f"; @launch kernel={NAME}_kernel grid=(256,1,1) block=(512,1,1) lds={lds2}\n"
    out += "; generated by gen/gen.py\n"
    out += '.amdgcn_target "amdgcn-amd-amdhsa--gfx950"\n.text\n'
    for nm, t in (("tfn_bin_kernel", t1), (NAME + "_kernel", t2)):
        out += f".globl {nm}\n.p2align 8\n.type {nm},@function\n{nm}:\n" + t
    for nm, v, s in (("tfn_bin_kernel", v1, s1), (NAME + "_kernel", v2, s2)):
        out += KD.format(name=nm, v=v, s=s, acc=(v + 3) // 4 * 4)
    return out

def parser():
    p = argparse.ArgumentParser()
    p.add_argument("-o", default="cdna_kernels/" + NAME + ".s")
    p.add_argument("--D", type=int, default=16)
    p.add_argument("--G", type=int, default=4)
    p.add_argument("--lo", type=int, default=1)
    p.add_argument("--prio", type=int, default=0)
    p.add_argument("--pf1", type=int, default=1)
    p.add_argument("--pf2", type=int, default=0)
    p.add_argument("--st1", default="")
    p.add_argument("--st2", default="")
    p.add_argument("--stamps", type=int, default=0)
    return p

if __name__ == "__main__":
    o = parser().parse_args()
    open(o.o, "w").write(build(o))
```

```python
import sys, argparse

NAME = "standalone__tensor_product_equiv_tfn__graph"
N, E = 10000, 320000
CH = 1250
CS = 1280
WS_TABLE = 0
WS_WFRAG = 0x40000
WS_CG    = WS_WFRAG + 8192
WS_MIX   = WS_WFRAG + 16384
WS_AUX   = 0x100000
WS_EF    = 0x800000
WS_STAMP = 0x2000000
AUX_BYTES = 256 * CS * 16
EF_BYTES = 256 * CS * 32

class A:
    def __init__(self):
        self.l = []
    def __call__(self, s=""):
        for x in s.split("\n"):
            x = x.strip()
            if x:
                self.l.append(x if x.endswith(":") else "    " + x)
    def text(self):
        return "\n".join(self.l) + "\n"

def vr(a, n=1):
    return f"v{a}" if n == 1 else f"v[{a}:{a+n-1}]"
def sr(a, n=1):
    return f"s{a}" if n == 1 else f"s[{a}:{a+n-1}]"

def srd(a, d, base, nbytes, add=0):
    if add:
        a(f"s_add_u32 s{d}, s{base}, {add}\ns_addc_u32 s{d+1}, s{base+1}, 0")
    else:
        a(f"s_mov_b32 s{d}, s{base}\ns_mov_b32 s{d+1}, s{base+1}")
    a(f"s_mov_b32 s{d+2}, {nbytes}\ns_mov_b32 s{d+3}, 0x00020000")

def scan(a, v):
    for m in ("row_shr:1 row_mask:0xf", "row_shr:2 row_mask:0xf", "row_shr:4 row_mask:0xf", "row_shr:8 row_mask:0xf",
              "row_bcast:15 row_mask:0xa", "row_bcast:31 row_mask:0xc"):
        a(f"s_nop 1\nv_add_u32_dpp v{v}, v{v}, v{v} {m} bank_mask:0xf")

def stamp(a, o, k, sreg):
    if o.stamps:
        a(f"s_memrealtime s[{sreg+2*k}:{sreg+2*k+1}]")

def stamp_out(a, o, nst, sreg, ws, swave, kern, vt):
    if not o.stamps:
        return
    a("s_waitcnt lgkmcnt(0)")
    a(f"s_lshl_b32 s3, s2, 4\ns_add_u32 s3, s3, s{swave}\ns_lshl_b32 s3, s3, 6\ns_add_u32 s3, s3, {WS_STAMP + kern * (1 << 20)}")
    a(f"s_mov_b64 exec, 1\nv_mov_b32 v{vt}, s3")
    for k in range(nst):
        a(f"v_mov_b32 v{vt+1}, s{sreg+2*k}\nglobal_store_dword v{vt}, v{vt+1}, s[{ws}:{ws+1}] offset:{4*k}")

def k1(o):
    a = A()
    L_RAW, L_AUX, L_HIST, L_BASE = 0, 40960, 61440, 62464
    sX, sSRC, sDST, sY, sEF, sWR, sCG, sWM = 4, 6, 8, 10, 12, 14, 16, 18
    sWS = 20
    rEF, rX = 24, 28
    sW = 22
    sST = 60
    a("s_cmp_ge_u32 s2, 256\ns_cbranch_scc1 L1_end")
    a("s_load_dwordx16 s[4:19], s[0:1], 0\ns_load_dwordx2 s[20:21], s[0:1], 80")
    stamp(a, o, 0, sST)
    a("v_lshrrev_b32 v1, 6, v0\nv_lshlrev_b32 v2, 2, v0\nv_mov_b32 v3, 0")
    a(f"v_readfirstlane_b32 s{sW}, v1")
    a(f"v_cmp_gt_u32 vcc, 256, v0\ns_and_saveexec_b64 s[32:33], vcc\nds_write_b32 v2, v3 offset:{L_HIST}\ns_mov_b64 exec, s[32:33]")
    a(f"s_mul_i32 s34, s2, {CH*4}\ns_mul_i32 s35, s2, {CH*8}\ns_mul_i32 s36, s2, {CH*32}")
    a("v_lshl_add_u32 v4, v0, 3, s34\nv_lshlrev_b32 v6, 4, v0\nv_add_u32 v5, s35, v6")
    a(f"v_cmp_gt_u32 vcc, {CH//2}, v0\ns_mov_b64 s[40:41], vcc")
    a(f"s_lshl_b32 s37, s{sW}, 10")
    a("s_waitcnt lgkmcnt(0)")
    a("s_mov_b64 exec, s[40:41]")
    a(f"global_load_dwordx2 v[8:9], v4, s[{sDST}:{sDST+1}]")
    a(f"global_load_dwordx2 v[10:11], v4, s[{sSRC}:{sSRC+1}]")
    a(f"global_load_dwordx4 v[12:15], v5, s[{sY}:{sY+1}]")
    a("s_mov_b64 exec, -1")
    srd(a, rEF, sEF, E * 32)
    for j in range(4):
        a(f"s_add_u32 m0, s37, {L_RAW + j*10240}\ns_add_u32 s38, s36, {j*10240}")
        a(f"buffer_load_dwordx4 v6, s[{rEF}:{rEF+3}], s38 offen lds")
    a("v_and_b32 v30, 63, v0")
    a("s_waitcnt lgkmcnt(0)\ns_barrier")
    a("v_mov_b32 v3, 1\ns_mov_b64 exec, s[40:41]\ns_waitcnt vmcnt(6)")
    stamp(a, o, 1, sST)
    for j in range(2):
        d = 8 + j
        a(f"v_and_b32 v{16+j}, 7, v{d}\nv_bfe_u32 v{18+j}, v{d}, 3, 5\nv_lshl_add_u32 v{16+j}, v{16+j}, 5, v{18+j}\nv_lshlrev_b32 v{16+j}, 2, v{16+j}")
        a(f"ds_add_rtn_u32 v{18+j}, v{16+j}, v3 offset:{L_HIST}")
    a("s_waitcnt vmcnt(4)")
    for j in range(2):
        r = 20 + 4 * j
        a(f"v_lshlrev_b32 v{r}, 10, v{10+j}")
        a(f"v_lshrrev_b32 v{r+1}, 8, v{8+j}\nv_lshrrev_b32 v{r+2}, 8, v{10+j}\nv_lshl_add_u32 v{r+1}, v{r+1}, 6, v{r+2}\nv_lshlrev_b32 v{r+1}, 2, v{r+1}")
        a(f"v_lshl_add_u32 v{r+2}, v0, 1, {j}\nv_lshl_add_u32 v{r+1}, v{r+2}, 16, v{r+1}")
        a(f"v_mov_b32 v{r+2}, v{12+2*j}\nv_mov_b32 v{r+3}, v{13+2*j}")
    a("s_mov_b64 exec, -1\nv_lshlrev_b32 v31, 4, v30")
    a("s_waitcnt lgkmcnt(0)\ns_barrier")
    a(f"ds_read_b128 v[32:35], v31 offset:{L_HIST}\ns_waitcnt lgkmcnt(0)")
    a("v_add_u32 v36, v32, v33\nv_add3_u32 v36, v36, v34, v35\nv_mov_b32 v37, v36")
    scan(a, 37)
    a("v_sub_u32 v40, v37, v36\nv_add_u32 v41, v40, v32\nv_add_u32 v42, v41, v33\nv_add_u32 v43, v42, v34")
    a(f"ds_write_b128 v31, v[40:43] offset:{L_BASE}")
    a("s_mov_b64 exec, s[40:41]\ns_waitcnt lgkmcnt(0)")
    a(f"ds_read_b32 v28, v16 offset:{L_BASE}\nds_read_b32 v29, v17 offset:{L_BASE}")
    a("s_waitcnt lgkmcnt(1)\nv_add_lshl_u32 v28, v28, v18, 4")
    a(f"ds_write_b128 v28, v[20:23] offset:{L_AUX}")
    a("s_waitcnt lgkmcnt(1)\nv_add_lshl_u32 v29, v29, v19, 4")
    a(f"ds_write_b128 v29, v[24:27] offset:{L_AUX}")
    a("s_mov_b64 exec, -1")
    a(f"s_cmp_lt_u32 s{sW}, 4\ns_cbranch_scc0 L1_notab")
    a(f"s_set_gpr_idx_on s{sW}, gpr_idx(SRC0)\nv_mov_b32 v44, v32\nv_mov_b32 v45, v40\ns_set_gpr_idx_off")
    a(f"s_mul_i32 s3, s2, {CS}\nv_add_u32 v45, s3, v45\nv_lshl_add_u32 v47, v44, 19, v45")
    a(f"v_lshl_add_u32 v46, v30, 2, s{sW}")
    a("v_and_b32 v48, 31, v46\nv_lshrrev_b32 v46, 5, v46\nv_lshl_add_u32 v46, v48, 3, v46")
    a("s_and_b32 s3, s2, 7\ns_lshl_b32 s3, s3, 5\ns_lshr_b32 s38, s2, 3\ns_add_u32 s3, s3, s38\ns_lshl_b32 s3, s3, 2")
    a(f"v_lshl_add_u32 v46, v46, 10, s3")
    a(f"global_store_dword v46, v47, s[{sWS}:{sWS+1}]")
    a("L1_notab:")
    a("s_waitcnt lgkmcnt(0)\ns_barrier")
    stamp(a, o, 2, sST)
    a(f"ds_read_b128 v[8:11], v6 offset:{L_AUX}\nds_read_b128 v[12:15], v6 offset:{L_AUX + 10240}")
    a("v_lshrrev_b32 v7, 1, v0\nv_lshlrev_b32 v7, 4, v7")
    for j in range(4):
        a(f"ds_read_u16 v{16+j}, v7 offset:{L_AUX + 6 + j*5120}")
    a(f"s_mul_i32 s3, s2, {CS*16}\ns_add_u32 s3, s3, {WS_AUX}\nv_add_u32 v4, s3, v6\nv_add_u32 v5, 10240, v4")
    a(f"v_cmp_gt_u32 vcc, {CH-640}, v0\nv_and_b32 v20, 16, v6")
    a("s_waitcnt lgkmcnt(5)")
    a(f"global_store_dwordx4 v4, v[8:11], s[{sWS}:{sWS+1}] {o.st1}")
    a("s_waitcnt lgkmcnt(4)\ns_and_saveexec_b64 s[32:33], vcc")
    a(f"global_store_dwordx4 v5, v[12:15], s[{sWS}:{sWS+1}] {o.st1}")
    a("s_mov_b64 exec, -1\ns_waitcnt lgkmcnt(0)")
    for j in range(4):
        a(f"v_and_b32 v{16+j}, 0x7ff, v{16+j}\nv_lshl_add_u32 v{16+j}, v{16+j}, 5, v20")
    a("s_mov_b32 s39, 0\nv_mov_b32 v40, 0\ns_lshl_b32 s3, s2, 6\nv_add_u32 v31, s3, v30")
    a(f"s_cmp_eq_u32 s{sW}, 4\ns_cbranch_scc0 L1_nomix")
    a("v_bfe_u32 v32, v31, 10, 2\nv_lshlrev_b32 v32, 5, v32\nv_bfe_u32 v33, v31, 7, 2\nv_lshl_add_u32 v32, v33, 3, v32\nv_and_b32 v33, 7, v31\nv_add_u32 v32, v32, v33")
    a("v_bfe_u32 v33, v31, 12, 2\nv_lshlrev_b32 v33, 5, v33\nv_bfe_u32 v34, v31, 3, 4\nv_lshl_add_u32 v33, v34, 1, v33\nv_bfe_u32 v34, v31, 9, 1\nv_add_u32 v33, v33, v34")
    a("v_lshl_add_u32 v32, v32, 7, v33\nv_lshlrev_b32 v32, 1, v32")
    a(f"global_load_ushort v41, v32, s[{sWM}:{sWM+1}]")
    a(f"v_lshlrev_b32 v40, 1, v31\nv_add_u32 v40, {WS_MIX}, v40\ns_mov_b32 s39, 1")
    a("L1_nomix:")
    a(f"s_cmp_eq_u32 s{sW}, 5\ns_cbranch_scc0 L1_now\ns_cmp_lt_u32 s2, 32\ns_cbranch_scc0 L1_now")
    a("v_bfe_u32 v32, v31, 8, 1\nv_and_b32 v33, 7, v31\nv_lshl_add_u32 v32, v32, 3, v33")
    a("v_bfe_u32 v33, v31, 9, 1\nv_bfe_u32 v34, v31, 3, 5\nv_lshl_add_u32 v33, v33, 5, v34\nv_bfe_u32 v34, v31, 10, 1\nv_lshl_add_u32 v33, v33, 1, v34")
    a("v_lshl_add_u32 v32, v32, 7, v33\nv_lshlrev_b32 v32, 1, v32")
    a(f"global_load_ushort v41, v32, s[{sWR}:{sWR+1}]")
    a(f"v_lshlrev_b32 v40, 1, v31\nv_add_u32 v40, {WS_WFRAG}, v40\ns_mov_b32 s39, 2")
    a("L1_now:")
    a(f"s_cmp_eq_u32 s{sW}, 6\ns_cbranch_scc0 L1_nocg\ns_cmp_eq_u32 s2, 0\ns_cbranch_scc0 L1_nocg")
    a("v_and_b32 v32, 0x30, v30\nv_and_b32 v33, 3, v30\nv_lshl_add_u32 v32, v33, 2, v32\nv_bfe_u32 v33, v30, 2, 2\nv_add_u32 v32, v32, v33\nv_lshlrev_b32 v32, 1, v32")
    a(f"global_load_ushort v41, v32, s[{sCG}:{sCG+1}]")
    a(f"v_lshlrev_b32 v40, 1, v30\nv_add_u32 v40, {WS_CG}, v40\ns_mov_b32 s39, 1")
    a("L1_nocg:")
    a(f"s_mul_i32 s3, s2, {CS*32}\ns_add_u32 s3, s3, {WS_EF}\nv_add_u32 v4, s3, v6")
    a(f"v_cmp_gt_u32 vcc, {2*CH-3*640}, v0")
    a("s_waitcnt vmcnt(0)\ns_barrier")
    stamp(a, o, 3, sST)
    for j in range(4):
        a(f"ds_read_b128 v[{24+4*j}:{27+4*j}], v{16+j} offset:{L_RAW}")
    a("s_cmp_eq_u32 s39, 0\ns_cbranch_scc1 L1_nost\ns_cmp_eq_u32 s39, 1\ns_cbranch_scc1 L1_st1")
    a("v_lshlrev_b32 v42, 16, v41\nv_mul_f32 v42, 0xbfb8aa3b, v42")
    a("v_cvt_pk_bf16_f32 v41, v42, v42\nv_lshlrev_b32 v43, 16, v41\nv_sub_f32 v43, v42, v43\nv_cvt_pk_bf16_f32 v43, v43, v43")
    a(f"v_add_u32 v44, 4096, v40\nglobal_store_short v44, v43, s[{sWS}:{sWS+1}]")
    a(f"L1_st1:\nglobal_store_short v40, v41, s[{sWS}:{sWS+1}]\nL1_nost:")
    if o.pf1:
        srd(a, rX, sX, N * 1024)
        a(f"s_mul_i32 s3, s2, {313*128}\nv_lshlrev_b32 v21, 7, v0\ns_cmp_lt_u32 s{sW}, 5\ns_cbranch_scc0 L1_nopf")
        a(f"buffer_load_dword v22, v21, s[{rX}:{rX+3}], s3 offen")
        a("L1_nopf:")
    for j in range(4):
        a(f"s_waitcnt lgkmcnt({3-j})")
        if j == 3:
            a("s_and_saveexec_b64 s[32:33], vcc")
        a(f"global_store_dwordx4 v4, v[{24+4*j}:{27+4*j}], s[{sWS}:{sWS+1}] {o.st1}")
        if j < 3:
            a("v_add_u32 v4, 10240, v4")
    stamp(a, o, 4, sST)
    if o.stamps:
        a("s_waitcnt vmcnt(0)")
    stamp(a, o, 5, sST)
    stamp_out(a, o, 6, sST, sWS, sW, 0, 50)
    a("L1_end:\ns_endpgm")
    return a.text(), 56, 80

def k2(o):
    a = A()
    D, G = o.D, o.G
    CAP = 1536
    L_EF, L_T = 0, CAP * 32
    L_WORD = 2 * CAP * 32
    NL = CAP + 8 * 48
    L_IDX = L_WORD + NL * 4
    L_MISC = L_IDX + NL * 2 + 256
    L_AGG = L_MISC + 1024
    L_CELL = L_AGG
    L_REC = L_CELL + 40 * 256
    AGS = 288
    LDS = L_AGG + 160 * AGS
    sX, sOUT, sWS = 4, 6, 8
    rX, rAUX, rEF, rOUT = 12, 16, 20, 24
    sW, sTOT, sR0, sCNT, sBASE, sTMP = 10, 11, 28, 29, 30, 31
    sMA, sMB = 32, 34
    sCG = 36
    sRING = 36
    sST = 72
    sT2 = 68
    vLANE16, vLA, vLT, vPW, vPA, vPT = 1, 2, 3, 4, 5, 6
    vWD = [7, 8]
    vIA, vIT = 9, 10
    vTA = 12
    vDD = 16
    vA1, vA2 = 24, 28
    vT = [32, 34]
    vW = 36
    vACC = vW + (32 if o.lo else 16)
    vZ = vACC + 48
    vX = vZ + 64
    NV = vX + 4 * D
    assert NV <= 256
    P = vZ
    def Z(buf, par, s=0): return vZ + 32 * buf + 16 * par + s

    a("s_cmp_ge_u32 s2, 256\ns_cbranch_scc1 L2_end")
    a("s_load_dwordx2 s[4:5], s[0:1], 0\ns_load_dwordx2 s[6:7], s[0:1], 64\ns_load_dwordx2 s[8:9], s[0:1], 80")
    stamp(a, o, 0, sST)
    a(f"v_lshrrev_b32 v{P}, 6, v0\nv_and_b32 v11, 63, v0\nv_lshlrev_b32 v{vLANE16}, 4, v11")
    a(f"v_readfirstlane_b32 s{sW}, v{P}")
    a(f"s_lshl_b32 s3, s2, 10\nv_add_u32 v{P+1}, s3, v{vLANE16}")
    for r in range(48):
        a(f"v_mov_b32 v{vACC+r}, 0")
    for r in range(8):
        a(f"v_mov_b32 v{vA1+r}, 0")
    a(f"s_mov_b32 s{sMA}, 0x0f0f0f0f\ns_mov_b32 s{sMA+1}, 0x0f0f0f0f\ns_mov_b32 s{sMB}, 0xf0f0f0f0\ns_mov_b32 s{sMB+1}, 0xf0f0f0f0")
    a(f"v_lshrrev_b32 v{vLA}, 5, v11\nv_lshlrev_b32 v{vLA}, 4, v{vLA}")
    a(f"v_and_b32 v{vLT}, 3, v11\nv_lshlrev_b32 v{vLT}, 3, v{vLT}")
    a(f"s_mov_b32 s{sR0}, 0")
    a("s_waitcnt lgkmcnt(0)")
    a(f"global_load_dwordx4 v[{P+4}:{P+7}], v{P+1}, s[{sWS}:{sWS+1}]")
    a(f"v_add_u32 v{P+2}, {WS_WFRAG}, v{vLANE16}")
    for f in range(4):
        a(f"global_load_dwordx4 v[{vW+4*f}:{vW+4*f+3}], v{P+2}, s[{sWS}:{sWS+1}] offset:{1024*f}")
    if o.lo:
        a(f"v_add_u32 v{P+2}, 4096, v{P+2}")
        for f in range(4):
            a(f"global_load_dwordx4 v[{vW+16+4*f}:{vW+16+4*f+3}], v{P+2}, s[{sWS}:{sWS+1}] offset:{1024*f}")
    srd(a, rX, sX, N * 1024)
    srd(a, rAUX, sWS, AUX_BYTES, WS_AUX)
    srd(a, rEF, sWS, EF_BYTES, WS_EF)
    srd(a, rOUT, sOUT, N * 1024)
    npf = 0
    if o.pf2:
        per = o.pf2 * 8 // 32
        a(f"s_lshr_b32 s3, s2, 3\ns_mul_i32 s3, s3, {per*128}\nv_lshlrev_b32 v{P+2}, 7, v0")
        for j in range((per + 511) // 512):
            if (j + 1) * 512 > per:
                a(f"v_mov_b32 v{P+3}, 0x7ffffff0\nv_cmp_gt_u32 vcc, {per - j*512}, v0\ns_nop 1\nv_cndmask_b32 v{P+2}, v{P+3}, v{P+2}, vcc")
            a(f"buffer_load_dword v{vX+j}, v{P+2}, s[{rX}:{rX+3}], s3 offen\ns_add_u32 s3, s3, {512*128}")
            npf += 1
    nW = (8 if o.lo else 4) + npf
    a("s_branch L2_round1")
    a("L2_round:")
    a(f"s_lshl_b32 s3, s2, 10\nv_add_u32 v{P+1}, s3, v{vLANE16}\ns_waitcnt vmcnt(0)")
    a(f"global_load_dwordx4 v[{P+4}:{P+7}], v{P+1}, s[{sWS}:{sWS+1}]\ns_waitcnt vmcnt(0) lgkmcnt(0)\ns_barrier")
    a("L2_round1:")
    a(f"s_add_u32 s{sT2}, s{sWS}, {WS_CG}\ns_addc_u32 s{sT2+1}, s{sWS+1}, 0")
    a(f"s_load_dwordx16 s[{sCG}:{sCG+15}], s[{sT2}:{sT2+1}], 0\ns_load_dwordx16 s[{sCG+16}:{sCG+31}], s[{sT2}:{sT2+1}], 64")
    a(f"v_mov_b32 v{P+8}, 0\nv_mov_b32 v{P+9}, 0\nv_mov_b32 v{P+10}, 0\nv_mov_b32 v{P+11}, 0")
    a(f"v_lshlrev_b32 v{P+2}, 4, v0\nv_add_u32 v{P+2}, {L_CELL}, v{P+2}")
    a(f"ds_write_b128 v{P+2}, v[{P+8}:{P+11}]")
    a(f"s_cmp_lt_u32 s{sW}, 2\ns_cbranch_scc0 L2_z1\nds_write_b128 v{P+2}, v[{P+8}:{P+11}] offset:8192\nL2_z1:")
    a(f"v_mov_b32 v{P+3}, {L_MISC}\nds_write_b32 v{P+3}, v{P+8}")
    a(f"s_waitcnt vmcnt({nW})")
    stamp(a, o, 1, sST)
    for j in range(4):
        a(f"v_lshrrev_b32 v{P+8+j}, 19, v{P+4+j}\nv_and_b32 v{P+4+j}, 0x7ffff, v{P+4+j}")
    a(f"v_add_u32 v{P+16}, v{P+8}, v{P+9}\nv_add3_u32 v{P+16}, v{P+16}, v{P+10}, v{P+11}\nv_mov_b32 v{P+17}, v{P+16}")
    scan(a, P + 17)
    a(f"v_sub_u32 v{P+12}, v{P+17}, v{P+16}\nv_readlane_b32 s{sTOT}, v{P+17}, 63")
    a(f"v_add_u32 v{P+13}, v{P+12}, v{P+8}\nv_add_u32 v{P+14}, v{P+13}, v{P+9}\nv_add_u32 v{P+15}, v{P+14}, v{P+10}")
    a(f"s_and_b32 s3, s{sW}, 3\ns_lshr_b32 s{sTMP}, s{sW}, 2")
    a(f"s_set_gpr_idx_on s3, gpr_idx(SRC0)\nv_mov_b32 v{P+18}, v{P+4}\nv_mov_b32 v{P+19}, v{P+8}\nv_mov_b32 v{P+20}, v{P+12}\ns_set_gpr_idx_off")
    a(f"v_add_u32 v{P+18}, s{sTMP}, v{P+18}\nv_subrev_u32 v{P+20}, s{sR0}, v{P+20}\nv_add_u32 v{P+20}, s{sTMP}, v{P+20}")
    a(f"s_movk_i32 s{sT2}, {CAP}\ns_mov_b32 s{sT2+1}, {L_REC}")
    a("L2_exp:")
    a(f"v_cmp_lt_u32 vcc, s{sTMP}, v{P+19}\ns_cbranch_vccz L2_expd")
    a(f"v_cmp_gt_u32 s[{sT2+2}:{sT2+3}], s{sT2}, v{P+20}\nv_lshl_add_u32 v{P+21}, v{P+20}, 2, s{sT2+1}\ns_and_b64 exec, vcc, s[{sT2+2}:{sT2+3}]")
    a(f"ds_write_b32 v{P+21}, v{P+18}\ns_mov_b64 exec, -1")
    a(f"v_add_u32 v{P+18}, 2, v{P+18}\nv_add_u32 v{P+20}, 2, v{P+20}\ns_add_u32 s{sTMP}, s{sTMP}, 2\ns_branch L2_exp")
    a("L2_expd:")
    a(f"s_sub_u32 s{sCNT}, s{sTOT}, s{sR0}\ns_min_u32 s{sCNT}, s{sCNT}, {CAP}")
    a(f"v_lshl_add_u32 v{P+2}, v0, 2, s{sT2+1}\nv_lshrrev_b32 v{P+3}, 1, v0\nv_lshl_add_u32 v{P+4}, v{P+3}, 2, s{sT2+1}")
    a("s_waitcnt lgkmcnt(0)\ns_barrier")
    stamp(a, o, 2, sST)
    for k in range(3):
        a(f"ds_read_b32 v{P+8+k}, v{P+2} offset:{2048*k}")
    for j in range(6):
        a(f"ds_read_b32 v{P+12+j}, v{P+4} offset:{1024*j}")
    RQ = P + 20
    a(f"v_mov_b32 v{P+5}, 0x7ffffff0\nv_lshlrev_b32 v{P+6}, 4, v0\nv_and_b32 v{P+6}, 16, v{P+6}")
    sM = [sT2 + 2, 92, 94]
    for k in range(3):
        a(f"v_add_u32 v{P+7}, {512*k}, v0\nv_cmp_gt_u32 s[{sM[k]}:{sM[k]+1}], s{sCNT}, v{P+7}")
        a(f"s_waitcnt lgkmcnt({8-k})\nv_lshlrev_b32 v{P+8+k}, 4, v{P+8+k}\nv_cndmask_b32 v{P+8+k}, v{P+5}, v{P+8+k}, s[{sM[k]}:{sM[k]+1}]")
        a(f"buffer_load_dwordx4 v[{RQ+4*k}:{RQ+4*k+3}], v{P+8+k}, s[{rAUX}:{rAUX+3}], 0 offen")
    a(f"s_lshl_b32 s3, s{sW}, 10")
    for j in range(6):
        a(f"v_add_u32 v{P+7}, {256*j}, v{P+3}\nv_cmp_gt_u32 vcc, s{sCNT}, v{P+7}\ns_add_u32 m0, s3, {L_EF + 8192*j}")
        a(f"s_waitcnt lgkmcnt({5-j})\nv_lshl_add_u32 v{P+12+j}, v{P+12+j}, 5, v{P+6}\nv_cndmask_b32 v{P+12+j}, v{P+5}, v{P+12+j}, vcc")
        a(f"buffer_load_dwordx4 v{P+12+j}, s[{rEF}:{rEF+3}], 0 offen lds")
    a(f"v_mov_b32 v{P+5}, 1\ns_mov_b32 s3, {L_CELL}")
    for k in range(3):
        a(f"s_waitcnt vmcnt({8-k})")
        if k == 0: stamp(a, o, 3, sST)
        a(f"v_and_b32 v{RQ+4*k+1}, 0xffff, v{RQ+4*k+1}\nv_add_u32 v{RQ+4*k+1}, s3, v{RQ+4*k+1}")
        a(f"s_mov_b64 exec, s[{sM[k]}:{sM[k]+1}]\nds_add_rtn_u32 v{P+8+k}, v{RQ+4*k+1}, v{P+5}\ns_mov_b64 exec, -1")
    a(f"s_lshl_b32 s{sTMP}, s{sW}, 8\ns_add_u32 s{sTMP}, s{sTMP}, s3\nv_lshl_add_u32 v{P+2}, v11, 2, s{sTMP}")
    a("s_waitcnt lgkmcnt(0)\ns_barrier")
    for s in range(5):
        a(f"ds_read_b32 v{P+12+s}, v{P+2} offset:{2048*s}")
    a("s_waitcnt lgkmcnt(0)")
    a(f"v_add3_u32 v{P+17}, v{P+12}, v{P+13}, v{P+14}\nv_add3_u32 v{P+17}, v{P+17}, v{P+15}, v{P+16}\nv_mov_b32 v{P+18}, v{P+17}")
    scan(a, P + 18)
    a(f"v_mov_b32 v{P+3}, {L_MISC}\nv_add_u32 v{P+19}, 48, v{P+18}\nv_readlane_b32 s{sCNT}, v{P+18}, 63")
    a(f"s_mov_b32 exec_lo, 0\ns_brev_b32 exec_hi, 1\nds_add_rtn_u32 v{P+19}, v{P+3}, v{P+19}\ns_mov_b64 exec, -1")
    a(f"v_sub_u32 v{P+18}, v{P+18}, v{P+17}\ns_waitcnt lgkmcnt(0)\nv_readlane_b32 s{sBASE}, v{P+19}, 63\ns_nop 1\nv_add_u32 v{P+18}, s{sBASE}, v{P+18}")
    for s in range(5):
        a(f"ds_write_b32 v{P+2}, v{P+18} offset:{2048*s}")
        if s < 4:
            a(f"s_mov_b32 s3, {8 << 16}\nv_add3_u32 v{P+18}, v{P+18}, v{P+12+s}, s3")
    a(f"s_add_u32 s3, s{sBASE}, s{sCNT}\ns_lshl_b32 s3, s3, 2\ns_add_u32 s3, s3, {L_WORD}\nv_lshl_add_u32 v{P+3}, v11, 2, s3\nv_mov_b32 v{P+4}, {0x7ffffc00 | 40}")
    a(f"s_mov_b32 exec_hi, 0xffff\nds_write_b32 v{P+3}, v{P+4}\ns_mov_b64 exec, -1")
    a(f"v_and_b32 v{P+3}, 15, v11\nv_add_u32 v{P+3}, s{sBASE}, v{P+3}\nv_lshlrev_b32 v{P+3}, 2, v{P+3}\nv_add_u32 v{vPW}, {L_WORD}, v{P+3}")
    a(f"v_bfe_u32 v{P+3}, v11, 3, 2\nv_and_b32 v{P+4}, 3, v11\nv_lshl_add_u32 v{P+3}, v{P+3}, 2, v{P+4}\nv_add_u32 v{P+3}, s{sBASE}, v{P+3}\nv_lshlrev_b32 v{P+3}, 1, v{P+3}\nv_add_u32 v{vPA}, {L_IDX}, v{P+3}")
    a(f"v_lshrrev_b32 v{P+3}, 2, v11\nv_add_u32 v{P+3}, s{sBASE}, v{P+3}\nv_lshlrev_b32 v{P+3}, 1, v{P+3}\nv_add_u32 v{vPT}, {L_IDX}, v{P+3}")
    a("s_waitcnt lgkmcnt(0)\ns_barrier")
    for k in range(3):
        a(f"ds_read_b32 v{P+12+k}, v{RQ+4*k+1}")
    a(f"s_mov_b32 s3, {L_WORD}\ns_mov_b32 s{sTMP}, {L_IDX}")
    for k in range(3):
        a(f"v_add_u32 v{P+7}, {512*k}, v0\nv_lshlrev_b32 v{P+7}, 5, v{P+7}")
        a(f"s_waitcnt lgkmcnt({2+k})")
        a(f"v_and_b32 v{P+15}, 0xffff, v{P+12+k}\nv_add_u32 v{P+15}, v{P+15}, v{P+8+k}\nv_lshrrev_b32 v{P+16}, 16, v{P+12+k}\nv_or_b32 v{P+16}, v{P+16}, v{RQ+4*k}")
        a(f"v_lshl_add_u32 v{P+17}, v{P+15}, 2, s3\nv_lshl_add_u32 v{P+15}, v{P+15}, 1, s{sTMP}")
        a(f"s_mov_b64 exec, s[{sM[k]}:{sM[k]+1}]\nds_write_b32 v{P+17}, v{P+16}\nds_write_b16 v{P+15}, v{P+7}\ns_mov_b64 exec, -1")
    a("s_waitcnt lgkmcnt(0)\ns_barrier")
    stamp(a, o, 4, sST)
    a(f"ds_read_b32 v{P+2}, v{vPW}\nds_read_b32 v{vWD[0]}, v{vPW} offset:{4*D}\nds_read_u16 v{vIA}, v{vPA}\nds_read_u16 v{vIT}, v{vPT}")
    a("s_waitcnt lgkmcnt(0)")
    for k in range(D):
        t = sT2 + (k & 1)
        a(f"v_readlane_b32 s{t}, v{P+2}, {k}\ns_and_b32 s{t}, s{t}, 0xfffffc00")
        a(f"buffer_load_dwordx4 v[{vX+4*k}:{vX+4*k+3}], v{vLANE16}, s[{rX}:{rX+3}], s{t} offen")
    TQ = P + 32
    a(f"v_lshlrev_b32 v{P+3}, 5, v0\nv_add_u32 v{P+3}, {L_T}, v{P+3}")
    for k in range(3):
        if k == 2:
            a(f"s_cmp_eq_u64 s[{sM[2]}:{sM[2]+1}], 0\ns_cbranch_scc1 L2_not3")
        for i in range(4):
            for oo in range(4):
                a(f"v_dot2_f32_bf16 v{TQ+4*oo+i}, v{RQ+4*k+2}, s{sCG+8*i+2*oo}, 0")
        for i in range(4):
            for oo in range(4):
                a(f"v_dot2_f32_bf16 v{TQ+4*oo+i}, v{RQ+4*k+3}, s{sCG+8*i+2*oo+1}, v{TQ+4*oo+i}")
        a("s_nop 1")
        for q in range(8):
            a(f"v_cvt_pk_bf16_f32 v{TQ+16+q}, v{TQ+2*q}, v{TQ+2*q+1}")
        a(f"ds_write_b128 v{P+3}, v[{TQ+16}:{TQ+19}] offset:{16384*k}\nds_write_b128 v{P+3}, v[{TQ+20}:{TQ+23}] offset:{16384*k+16}")
    a("L2_not3:")
    for k in range(D):
        a(f"v_readlane_b32 s{sRING+k}, v{P+2}, {k}")
    a(f"v_add_u32 v{vIA}, v{vIA}, v{vLA}\nv_add_u32 v{vIT}, v{vIT}, v{vLT}")
    a(f"s_waitcnt vmcnt({D}) lgkmcnt(0)\ns_barrier")
    stamp(a, o, 5, sST)
    a(f"s_cmp_eq_u32 s{sCNT}, 0\ns_cbranch_scc1 L2_exit\ns_sub_u32 s{sCNT}, s{sCNT}, 1")

    def rdA(buf):
        a(f"s_mov_b64 exec, s[{sMA}:{sMA+1}]\nds_read_b128 v[{vA1}:{vA1+3}], v{vIA} offset:{L_EF}")
        a(f"s_mov_b64 exec, s[{sMB}:{sMB+1}]\nds_read_b128 v[{vA2}:{vA2+3}], v{vIA} offset:{L_EF}\ns_mov_b64 exec, -1")
        a(f"ds_read_b64 v[{vT[buf]}:{vT[buf]+1}], v{vIT} offset:{L_T}")
    def zm(buf, q):
        if o.lo:
            par, h, lo = q >> 2, (q >> 1) & 1, q & 1
            first = (q & 3) == 0
        else:
            par, h, lo = q >> 1, q & 1, 0
            first = (q & 1) == 0
        z = vr(Z(buf, par), 16)
        w = vW + 16 * lo + 4 * (2 * par + h)
        return f"v_mfma_f32_32x32x16_bf16 {z}, {vr(vA2 if h else vA1, 4)}, {vr(w, 4)}, {'0' if first else z}"
    NZ = 8 if o.lo else 4
    def unit(u):
        u %= 32
        return Z(u >> 4, u & 1, (u & 15) & ~1)
    def ta(u): return vTA + 2 * (u & 1)
    def EXP(u, j): return f"v_exp_f32 v{ta(u)+j}, v{unit(u)+j}"
    def RCP(u, j): return f"v_rcp_f32 v{ta(u)+j}, v{ta(u)+j}"
    def PADD(u): return f"v_pk_add_f32 {vr(ta(u),2)}, {vr(ta(u),2)}, 1.0 op_sel_hi:[1,0]"
    def PMUL(u): return f"v_pk_mul_f32 {vr(unit(u),2)}, {vr(unit(u),2)}, {vr(ta(u),2)}"
    def ADD(u, j): return f"v_add_f32 v{ta(u)+j}, 1.0, v{ta(u)+j}"
    def MUL(u, j): return f"v_mul_f32 v{unit(u)+j}, v{unit(u)+j}, v{ta(u)+j}"
    rdA(0)
    a("s_waitcnt lgkmcnt(0)")
    for q in range(NZ):
        a(zm(0, q))
    a("s_nop 7\ns_nop 3")
    a(EXP(0, 0)); a(EXP(0, 1)); a(EXP(1, 0)); a(EXP(1, 1)); a(PADD(0)); a(PADD(1)); a(RCP(0, 0)); a(RCP(0, 1)); a("s_nop 0"); a(PMUL(0))
    if o.prio:
        a("s_setprio 3")
    zsteps = {5: 0, 7: 1, 9: 2, 11: 3} if NZ == 4 else {4 + q: q for q in range(8)}
    a("L2_loop:")
    for i in range(32):
        b, s = i >> 4, i & 15
        x = vX + 4 * (i % D)
        M0 = f"v_mfma_f32_4x4x4_16b_bf16 {vr(vDD,4)}, {vr(vT[b],2)}, {vr(x,2)}, 0 cbsz:4 abid:{s}"
        M1 = f"v_mfma_f32_4x4x4_16b_bf16 {vr(vDD+4,4)}, {vr(vT[b],2)}, {vr(x+2,2)}, 0 cbsz:4 abid:{s}"
        ring = sRING + (i + D) % 32
        RL = f"v_readlane_b32 s{ring}, v{vWD[b]}, {s}"
        AND = f"s_and_b32 s{sTMP}, s{ring}, 0xfffffc00"
        LD = f"buffer_load_dwordx4 {vr(x,4)}, v{vLANE16}, s[{rX}:{rX+3}], s{sTMP} offen"
        WT = f"s_waitcnt vmcnt({D-1})"
        sel = "op_sel_hi:[0,1,1]" if s % 2 == 0 else "op_sel:[1,0,0]"
        FM = [f"v_pk_fma_f32 {vr(vACC+2*q,2)}, {vr(Z(b, q >> 1, s & ~1),2)}, {vr(vDD+2*q,2)}, {vr(vACC+2*q,2)} {sel}" for q in range(4)]
        ON = f"s_set_gpr_idx_on s{sRING + i}, gpr_idx(SRC2,DST)"
        OFF = "s_set_gpr_idx_off"
        if s == 0:
            a(f"ds_read_u16 v{vIA}, v{vPA} offset:{32*(b+1)}\nds_read_u16 v{vIT}, v{vPT} offset:{32*(b+1)}")
            a(f"ds_read_b32 v{vWD[1-b]}, v{vPW} offset:{4*D + 64*(b+1)}")
        if s == 2:
            a(f"s_waitcnt lgkmcnt(0)\nv_add_u32 v{vIA}, v{vIA}, v{vLA}\nv_add_u32 v{vIT}, v{vIT}, v{vLT}")
            rdA(1 - b)
        if s == min(zsteps):
            a("s_waitcnt lgkmcnt(0)")
        if s in zsteps:
            seq = [zm(1 - b, zsteps[s]), EXP(i+2, 0), EXP(i+2, 1), RCP(i+1, 0), RCP(i+1, 1), WT, M0, RL, M1, AND, ADD(i+2, 0), LD, ADD(i+2, 1), MUL(i+1, 0), MUL(i+1, 1), ON] + FM + [OFF]
        else:
            seq = [EXP(i+2, 0), WT, M0, EXP(i+2, 1), M1, RL, RCP(i+1, 0), AND, RCP(i+1, 1), LD, PADD(i+2), PMUL(i+1), ON] + FM + [OFF]
        for q in seq:
            a(q)
        if (i + 1) % G == 0:
            a(f"s_sub_u32 s{sCNT}, s{sCNT}, {G}\ns_cbranch_scc1 L2_exit")
    a(f"v_add_u32 v{vPW}, 128, v{vPW}\nv_add_u32 v{vPA}, 64, v{vPA}\nv_add_u32 v{vPT}, 64, v{vPT}")
    if o.prio:
        a(f"s_cmp_lt_u32 s{sCNT}, 112\ns_cbranch_scc0 L2_loop\ns_setprio 2\ns_cmp_lt_u32 s{sCNT}, 80\ns_cbranch_scc0 L2_loop\ns_setprio 1\ns_cmp_lt_u32 s{sCNT}, 48\ns_cbranch_scc0 L2_loop\ns_setprio 0")
    a("s_branch L2_loop")
    a("L2_exit:")
    a(f"s_add_u32 s{sR0}, s{sR0}, {CAP}\ns_cmp_lt_u32 s{sR0}, s{sTOT}\ns_cbranch_scc1 L2_round")
    stamp(a, o, 6, sST)
    vB = vZ
    Q = vZ + 32
    a(f"s_and_b32 s3, s{sW}, 3\ns_lshl_b32 s{sTMP}, s3, 13\ns_add_u32 s{sTMP}, s{sTMP}, {WS_MIX}\ns_waitcnt lgkmcnt(0)\ns_nop 7\ns_nop 3")
    a(f"v_add_u32 v{Q}, s{sTMP}, v{vLANE16}\nv_add_u32 v{Q+1}, 4096, v{Q}")
    for f in range(8):
        a(f"global_load_dwordx4 {vr(vB+4*f,4)}, v{Q + (f >> 2)}, s[{sWS}:{sWS+1}] offset:{1024*(f & 3)}")
    a(f"s_mov_b32 s{sT2}, 0xbf317218\ns_mov_b32 s{sT2+1}, 0xbf317218")
    a(f"s_mul_i32 s{sTMP}, s{sW}, {4*AGS}\ns_add_u32 s{sTMP}, s{sTMP}, {L_AGG}\nv_lshl_add_u32 v{Q+2}, v11, 2, s{sTMP}")
    for s in range(5):
        c = vACC + 8 * s
        for q in range(4):
            a(f"v_pk_mul_f32 {vr(c+2*q,2)}, {vr(c+2*q,2)}, s[{sT2}:{sT2+1}]")
        for oo in range(4):
            a(f"v_cvt_pk_bf16_f32 v{c+oo}, v{c+oo}, v{c+4+oo}")
        for oo in range(4):
            a(f"ds_write_b32 v{Q+2}, v{c+oo} offset:{(32*s+oo)*AGS}")
    a(f"s_lshr_b32 s{sT2}, s{sW}, 2\ns_mul_i32 s{sTMP}, s{sT2}, {80*AGS}\ns_add_u32 s{sTMP}, s{sTMP}, {L_AGG}")
    a(f"v_and_b32 v{Q+3}, 15, v11\nv_lshrrev_b32 v{Q+4}, 4, v11\nv_mul_u32_u24 v{Q+5}, {AGS}, v{Q+3}\nv_lshl_add_u32 v{Q+5}, v{Q+4}, 4, v{Q+5}\nv_add_u32 v{Q+5}, s{sTMP}, v{Q+5}")
    a(f"s_mul_i32 s{sT2}, s{sT2}, {20*256}\ns_add_u32 s{sT2}, s{sT2}, s2\ns_lshl_b32 s{sT2}, s{sT2}, 10\ns_lshl_b32 s3, s3, 8\ns_add_u32 s{sT2}, s{sT2}, s3")
    a(f"v_lshlrev_b32 v{Q+4}, 18, v{Q+4}\nv_lshl_add_u32 v{Q+4}, v{Q+3}, 4, v{Q+4}\nv_add_u32 v{Q+4}, s{sT2}, v{Q+4}")
    a("s_waitcnt lgkmcnt(0)\ns_barrier")
    stamp(a, o, 7, sST)
    AF = vACC
    DF = vACC + 32
    def rdtile(k):
        for ks in range(4):
            a(f"ds_read_b128 {vr(AF+16*(k&1)+4*ks,4)}, v{Q+5} offset:{16*k*AGS + 64*ks}")
    rdtile(0)
    a("s_waitcnt vmcnt(0)")
    for k in range(5):
        if k < 4:
            rdtile(k + 1)
        d = DF + 8 * (k & 1)
        for ks in range(4):
            a(f"s_waitcnt lgkmcnt({(4 if k < 4 else 0) + 3 - ks})")
            for par in range(2):
                a(f"v_mfma_f32_16x16x32_bf16 {vr(d+4*par,4)}, {vr(AF+16*(k&1)+4*ks,4)}, {vr(vB+8*ks+4*par,4)}, {'0' if ks == 0 else vr(d+4*par,4)}")
        def fin(kk):
            dd = DF + 8 * (kk & 1)
            t = Q + 8 + 4 * (kk & 1)
            for q in range(4):
                a(f"v_cvt_pk_bf16_f32 v{t+q}, v{dd+2*q}, v{dd+2*q+1}")
            a(f"s_mov_b32 s3, {kk << 20}\nbuffer_store_dwordx4 {vr(t,4)}, v{Q+4}, s[{rOUT}:{rOUT+3}], s3 offen {o.st2}")
        if k > 0:
            fin(k - 1)
        if k == 4:
            a("s_nop 3")
            fin(4)
    stamp(a, o, 8, sST)
    if o.stamps:
        a("s_waitcnt vmcnt(0)")
    stamp(a, o, 9, sST)
    stamp_out(a, o, 10, sST, sWS, sW, 1, Q)
    a("L2_end:\ns_endpgm")
    return a.text(), NV, 100, LDS

KD = """.section .rodata,"a"
.p2align 6
.amdhsa_kernel {name}
  .amdhsa_next_free_vgpr {v}
  .amdhsa_next_free_sgpr {s}
  .amdhsa_accum_offset {acc}
  .amdhsa_group_segment_fixed_size 0
  .amdhsa_kernarg_size 88
  .amdhsa_user_sgpr_count 2
  .amdhsa_user_sgpr_kernarg_segment_ptr 1
  .amdhsa_system_sgpr_workgroup_id_x 1
  .amdhsa_float_denorm_mode_32 3
.end_amdhsa_kernel
"""

def build(o):
    ref = open("cdna_kernels/" + NAME + ".s.ref").read().split("\n")
    head = [l for l in ref if l.startswith(";") and "@launch" not in l and "Override" not in l and "grid=ceil" not in l]
    t1, v1, s1 = k1(o)
    t2, v2, s2, lds2 = k2(o)
    out = "\n".join(head) + "\n"
    for _ in range(o.empty):
        out += f"; @launch kernel=tfn_nop_kernel grid=(256,1,1) block=(64,1,1) lds=0\n"
    out += f"; @launch kernel=tfn_bin_kernel grid=(256,1,1) block=(640,1,1) lds=83968\n"
    out += f"; @launch kernel={NAME}_kernel grid=(256,1,1) block=(512,1,1) lds={lds2}\n"
    out += "; generated by gen/gen.py\n"
    out += '.amdgcn_target "amdgcn-amd-amdhsa--gfx950"\n.text\n'
    ks = [("tfn_bin_kernel", t1, v1, s1), (NAME + "_kernel", t2, v2, s2)]
    if o.empty:
        ks.append(("tfn_nop_kernel", "    s_endpgm\n", 8, 16))
    for nm, t, v, s in ks:
        out += f".globl {nm}\n.p2align 8\n.type {nm},@function\n{nm}:\n" + t
    for nm, t, v, s in ks:
        out += KD.format(name=nm, v=v, s=s, acc=(v + 3) // 4 * 4)
    return out

def parser():
    p = argparse.ArgumentParser()
    p.add_argument("-o", default="cdna_kernels/" + NAME + ".s")
    p.add_argument("--D", type=int, default=16)
    p.add_argument("--G", type=int, default=4)
    p.add_argument("--lo", type=int, default=1)
    p.add_argument("--prio", type=int, default=0)
    p.add_argument("--pf1", type=int, default=1)
    p.add_argument("--pf2", type=int, default=0)
    p.add_argument("--st1", default="")
    p.add_argument("--st2", default="")
    p.add_argument("--empty", type=int, default=0)
    p.add_argument("--stamps", type=int, default=0)
    return p

if __name__ == "__main__":
    o = parser().parse_args()
    open(o.o, "w").write(build(o))
```

```python
import sys, argparse

NAME = "standalone__tensor_product_equiv_tfn__graph"
N, E = 10000, 320000
CH = 1250
CS = 1280
WS_TABLE = 0
WS_WFRAG = 0x40000
WS_CG    = WS_WFRAG + 8192
WS_MIX   = WS_WFRAG + 16384
WS_AUX   = 0x100000
WS_EF    = 0x800000
WS_STAMP = 0x2000000
AUX_BYTES = 256 * CS * 16
EF_BYTES = 256 * CS * 32

class A:
    def __init__(self):
        self.l = []
    def __call__(self, s=""):
        for x in s.split("\n"):
            x = x.strip()
            if x:
                self.l.append(x if x.endswith(":") else "    " + x)
    def c(self, s):
        self.l.append("    ; " + s)
    def text(self):
        return "\n".join(self.l) + "\n"

def vr(a, n=1):
    return f"v{a}" if n == 1 else f"v[{a}:{a+n-1}]"
def sr(a, n=1):
    return f"s{a}" if n == 1 else f"s[{a}:{a+n-1}]"

def srd(a, d, base, nbytes, add=0):
    if add:
        a(f"s_add_u32 s{d}, s{base}, {add}\ns_addc_u32 s{d+1}, s{base+1}, 0")
    else:
        a(f"s_mov_b32 s{d}, s{base}\ns_mov_b32 s{d+1}, s{base+1}")
    a(f"s_mov_b32 s{d+2}, {nbytes}\ns_mov_b32 s{d+3}, 0x00020000")

def scan(a, v):
    for m in ("row_shr:1 row_mask:0xf", "row_shr:2 row_mask:0xf", "row_shr:4 row_mask:0xf", "row_shr:8 row_mask:0xf",
              "row_bcast:15 row_mask:0xa", "row_bcast:31 row_mask:0xc"):
        a(f"s_nop 1\nv_add_u32_dpp v{v}, v{v}, v{v} {m} bank_mask:0xf")

def stamp(a, o, k, sreg):
    if o.stamps:
        a(f"s_memrealtime s[{sreg+2*k}:{sreg+2*k+1}]")

def stamp_out(a, o, nst, sreg, ws, swave, kern, vt):
    if not o.stamps:
        return
    a("s_waitcnt lgkmcnt(0)")
    a(f"s_lshl_b32 s3, s2, 4\ns_add_u32 s3, s3, s{swave}\ns_lshl_b32 s3, s3, 6\ns_add_u32 s3, s3, {WS_STAMP + kern * (1 << 20)}")
    a(f"s_mov_b64 exec, 1\nv_mov_b32 v{vt}, s3")
    for k in range(nst):
        a(f"v_mov_b32 v{vt+1}, s{sreg+2*k}\nglobal_store_dword v{vt}, v{vt+1}, s[{ws}:{ws+1}] offset:{4*k}")

def k1(o):
    a = A()
    L_RAW, L_AUX, L_HIST, L_BASE = 0, 40960, 61440, 62464
    sX, sSRC, sDST, sY, sEF, sWR, sCG, sWM = 4, 6, 8, 10, 12, 14, 16, 18
    sWS = 20
    rEF, rX = 24, 28
    sW = 22
    sST = 60
    a("s_cmp_ge_u32 s2, 256\ns_cbranch_scc1 L1_end")
    a("s_load_dwordx16 s[4:19], s[0:1], 0\ns_load_dwordx2 s[20:21], s[0:1], 80")
    stamp(a, o, 0, sST)
    a("v_lshrrev_b32 v1, 6, v0\nv_lshlrev_b32 v2, 2, v0\nv_mov_b32 v3, 0")
    a(f"v_readfirstlane_b32 s{sW}, v1")
    a(f"v_cmp_gt_u32 vcc, 256, v0\ns_and_saveexec_b64 s[32:33], vcc\nds_write_b32 v2, v3 offset:{L_HIST}\ns_mov_b64 exec, s[32:33]")
    a(f"s_mul_i32 s34, s2, {CH*4}\ns_mul_i32 s35, s2, {CH*8}\ns_mul_i32 s36, s2, {CH*32}")
    a("v_lshl_add_u32 v4, v0, 3, s34\nv_lshlrev_b32 v6, 4, v0\nv_add_u32 v5, s35, v6")
    a(f"v_cmp_gt_u32 vcc, {CH//2}, v0\ns_mov_b64 s[40:41], vcc")
    a(f"s_lshl_b32 s37, s{sW}, 10")
    a("s_waitcnt lgkmcnt(0)")
    a("s_mov_b64 exec, s[40:41]")
    a(f"global_load_dwordx2 v[8:9], v4, s[{sDST}:{sDST+1}]")
    a(f"global_load_dwordx2 v[10:11], v4, s[{sSRC}:{sSRC+1}]")
    a(f"global_load_dwordx4 v[12:15], v5, s[{sY}:{sY+1}]")
    a("s_mov_b64 exec, -1")
    srd(a, rEF, sEF, E * 32)
    a("v_and_b32 v30, 63, v0")
    a("s_barrier")
    for j in range(4):
        a(f"s_add_u32 m0, s37, {L_RAW + j*10240}\ns_add_u32 s38, s36, {j*10240}")
        a(f"buffer_load_dwordx4 v6, s[{rEF}:{rEF+3}], s38 offen lds")
    a("v_mov_b32 v3, 1\ns_mov_b64 exec, s[40:41]\ns_waitcnt vmcnt(6)")
    stamp(a, o, 1, sST)
    for j in range(2):
        d = 8 + j
        a(f"v_and_b32 v{16+j}, 7, v{d}\nv_bfe_u32 v{18+j}, v{d}, 3, 5\nv_lshl_add_u32 v{16+j}, v{16+j}, 5, v{18+j}\nv_lshlrev_b32 v{16+j}, 2, v{16+j}")
        a(f"ds_add_rtn_u32 v{18+j}, v{16+j}, v3 offset:{L_HIST}")
    a("s_waitcnt vmcnt(4)")
    for j in range(2):
        r = 20 + 4 * j
        a(f"v_lshlrev_b32 v{r}, 10, v{10+j}")
        if o.win:
            a(f"v_mul_u32_u24 v{r+2}, {(o.win << 17) // 10000}, v{10+j}\nv_lshrrev_b32 v{r+2}, 17, v{r+2}")
        else:
            a(f"v_lshrrev_b32 v{r+2}, 8, v{10+j}")
        if o.rot:
            a(f"v_and_b32 v{r+1}, 7, v{8+j}\nv_mad_u32_u24 v{r+2}, v{r+1}, {o.rot}, v{r+2}\nv_subrev_u32 v{r+1}, 40, v{r+2}\nv_min_u32 v{r+2}, v{r+2}, v{r+1}")
        a(f"v_lshrrev_b32 v{r+1}, 8, v{8+j}\nv_lshl_add_u32 v{r+1}, v{r+1}, 6, v{r+2}\nv_lshlrev_b32 v{r+1}, 2, v{r+1}")
        a(f"v_lshl_add_u32 v{r+2}, v0, 1, {j}\nv_lshl_add_u32 v{r+1}, v{r+2}, 16, v{r+1}")
        a(f"v_mov_b32 v{r+2}, v{12+2*j}\nv_mov_b32 v{r+3}, v{13+2*j}")
    a("s_mov_b64 exec, -1\nv_lshlrev_b32 v31, 4, v30")
    a("s_waitcnt lgkmcnt(0)\ns_barrier")
    a(f"ds_read_b128 v[32:35], v31 offset:{L_HIST}\ns_waitcnt lgkmcnt(0)")
    a("v_add_u32 v36, v32, v33\nv_add3_u32 v36, v36, v34, v35\nv_mov_b32 v37, v36")
    scan(a, 37)
    a("v_sub_u32 v40, v37, v36\nv_add_u32 v41, v40, v32\nv_add_u32 v42, v41, v33\nv_add_u32 v43, v42, v34")
    a(f"ds_write_b128 v31, v[40:43] offset:{L_BASE}")
    a("s_mov_b64 exec, s[40:41]\ns_waitcnt lgkmcnt(0)")
    a(f"ds_read_b32 v28, v16 offset:{L_BASE}\nds_read_b32 v29, v17 offset:{L_BASE}")
    a("s_waitcnt lgkmcnt(1)\nv_add_lshl_u32 v28, v28, v18, 4")
    a(f"ds_write_b128 v28, v[20:23] offset:{L_AUX}")
    a("s_waitcnt lgkmcnt(1)\nv_add_lshl_u32 v29, v29, v19, 4")
    a(f"ds_write_b128 v29, v[24:27] offset:{L_AUX}")
    a("s_mov_b64 exec, -1")
    a(f"s_cmp_lt_u32 s{sW}, 4\ns_cbranch_scc0 L1_notab")
    a(f"s_set_gpr_idx_on s{sW}, gpr_idx(SRC0)\nv_mov_b32 v44, v32\nv_mov_b32 v45, v40\ns_set_gpr_idx_off")
    a(f"s_mul_i32 s3, s2, {CS}\nv_add_u32 v45, s3, v45\nv_lshl_add_u32 v47, v44, 19, v45")
    a(f"v_lshl_add_u32 v46, v30, 2, s{sW}")
    a("v_and_b32 v48, 31, v46\nv_lshrrev_b32 v46, 5, v46\nv_lshl_add_u32 v46, v48, 3, v46")
    a("s_and_b32 s3, s2, 7\ns_lshl_b32 s3, s3, 5\ns_lshr_b32 s38, s2, 3\ns_add_u32 s3, s3, s38\ns_lshl_b32 s3, s3, 2")
    a(f"v_lshl_add_u32 v46, v46, 10, s3")
    a(f"global_store_dword v46, v47, s[{sWS}:{sWS+1}]")
    a("L1_notab:")
    a("s_waitcnt lgkmcnt(0)\ns_barrier")
    stamp(a, o, 2, sST)
    a(f"ds_read_b128 v[8:11], v6 offset:{L_AUX}\nds_read_b128 v[12:15], v6 offset:{L_AUX + 10240}")
    a("v_lshrrev_b32 v7, 1, v0\nv_lshlrev_b32 v7, 4, v7")
    for j in range(4):
        a(f"ds_read_u16 v{16+j}, v7 offset:{L_AUX + 6 + j*5120}")
    a(f"s_mul_i32 s3, s2, {CS*16}\ns_add_u32 s3, s3, {WS_AUX}\nv_add_u32 v4, s3, v6\nv_add_u32 v5, 10240, v4")
    a(f"v_and_b32 v20, 16, v6")
    a("s_waitcnt lgkmcnt(5)")
    a(f"global_store_dwordx4 v4, v[8:11], s[{sWS}:{sWS+1}] {o.st1}")
    a("s_waitcnt lgkmcnt(4)")
    a(f"global_store_dwordx4 v5, v[12:15], s[{sWS}:{sWS+1}] {o.st1}")
    a("s_waitcnt lgkmcnt(0)")
    for j in range(4):
        a(f"v_and_b32 v{16+j}, 0x7ff, v{16+j}\nv_lshl_add_u32 v{16+j}, v{16+j}, 5, v20")
    a("s_mov_b32 s39, 0\nv_mov_b32 v40, 0\ns_lshl_b32 s3, s2, 6\nv_add_u32 v31, s3, v30")
    a(f"s_cmp_eq_u32 s{sW}, 4\ns_cbranch_scc0 L1_nomix")
    a("v_bfe_u32 v32, v31, 10, 2\nv_lshlrev_b32 v32, 5, v32\nv_bfe_u32 v33, v31, 7, 2\nv_lshl_add_u32 v32, v33, 3, v32\nv_and_b32 v33, 7, v31\nv_add_u32 v32, v32, v33")
    a("v_bfe_u32 v33, v31, 12, 2\nv_lshlrev_b32 v33, 5, v33\nv_bfe_u32 v34, v31, 3, 4\nv_lshl_add_u32 v33, v34, 1, v33\nv_bfe_u32 v34, v31, 9, 1\nv_add_u32 v33, v33, v34")
    a("v_lshl_add_u32 v32, v32, 7, v33\nv_lshlrev_b32 v32, 1, v32")
    a(f"global_load_ushort v41, v32, s[{sWM}:{sWM+1}]")
    a(f"v_lshlrev_b32 v40, 1, v31\nv_add_u32 v40, {WS_MIX}, v40\ns_mov_b32 s39, 1")
    a("L1_nomix:")
    a(f"s_cmp_eq_u32 s{sW}, 5\ns_cbranch_scc0 L1_now\ns_cmp_lt_u32 s2, 32\ns_cbranch_scc0 L1_now")
    a("v_bfe_u32 v32, v31, 8, 1\nv_and_b32 v33, 7, v31\nv_lshl_add_u32 v32, v32, 3, v33")
    a("v_bfe_u32 v33, v31, 9, 1\nv_bfe_u32 v34, v31, 3, 5\nv_lshl_add_u32 v33, v33, 5, v34\nv_bfe_u32 v34, v31, 10, 1\nv_lshl_add_u32 v33, v33, 1, v34")
    a("v_lshl_add_u32 v32, v32, 7, v33\nv_lshlrev_b32 v32, 1, v32")
    a(f"global_load_ushort v41, v32, s[{sWR}:{sWR+1}]")
    a(f"v_lshlrev_b32 v40, 1, v31\nv_add_u32 v40, {WS_WFRAG}, v40\ns_mov_b32 s39, 2")
    a("L1_now:")
    a(f"s_cmp_eq_u32 s{sW}, 6\ns_cbranch_scc0 L1_nocg\ns_cmp_eq_u32 s2, 0\ns_cbranch_scc0 L1_nocg")
    a("v_and_b32 v32, 0x30, v30\nv_and_b32 v33, 3, v30\nv_lshl_add_u32 v32, v33, 2, v32\nv_bfe_u32 v33, v30, 2, 2\nv_add_u32 v32, v32, v33\nv_lshlrev_b32 v32, 1, v32")
    a(f"global_load_ushort v41, v32, s[{sCG}:{sCG+1}]")
    a(f"v_lshlrev_b32 v40, 1, v30\nv_add_u32 v40, {WS_CG}, v40\ns_mov_b32 s39, 1")
    a("L1_nocg:")
    a(f"s_mul_i32 s3, s2, {CS*32}\ns_add_u32 s3, s3, {WS_EF}\nv_add_u32 v4, s3, v6")
    a("s_waitcnt vmcnt(0)\ns_barrier")
    stamp(a, o, 3, sST)
    for j in range(4):
        a(f"ds_read_b128 v[{24+4*j}:{27+4*j}], v{16+j} offset:{L_RAW}")
    a("s_cmp_eq_u32 s39, 0\ns_cbranch_scc1 L1_nost\ns_cmp_eq_u32 s39, 1\ns_cbranch_scc1 L1_st1")
    a("v_lshlrev_b32 v42, 16, v41\nv_mul_f32 v42, 0xbfb8aa3b, v42")
    a("v_cvt_pk_bf16_f32 v41, v42, v42\nv_lshlrev_b32 v43, 16, v41\nv_sub_f32 v43, v42, v43\nv_cvt_pk_bf16_f32 v43, v43, v43")
    a(f"v_add_u32 v44, 4096, v40\nglobal_store_short v44, v43, s[{sWS}:{sWS+1}]")
    a(f"L1_st1:\nglobal_store_short v40, v41, s[{sWS}:{sWS+1}]\nL1_nost:")
    if o.pf1:
        srd(a, rX, sX, N * 1024)
        a(f"s_mul_i32 s3, s2, {313*128}\nv_lshlrev_b32 v21, 7, v0\ns_cmp_lt_u32 s{sW}, 5\ns_cbranch_scc0 L1_nopf")
        a(f"buffer_load_dword v22, v21, s[{rX}:{rX+3}], s3 offen")
        a("L1_nopf:")
    for j in range(4):
        a(f"s_waitcnt lgkmcnt({3-j})")
        a(f"global_store_dwordx4 v4, v[{24+4*j}:{27+4*j}], s[{sWS}:{sWS+1}] {o.st1}")
        if j < 3:
            a("v_add_u32 v4, 10240, v4")
    stamp(a, o, 4, sST)
    if o.stamps:
        a("s_waitcnt vmcnt(0)")
    stamp(a, o, 5, sST)
    stamp_out(a, o, 6, sST, sWS, sW, 0, 50)
    a("L1_end:\ns_endpgm")
    return a.text(), 56, 80

def k2(o):
    a = A()
    D, G = o.D, o.G
    CAP = 1536
    L_EF, L_T = 0, CAP * 32
    L_WORD = 2 * CAP * 32
    NL = CAP + 8 * 48
    L_IDX = L_WORD + NL * 4
    L_MISC = L_IDX + NL * 2 + 256
    L_AGG = L_MISC + 1024
    L_CELL = L_AGG
    L_REC = L_CELL + 40 * 256
    AGS = 288
    LDS = L_AGG + 160 * AGS
    sX, sOUT, sWS = 4, 6, 8
    rX, rAUX, rEF, rOUT = 12, 16, 20, 24
    sW, sTOT, sR0, sCNT, sBASE, sTMP = 10, 11, 28, 29, 30, 31
    sMA, sMB = 32, 34
    sCG = 36
    sRING = 36
    sST = 72
    sT2 = 68
    sN = 96
    sRK, sNB = 101, 3
    vLANE16, vLA, vLT, vPW, vPA, vPT = 1, 2, 3, 4, 5, 6
    vWD = [7, 8]
    vIA, vIT = 9, 10
    vTA = 12
    vDD = 16
    vA1, vA2 = 24, 28
    vT = [32, 34]
    vW = 36
    vACC = vW + (32 if o.lo else 16)
    vZ = vACC + 48
    vX = vZ + 64
    NV = vX + 4 * D
    assert NV <= 256
    P = vZ
    def Z(buf, par, s=0): return vZ + 32 * buf + 16 * par + s

    a("s_cmp_ge_u32 s2, 256\ns_cbranch_scc1 L2_end")
    a("s_load_dwordx2 s[4:5], s[0:1], 0\ns_load_dwordx2 s[6:7], s[0:1], 64\ns_load_dwordx2 s[8:9], s[0:1], 80")
    stamp(a, o, 0, sST)
    a(f"v_lshrrev_b32 v{P}, 6, v0\nv_and_b32 v11, 63, v0\nv_lshlrev_b32 v{vLANE16}, 4, v11")
    a(f"v_readfirstlane_b32 s{sW}, v{P}")
    a(f"s_lshl_b32 s3, s2, 10\nv_add_u32 v{P+1}, s3, v{vLANE16}")
    for r in range(48):
        a(f"v_mov_b32 v{vACC+r}, 0")
    for r in range(8):
        a(f"v_mov_b32 v{vA1+r}, 0")
    a(f"s_mov_b32 s{sMA}, 0x0f0f0f0f\ns_mov_b32 s{sMA+1}, 0x0f0f0f0f\ns_mov_b32 s{sMB}, 0xf0f0f0f0\ns_mov_b32 s{sMB+1}, 0xf0f0f0f0")
    a(f"v_lshrrev_b32 v{vLA}, 5, v11\nv_lshlrev_b32 v{vLA}, 4, v{vLA}")
    a(f"v_and_b32 v{vLT}, 3, v11\nv_lshlrev_b32 v{vLT}, 3, v{vLT}")
    a(f"s_mov_b32 s{sR0}, 0")
    if o.bal:
        R39 = [[0, 3, 9, 16, 39], [1, 17, 24, 30, 36], [2, 12, 23, 25, 38], [4, 11, 18, 29, 37], [5, 15, 19, 27, 35], [6, 10, 22, 31, 33], [7, 13, 21, 26, 34], [8, 14, 20, 28, 32]]
        R40 = [[0, 8, 21, 35, 39], [1, 15, 20, 24, 38], [2, 13, 19, 26, 37], [3, 9, 18, 30, 36], [4, 12, 17, 29, 34], [5, 11, 23, 25, 33], [6, 14, 16, 28, 32], [7, 10, 22, 27, 31]]
        a(f"s_cmp_lt_u32 s2, 16\ns_cselect_b32 s{sTMP}, 8, 0\ns_add_u32 s{sTMP}, s{sTMP}, s{sW}\ns_mov_b32 s{sRK}, 0")
        for w, r in enumerate(R39 + R40):
            a(f"s_cmp_eq_u32 s{sTMP}, {w}\ns_cselect_b32 s{sRK}, {hex(sum(x << (6*i) for i, x in enumerate(r)))}, s{sRK}")
    a("s_waitcnt lgkmcnt(0)")
    a(f"global_load_dwordx4 v[{P+4}:{P+7}], v{P+1}, s[{sWS}:{sWS+1}]")
    a(f"v_add_u32 v{P+2}, {WS_WFRAG}, v{vLANE16}")
    for f in range(4):
        a(f"global_load_dwordx4 v[{vW+4*f}:{vW+4*f+3}], v{P+2}, s[{sWS}:{sWS+1}] offset:{1024*f}")
    if o.lo:
        a(f"v_add_u32 v{P+2}, 4096, v{P+2}")
        for f in range(4):
            a(f"global_load_dwordx4 v[{vW+16+4*f}:{vW+16+4*f+3}], v{P+2}, s[{sWS}:{sWS+1}] offset:{1024*f}")
    srd(a, rX, sX, N * 1024)
    srd(a, rAUX, sWS, AUX_BYTES, WS_AUX)
    srd(a, rEF, sWS, EF_BYTES, WS_EF)
    srd(a, rOUT, sOUT, N * 1024)
    npf = 0
    if o.pf2:
        per = o.pf2 * 8 // 32
        a(f"s_lshr_b32 s3, s2, 3\ns_mul_i32 s3, s3, {per*128}\nv_lshlrev_b32 v{P+2}, 7, v0")
        for j in range((per + 511) // 512):
            if (j + 1) * 512 > per:
                a(f"v_mov_b32 v{P+3}, 0x7ffffff0\nv_cmp_gt_u32 vcc, {per - j*512}, v0\ns_nop 1\nv_cndmask_b32 v{P+2}, v{P+3}, v{P+2}, vcc")
            a(f"buffer_load_dword v{vX+j}, v{P+2}, s[{rX}:{rX+3}], s3 offen\ns_add_u32 s3, s3, {512*128}")
            npf += 1
    nW = (8 if o.lo else 4) + npf
    a("s_branch L2_round1")
    a("L2_round:")
    a(f"s_lshl_b32 s3, s2, 10\nv_add_u32 v{P+1}, s3, v{vLANE16}\ns_waitcnt vmcnt(0)")
    a(f"global_load_dwordx4 v[{P+4}:{P+7}], v{P+1}, s[{sWS}:{sWS+1}]\ns_waitcnt vmcnt(0) lgkmcnt(0)\ns_barrier")
    a("L2_round1:")
    a(f"s_add_u32 s{sT2}, s{sWS}, {WS_CG}\ns_addc_u32 s{sT2+1}, s{sWS+1}, 0")
    a(f"s_load_dwordx16 s[{sCG}:{sCG+15}], s[{sT2}:{sT2+1}], 0\ns_load_dwordx16 s[{sCG+16}:{sCG+31}], s[{sT2}:{sT2+1}], 64")
    a(f"v_mov_b32 v{P+8}, 0\nv_mov_b32 v{P+9}, 0\nv_mov_b32 v{P+10}, 0\nv_mov_b32 v{P+11}, 0")
    a(f"v_lshlrev_b32 v{P+2}, 4, v0\nv_add_u32 v{P+2}, {L_CELL}, v{P+2}")
    a(f"ds_write_b128 v{P+2}, v[{P+8}:{P+11}]")
    a(f"s_cmp_lt_u32 s{sW}, 2\ns_cbranch_scc0 L2_z1\nds_write_b128 v{P+2}, v[{P+8}:{P+11}] offset:8192\nL2_z1:")
    a(f"v_lshlrev_b32 v{P+3}, 3, v11\nv_add_u32 v{P+3}, {L_MISC}, v{P+3}\nds_write_b64 v{P+3}, v[{P+8}:{P+9}]")
    a(f"s_waitcnt vmcnt({nW})")
    stamp(a, o, 1, sST)
    for j in range(4):
        a(f"v_lshrrev_b32 v{P+8+j}, 19, v{P+4+j}\nv_and_b32 v{P+4+j}, 0x7ffff, v{P+4+j}")
    a(f"v_add_u32 v{P+16}, v{P+8}, v{P+9}\nv_add3_u32 v{P+16}, v{P+16}, v{P+10}, v{P+11}\nv_mov_b32 v{P+17}, v{P+16}")
    scan(a, P + 17)
    a(f"v_sub_u32 v{P+12}, v{P+17}, v{P+16}\nv_readlane_b32 s{sTOT}, v{P+17}, 63")
    a(f"v_add_u32 v{P+13}, v{P+12}, v{P+8}\nv_add_u32 v{P+14}, v{P+13}, v{P+9}\nv_add_u32 v{P+15}, v{P+14}, v{P+10}")
    a(f"s_and_b32 s3, s{sW}, 3\ns_lshr_b32 s{sTMP}, s{sW}, 2")
    a(f"s_set_gpr_idx_on s3, gpr_idx(SRC0)\nv_mov_b32 v{P+18}, v{P+4}\nv_mov_b32 v{P+19}, v{P+8}\nv_mov_b32 v{P+20}, v{P+12}\ns_set_gpr_idx_off")
    a(f"v_subrev_u32 v{P+20}, s{sR0}, v{P+20}\nv_sub_u32 v{P+18}, v{P+18}, v{P+20}\nv_add_u32 v{P+20}, s{sTMP}, v{P+20}")
    a(f"s_movk_i32 s{sT2}, {CAP}\ns_mov_b32 s{sT2+1}, {L_REC}")
    a(f"s_cmp_gt_u32 s{sTOT}, {CAP}\ns_cbranch_scc1 L2_exp")
    a(f"v_subrev_u32 v{P+22}, s{sTMP}, v{P+19}\nv_lshl_add_u32 v{P+21}, v{P+20}, 2, s{sT2+1}")
    NX = 6
    for i in range(NX):
        a(f"v_cmpx_lt_i32 vcc, {2*i}, v{P+22}\nds_write_b32 v{P+21}, v{P+18} offset:{8*i}")
    a(f"s_mov_b64 exec, -1\nv_add_u32 v{P+20}, {2*NX}, v{P+20}\ns_add_u32 s{sTMP}, s{sTMP}, {2*NX}")
    a("L2_exp:")
    a(f"v_cmp_lt_u32 vcc, s{sTMP}, v{P+19}\ns_cbranch_vccz L2_expd")
    a(f"v_cmp_gt_u32 s[{sT2+2}:{sT2+3}], s{sT2}, v{P+20}\nv_lshl_add_u32 v{P+21}, v{P+20}, 2, s{sT2+1}\ns_and_b64 exec, vcc, s[{sT2+2}:{sT2+3}]")
    a(f"ds_write_b32 v{P+21}, v{P+18}\ns_mov_b64 exec, -1")
    a(f"v_add_u32 v{P+20}, 2, v{P+20}\ns_add_u32 s{sTMP}, s{sTMP}, 2\ns_branch L2_exp")
    a("L2_expd:")
    a(f"s_sub_u32 s{sCNT}, s{sTOT}, s{sR0}\ns_min_u32 s{sCNT}, s{sCNT}, {CAP}")
    a(f"v_lshl_add_u32 v{P+2}, v0, 2, s{sT2+1}\nv_lshrrev_b32 v{P+3}, 1, v0\nv_lshl_add_u32 v{P+4}, v{P+3}, 2, s{sT2+1}")
    a("s_waitcnt lgkmcnt(0)\ns_barrier")
    stamp(a, o, 2, sST)
    for k in range(3):
        a(f"ds_read_b32 v{P+8+k}, v{P+2} offset:{2048*k}")
    for j in range(6):
        a(f"ds_read_b32 v{P+12+j}, v{P+4} offset:{1024*j}")
    RQ = P + 20
    a(f"v_mov_b32 v{P+5}, 0x7ffffff0\nv_lshlrev_b32 v{P+6}, 4, v0\nv_and_b32 v{P+6}, 16, v{P+6}")
    sM = [sT2 + 2, 92, 94]
    for k in range(3):
        a(f"v_add_u32 v{P+7}, {512*k}, v0\nv_cmp_gt_u32 s[{sM[k]}:{sM[k]+1}], s{sCNT}, v{P+7}")
        a(f"s_waitcnt lgkmcnt({8-k})\nv_add_lshl_u32 v{P+8+k}, v{P+8+k}, v{P+7}, 4\nv_cndmask_b32 v{P+8+k}, v{P+5}, v{P+8+k}, s[{sM[k]}:{sM[k]+1}]")
        a(f"buffer_load_dwordx4 v[{RQ+4*k}:{RQ+4*k+3}], v{P+8+k}, s[{rAUX}:{rAUX+3}], 0 offen")
    a(f"s_lshl_b32 s3, s{sW}, 10\ns_barrier")
    for j in range(6):
        a(f"v_add_u32 v{P+7}, {256*j}, v{P+3}\nv_cmp_gt_u32 vcc, s{sCNT}, v{P+7}\ns_add_u32 m0, s3, {L_EF + 8192*j}")
        a(f"s_waitcnt lgkmcnt({5-j})\nv_add_u32 v{P+12+j}, v{P+12+j}, v{P+7}\nv_lshl_add_u32 v{P+12+j}, v{P+12+j}, 5, v{P+6}\nv_cndmask_b32 v{P+12+j}, v{P+5}, v{P+12+j}, vcc")
        a(f"buffer_load_dwordx4 v{P+12+j}, s[{rEF}:{rEF+3}], 0 offen lds")
    L_DEG, L_INV = L_MISC + 256, L_MISC + 512
    a(f"v_mov_b32 v{P+5}, 1\ns_mov_b32 s3, {L_CELL}\ns_mov_b32 s{sTMP}, {L_DEG}")
    for k in range(3):
        a(f"s_waitcnt vmcnt({8-k})")
        if k == 0: stamp(a, o, 3, sST)
        if o.bal:
            a(f"v_bfe_u32 v{P+6}, v{RQ+4*k+1}, 8, 6\nv_lshl_add_u32 v{P+6}, v{P+6}, 2, s{sTMP}")
        a(f"v_and_b32 v{RQ+4*k+1}, 0xffff, v{RQ+4*k+1}\nv_add_u32 v{RQ+4*k+1}, s3, v{RQ+4*k+1}")
        a(f"s_mov_b64 exec, s[{sM[k]}:{sM[k]+1}]")
        if o.bal:
            a(f"ds_add_u32 v{P+6}, v{P+5}")
        a(f"ds_add_rtn_u32 v{P+8+k}, v{RQ+4*k+1}, v{P+5}\ns_mov_b64 exec, -1")
    CA = P + 56
    if o.bal:
        a(f"v_lshl_add_u32 v{P+6}, v11, 2, s{sTMP}\ns_mul_i32 s{sTMP}, s{sW}, 5\nv_lshl_add_u32 v{P+2}, v11, 2, s3")
        a("s_waitcnt lgkmcnt(0)\ns_barrier")
        a(f"ds_read_b32 v{P+12}, v{P+6}\ns_cmp_gt_u32 s{sTOT}, {CAP}\ns_cselect_b32 s{sBASE}, 0, -1")
        a(f"v_add_u32 v{P+13}, 1, v11\nv_cmp_gt_u32 vcc, 40, v11\nv_add_u32 v{P+14}, s{sTMP}, v11\nv_lshlrev_b32 v{P+14}, 8, v{P+14}")
        a(f"s_waitcnt lgkmcnt(0)\nv_and_b32 v{P+12}, s{sBASE}, v{P+12}\nv_lshl_add_u32 v{P+12}, v{P+12}, 6, v{P+13}\nv_cndmask_b32 v{P+12}, 0, v{P+12}, vcc")
        for j in range(5):
            a(f"s_add_u32 s{sBASE}, s{sTMP}, {j}\nv_readlane_b32 s{sN+j}, v{P+12}, s{sBASE}")
        a("s_nop 0")
        for j in range(5):
            a(f"v_cmp_lt_u32 vcc, s{sN+j}, v{P+12}\ns_bcnt1_i32_b64 s{sN+j}, vcc\nv_writelane_b32 v{P+13}, s{sN+j}, {j}")
        a(f"s_mov_b32 s{sTMP}, {L_INV}\nv_lshl_add_u32 v{P+13}, v{P+13}, 2, s{sTMP}\ns_mov_b64 exec, 31\nds_write_b32 v{P+13}, v{P+14}\ns_mov_b64 exec, -1")
        for s_ in range(5):
            a(f"s_bfe_u32 s{sBASE}, s{sRK}, {(6 << 16) | (6 * s_)}\ns_lshl_b32 s{sBASE}, s{sBASE}, 2\ns_add_u32 s{sBASE}, s{sBASE}, s{sTMP}\nv_mov_b32 v{CA+s_}, s{sBASE}")
        a("s_waitcnt lgkmcnt(0)\ns_barrier")
        for s_ in range(5):
            a(f"ds_read_b32 v{CA+s_}, v{CA+s_}")
        for s_ in range(5):
            a(f"s_waitcnt lgkmcnt(4)\nv_readfirstlane_b32 s{sN+s_}, v{CA+s_}\nv_add_u32 v{CA+s_}, v{CA+s_}, v{P+2}\nds_read_b32 v{P+12+s_}, v{CA+s_}")
    else:
        a(f"v_lshl_add_u32 v{P+2}, v11, 2, s3")
        for s_ in range(5):
            a(f"s_add_u32 s{sN+s_}, s{sW}, {8*s_}\ns_lshl_b32 s{sN+s_}, s{sN+s_}, 8\nv_add_u32 v{CA+s_}, s{sN+s_}, v{P+2}")
        a("s_waitcnt lgkmcnt(0)\ns_barrier")
        for s_ in range(5):
            a(f"ds_read_b32 v{P+12+s_}, v{CA+s_}")
    a("s_waitcnt lgkmcnt(0)")
    a(f"v_add3_u32 v{P+17}, v{P+12}, v{P+13}, v{P+14}\nv_add3_u32 v{P+17}, v{P+17}, v{P+15}, v{P+16}\nv_mov_b32 v{P+18}, v{P+17}")
    scan(a, P + 18)
    a(f"v_mov_b32 v{P+3}, {L_MISC}\nv_add_u32 v{P+19}, 48, v{P+18}\nv_readlane_b32 s{sCNT}, v{P+18}, 63")
    a(f"s_mov_b32 exec_lo, 0\ns_brev_b32 exec_hi, 1\nds_add_rtn_u32 v{P+19}, v{P+3}, v{P+19}\nds_max_u32 v{P+3}, v{P+18} offset:4\ns_mov_b64 exec, -1")
    a(f"v_sub_u32 v{P+18}, v{P+18}, v{P+17}\ns_waitcnt lgkmcnt(0)\nv_readlane_b32 s{sBASE}, v{P+19}, 63\ns_nop 1\nv_add_u32 v{P+18}, s{sBASE}, v{P+18}")
    for s in range(5):
        a(f"ds_write_b32 v{CA+s}, v{P+18}")
        if s < 4:
            a(f"s_mov_b32 s3, {8 << 16}\nv_add3_u32 v{P+18}, v{P+18}, v{P+12+s}, s3")
    a(f"s_add_u32 s3, s{sBASE}, s{sCNT}\ns_lshl_b32 s3, s3, 2\ns_add_u32 s3, s3, {L_WORD}\nv_lshl_add_u32 v{P+3}, v11, 2, s3\nv_mov_b32 v{P+4}, {0x7ffffc00 | 40}")
    a(f"s_mov_b32 exec_hi, 0xffff\nds_write_b32 v{P+3}, v{P+4}\ns_mov_b64 exec, -1")
    a(f"v_and_b32 v{P+3}, 15, v11\nv_add_u32 v{P+3}, s{sBASE}, v{P+3}\nv_lshlrev_b32 v{P+3}, 2, v{P+3}\nv_add_u32 v{vPW}, {L_WORD}, v{P+3}")
    a(f"v_bfe_u32 v{P+3}, v11, 3, 2\nv_and_b32 v{P+4}, 3, v11\nv_lshl_add_u32 v{P+3}, v{P+3}, 2, v{P+4}\nv_add_u32 v{P+3}, s{sBASE}, v{P+3}\nv_lshlrev_b32 v{P+3}, 1, v{P+3}\nv_add_u32 v{vPA}, {L_IDX}, v{P+3}")
    a(f"v_lshrrev_b32 v{P+3}, 2, v11\nv_add_u32 v{P+3}, s{sBASE}, v{P+3}\nv_lshlrev_b32 v{P+3}, 1, v{P+3}\nv_add_u32 v{vPT}, {L_IDX}, v{P+3}")
    a("s_waitcnt lgkmcnt(0)\ns_barrier")
    for k in range(3):
        a(f"ds_read_b32 v{P+12+k}, v{RQ+4*k+1}")
    a(f"s_mov_b32 s3, {L_WORD}\ns_mov_b32 s{sTMP}, {L_IDX}")
    for k in range(3):
        a(f"v_add_u32 v{P+7}, {512*k}, v0\nv_lshlrev_b32 v{P+7}, 5, v{P+7}")
        a(f"s_waitcnt lgkmcnt({2+k})")
        a(f"v_and_b32 v{P+15}, 0xffff, v{P+12+k}\nv_add_u32 v{P+15}, v{P+15}, v{P+8+k}\nv_lshrrev_b32 v{P+16}, 16, v{P+12+k}\nv_or_b32 v{P+16}, v{P+16}, v{RQ+4*k}")
        a(f"v_lshl_add_u32 v{P+17}, v{P+15}, 2, s3\nv_lshl_add_u32 v{P+15}, v{P+15}, 1, s{sTMP}")
        a(f"s_mov_b64 exec, s[{sM[k]}:{sM[k]+1}]\nds_write_b32 v{P+17}, v{P+16}\nds_write_b16 v{P+15}, v{P+7}\ns_mov_b64 exec, -1")
    a("s_waitcnt lgkmcnt(0)\ns_barrier")
    stamp(a, o, 4, sST)
    a(f"ds_read_b32 v{P+2}, v{vPW}\nds_read_b32 v{vWD[0]}, v{vPW} offset:{4*D}\nds_read_u16 v{vIA}, v{vPA}\nds_read_u16 v{vIT}, v{vPT}")
    if o.bar:
        a(f"v_mov_b32 v{P+4}, {L_MISC+4}\nds_read_b32 v{P+4}, v{P+4}")
    def xfirst(k0, k1):
        for k in range(k0, k1):
            t = sT2 + (k & 1)
            a(f"v_readlane_b32 s{t}, v{P+2}, {k}\ns_and_b32 s{t}, s{t}, 0xfffffc00")
            a(f"buffer_load_dwordx4 v[{vX+4*k}:{vX+4*k+3}], v{vLANE16}, s[{rX}:{rX+3}], s{t} offen")
    if o.xe:
        a("s_waitcnt lgkmcnt(0)")
        xfirst(0, o.xe)
    TQ = P + 32
    a(f"v_lshlrev_b32 v{P+3}, 5, v0\nv_add_u32 v{P+3}, {L_T}, v{P+3}")
    for k in range(3):
        if k == 2:
            a(f"s_cmp_eq_u64 s[{sM[2]}:{sM[2]+1}], 0\ns_cbranch_scc1 L2_not3")
        for i in range(4):
            for oo in range(4):
                a(f"v_dot2_f32_bf16 v{TQ+4*oo+i}, v{RQ+4*k+2}, s{sCG+8*i+2*oo}, 0")
        for i in range(4):
            for oo in range(4):
                a(f"v_dot2_f32_bf16 v{TQ+4*oo+i}, v{RQ+4*k+3}, s{sCG+8*i+2*oo+1}, v{TQ+4*oo+i}")
        a("s_nop 1")
        for q in range(8):
            a(f"v_cvt_pk_bf16_f32 v{TQ+16+q}, v{TQ+2*q}, v{TQ+2*q+1}")
        a(f"ds_write_b128 v{P+3}, v[{TQ+16}:{TQ+19}] offset:{16384*k}\nds_write_b128 v{P+3}, v[{TQ+20}:{TQ+23}] offset:{16384*k+16}")
    a("L2_not3:")
    a("s_waitcnt lgkmcnt(0)")
    xfirst(o.xe, D)
    for k in range(D):
        a(f"v_readlane_b32 s{sRING+k}, v{P+2}, {k}")
    if o.bar:
        a(f"v_readfirstlane_b32 s{sNB}, v{P+4}")
    a(f"v_add_u32 v{vIA}, v{vIA}, v{vLA}\nv_add_u32 v{vIT}, v{vIT}, v{vLT}")
    a(f"s_waitcnt vmcnt({D}) lgkmcnt(0)\ns_barrier")
    stamp(a, o, 5, sST)
    if o.stamps: a("s_memtime s[92:93]")
    a(f"s_cmp_eq_u32 s{sCNT}, 0\ns_cbranch_scc1 L2_exit\ns_sub_u32 s{sCNT}, s{sCNT}, 1")

    def rdA(buf):
        a(f"s_mov_b64 exec, s[{sMA}:{sMA+1}]\nds_read_b128 v[{vA1}:{vA1+3}], v{vIA} offset:{L_EF}")
        a(f"s_mov_b64 exec, s[{sMB}:{sMB+1}]\nds_read_b128 v[{vA2}:{vA2+3}], v{vIA} offset:{L_EF}\ns_mov_b64 exec, -1")
        a(f"ds_read_b64 v[{vT[buf]}:{vT[buf]+1}], v{vIT} offset:{L_T}")
    def zm(buf, q):
        if o.lo:
            par, h, lo = q >> 2, (q >> 1) & 1, q & 1
            first = (q & 3) == 0
        else:
            par, h, lo = q >> 1, q & 1, 0
            first = (q & 1) == 0
        z = vr(Z(buf, par), 16)
        w = vW + 16 * lo + 4 * (2 * par + h)
        return f"v_mfma_f32_32x32x16_bf16 {z}, {vr(vA2 if h else vA1, 4)}, {vr(w, 4)}, {'0' if first else z}"
    NZ = 8 if o.lo else 4
    def unit(u):
        u %= 32
        return Z(u >> 4, u & 1, (u & 15) & ~1)
    def ta(u): return vTA + 2 * (u & 1)
    def EXP(u, j): return f"v_exp_f32 v{ta(u)+j}, v{unit(u)+j}"
    def RCP(u, j): return f"v_rcp_f32 v{ta(u)+j}, v{ta(u)+j}"
    def PADD(u): return f"v_pk_add_f32 {vr(ta(u),2)}, {vr(ta(u),2)}, 1.0 op_sel_hi:[1,0]"
    def PMUL(u): return f"v_pk_mul_f32 {vr(unit(u),2)}, {vr(unit(u),2)}, {vr(ta(u),2)}"
    def ADD(u, j): return f"v_add_f32 v{ta(u)+j}, 1.0, v{ta(u)+j}"
    def MUL(u, j): return f"v_mul_f32 v{unit(u)+j}, v{unit(u)+j}, v{ta(u)+j}"
    rdA(0)
    a("s_waitcnt lgkmcnt(0)")
    for q in range(NZ):
        a(zm(0, q))
    a("s_nop 7\ns_nop 3")
    a(EXP(0, 0)); a(EXP(0, 1)); a(EXP(1, 0)); a(EXP(1, 1)); a(PADD(0)); a(PADD(1)); a(RCP(0, 0)); a(RCP(0, 1)); a("s_nop 0"); a(PMUL(0))
    if o.early:
        a(f"v_readlane_b32 s{sRING+D}, v{vWD[0]}, 0\ns_and_b32 s{sTMP}, s{sRING+D}, 0xfffffc00")
    if o.prio:
        a("s_setprio 3")
    zsteps = {5: 0, 7: 1, 9: 2, 11: 3} if NZ == 4 else {4 + q: q for q in range(8)}
    a("L2_loop:")
    for i in range(32):
        b, s = i >> 4, i & 15
        x = vX + 4 * (i % D)
        M0 = f"v_mfma_f32_4x4x4_16b_bf16 {vr(vDD,4)}, {vr(vT[b],2)}, {vr(x,2)}, 0 cbsz:4 abid:{s}"
        M1 = f"v_mfma_f32_4x4x4_16b_bf16 {vr(vDD+4,4)}, {vr(vT[b],2)}, {vr(x+2,2)}, 0 cbsz:4 abid:{s}"
        if o.early:
            ring = sRING + (i + 1 + D) % 32
            RL = f"v_readlane_b32 s{ring}, v{vWD[((i + 1) >> 4) & 1]}, {(i + 1) & 15}"
        else:
            ring = sRING + (i + D) % 32
            RL = f"v_readlane_b32 s{ring}, v{vWD[b]}, {s}"
        AND = f"s_and_b32 s{sTMP}, s{ring}, 0xfffffc00"
        if o.dbgx == "oob": AND = f"s_or_b32 s{sTMP}, s{ring}, 0x40000000"
        if o.dbgx == "l1": AND = f"s_and_b32 s{sTMP}, s{ring}, 0x3c00"
        if o.dbgx == "l2": AND = f"s_and_b32 s{sTMP}, s{ring}, 0x1ffc00"
        LD = f"buffer_load_dwordx4 {vr(x,4)}, v{vLANE16}, s[{rX}:{rX+3}], s{sTMP} offen"
        WT = f"s_waitcnt vmcnt({D-1})"
        sel = "op_sel_hi:[0,1,1]" if s % 2 == 0 else "op_sel:[1,0,0]"
        FM = [f"v_pk_fma_f32 {vr(vACC+2*q,2)}, {vr(Z(b, q >> 1, s & ~1),2)}, {vr(vDD+2*q,2)}, {vr(vACC+2*q,2)} {sel}" for q in range(4)]
        ON = f"s_set_gpr_idx_on s{sRING + i}, gpr_idx(SRC2,DST)"
        OFF = "s_set_gpr_idx_off"
        if o.prio > 1 and i % o.prio == 0:
            a(f"s_setprio {3 - (i // o.prio) % 4}")
        if s == 0:
            a(f"ds_read_u16 v{vIA}, v{vPA} offset:{32*(b+1)}\nds_read_u16 v{vIT}, v{vPT} offset:{32*(b+1)}")
            a(f"ds_read_b32 v{vWD[1-b]}, v{vPW} offset:{4*D + 64*(b+1)}")
        if s == 2:
            a(f"s_waitcnt lgkmcnt(0)\nv_add_u32 v{vIA}, v{vIA}, v{vLA}\nv_add_u32 v{vIT}, v{vIT}, v{vLT}")
            rdA(1 - b)
        if s == min(zsteps):
            a("s_waitcnt lgkmcnt(0)")
        isz = s in zsteps and 'Z' not in o.abl
        ZM = zm(1 - b, zsteps[s]) if isz else None
        E0, E1, R0, R1 = EXP(i+2, 0), EXP(i+2, 1), RCP(i+1, 0), RCP(i+1, 1)
        PA_, PM_ = PADD(i+2), PMUL(i+1)
        A0, A1_, U0, U1 = ADD(i+2, 0), ADD(i+2, 1), MUL(i+1, 0), MUL(i+1, 1)
        if o.early == 0:
            if isz: seq = [ZM, E0, E1, R0, R1, WT, M0, RL, M1, AND, A0, LD, A1_, U0, U1, ON] + FM + [OFF]
            else: seq = [E0, WT, M0, E1, M1, RL, R0, AND, R1, LD, PA_, PM_, ON] + FM + [OFF]
        elif o.early == 1:
            if isz: seq = [WT, ZM, E0, E1, R0, R1, M0, RL, M1, A0, A1_, U0, LD, U1, ON] + FM + [OFF, AND]
            else: seq = [E0, WT, M0, E1, M1, RL, R0, LD, R1, PA_, PM_, ON] + FM + [OFF, AND]
        elif o.early == 2:
            if isz: seq = [WT, ZM, E0, E1, R0, R1, M0, A0, M1, A1_, U0, U1, RL, LD, ON] + FM + [OFF, AND]
            else: seq = [WT, M0, E0, M1, E1, R0, LD, R1, RL, PA_, PM_, ON] + FM + [OFF, AND]
        elif o.early == 3:
            if isz: seq = [WT, M0, RL, M1, ZM, E0, E1, R0, R1, LD, PA_, PM_, ON] + FM + [OFF, AND]
            else: seq = [E0, WT, M0, E1, M1, RL, R0, LD, R1, PA_, PM_, ON] + FM + [OFF, AND]
        drop = []
        if "L" in o.abl: drop += [LD]
        if "W" in o.abl: drop += [WT]
        if "R" in o.abl: drop += [RL, AND]
        if "I" in o.abl: drop += [ON, OFF]
        if "M" in o.abl: drop += [M0, M1]
        if "F" in o.abl: drop += FM
        if "E" in o.abl: drop += [E0, E1]
        if "C" in o.abl: drop += [R0, R1]
        if "P" in o.abl: drop += [PA_, PM_]
        for q in seq:
            if q not in drop:
                a(q)
        if (i + 1) % G == 0:
            a(f"s_sub_u32 s{sCNT}, s{sCNT}, {G}\ns_cbranch_scc1 L2_exit")
        if o.bar and (i + 1) % o.bar == 0:
            a(f"s_sub_u32 s{sNB}, s{sNB}, {o.bar}\ns_barrier")
    a(f"v_add_u32 v{vPW}, 128, v{vPW}\nv_add_u32 v{vPA}, 64, v{vPA}\nv_add_u32 v{vPT}, 64, v{vPT}")
    if o.prio == 1:
        a(f"s_cmp_lt_u32 s{sCNT}, 112\ns_cbranch_scc0 L2_loop\ns_setprio 2\ns_cmp_lt_u32 s{sCNT}, 80\ns_cbranch_scc0 L2_loop\ns_setprio 1\ns_cmp_lt_u32 s{sCNT}, 48\ns_cbranch_scc0 L2_loop\ns_setprio 0")
    a("s_branch L2_loop")
    a("L2_exit:")
    if o.bar:
        a(f"L2_xb:\ns_cmp_gt_u32 s{sNB}, {o.bar}\ns_cbranch_scc0 L2_xbd\ns_sub_u32 s{sNB}, s{sNB}, {o.bar}\ns_barrier\ns_branch L2_xb\nL2_xbd:")
    a(f"s_add_u32 s{sR0}, s{sR0}, {CAP}\ns_cmp_lt_u32 s{sR0}, s{sTOT}\ns_cbranch_scc1 L2_round")
    stamp(a, o, 6, sST)
    if o.stamps: a("s_memtime s[94:95]")
    vB = vZ
    Q = vZ + 32
    a(f"s_and_b32 s3, s{sW}, 3\ns_lshl_b32 s{sTMP}, s3, 13\ns_add_u32 s{sTMP}, s{sTMP}, {WS_MIX}\ns_waitcnt lgkmcnt(0)\ns_nop 7\ns_nop 3")
    a(f"v_add_u32 v{Q}, s{sTMP}, v{vLANE16}\nv_add_u32 v{Q+1}, 4096, v{Q}")
    for f in range(8):
        a(f"global_load_dwordx4 {vr(vB+4*f,4)}, v{Q + (f >> 2)}, s[{sWS}:{sWS+1}] offset:{1024*(f & 3)}")
    a(f"s_mov_b32 s{sT2}, 0xbf317218\ns_mov_b32 s{sT2+1}, 0xbf317218")
    a(f"v_lshlrev_b32 v{Q+2}, 2, v11\nv_add_u32 v{Q+2}, {L_AGG}, v{Q+2}")
    for s in range(5):
        c = vACC + 8 * s
        a(f"s_lshr_b32 s{sTMP}, s{sN+s}, 6\ns_mul_i32 s{sTMP}, s{sTMP}, {AGS}\nv_add_u32 v{Q+8+s}, s{sTMP}, v{Q+2}")
        for q in range(4):
            a(f"v_pk_mul_f32 {vr(c+2*q,2)}, {vr(c+2*q,2)}, s[{sT2}:{sT2+1}]")
        for oo in range(4):
            a(f"v_cvt_pk_bf16_f32 v{c+oo}, v{c+oo}, v{c+4+oo}")
        for oo in range(4):
            a(f"ds_write_b32 v{Q+8+s}, v{c+oo} offset:{oo*AGS}")
    a(f"s_lshr_b32 s{sT2}, s{sW}, 2\ns_mul_i32 s{sTMP}, s{sT2}, {80*AGS}\ns_add_u32 s{sTMP}, s{sTMP}, {L_AGG}")
    a(f"v_and_b32 v{Q+3}, 15, v11\nv_lshrrev_b32 v{Q+4}, 4, v11\nv_mul_u32_u24 v{Q+5}, {AGS}, v{Q+3}\nv_lshl_add_u32 v{Q+5}, v{Q+4}, 4, v{Q+5}\nv_add_u32 v{Q+5}, s{sTMP}, v{Q+5}")
    a(f"s_mul_i32 s{sT2}, s{sT2}, {20*256}\ns_add_u32 s{sT2}, s{sT2}, s2\ns_lshl_b32 s{sT2}, s{sT2}, 10\ns_lshl_b32 s3, s3, 8\ns_add_u32 s{sT2}, s{sT2}, s3")
    a(f"v_lshlrev_b32 v{Q+4}, 18, v{Q+4}\nv_lshl_add_u32 v{Q+4}, v{Q+3}, 4, v{Q+4}\nv_add_u32 v{Q+4}, s{sT2}, v{Q+4}")
    a("s_waitcnt lgkmcnt(0)\ns_barrier")
    stamp(a, o, 7, sST)
    AF = vACC
    DF = vACC + 32
    def rdtile(k):
        for ks in range(4):
            a(f"ds_read_b128 {vr(AF+16*(k&1)+4*ks,4)}, v{Q+5} offset:{16*k*AGS + 64*ks}")
    rdtile(0)
    a("s_waitcnt vmcnt(0)")
    for k in range(5):
        if k < 4:
            rdtile(k + 1)
        d = DF + 8 * (k & 1)
        for ks in range(4):
            a(f"s_waitcnt lgkmcnt({(4 if k < 4 else 0) + 3 - ks})")
            for par in range(2):
                a(f"v_mfma_f32_16x16x32_bf16 {vr(d+4*par,4)}, {vr(AF+16*(k&1)+4*ks,4)}, {vr(vB+8*ks+4*par,4)}, {'0' if ks == 0 else vr(d+4*par,4)}")
        def fin(kk):
            dd = DF + 8 * (kk & 1)
            t = Q + 8 + 4 * (kk & 1)
            for q in range(4):
                a(f"v_cvt_pk_bf16_f32 v{t+q}, v{dd+2*q}, v{dd+2*q+1}")
            a(f"s_mov_b32 s3, {kk << 20}\nbuffer_store_dwordx4 {vr(t,4)}, v{Q+4}, s[{rOUT}:{rOUT+3}], s3 offen {o.st2}")
        if k > 0:
            fin(k - 1)
        if k == 4:
            a("s_nop 3")
            fin(4)
    stamp(a, o, 8, sST)
    if o.stamps:
        a("s_waitcnt vmcnt(0)")
    stamp(a, o, 9, sST)
    stamp_out(a, o, 12, sST, sWS, sW, 1, Q)
    a("L2_end:\ns_endpgm")
    return a.text(), NV, 102, LDS

def k3(o):
    kb, jb, op = o.probe.split(",")
    kb, jb = int(kb), int(jb)
    nw = {0: getattr(o, 'nw0', 10), 1: 8}
    a = A()
    a("s_cmp_ge_u32 s2, 1\ns_cbranch_scc1 L3_end\ns_load_dwordx2 s[4:5], s[0:1], 80\ns_memrealtime s[10:11]")
    a("v_mov_b32 v2, -1\nv_mov_b32 v3, 0\nv_mov_b32 v8, -1\nv_mov_b32 v9, 0\ns_waitcnt lgkmcnt(0)")
    for q in range(4):
        for w in range(nw[0]):
            a(f"v_lshlrev_b32 v1, 12, v0\nv_add_u32 v1, {WS_STAMP + (q*16 + w)*64}, v1\nglobal_load_dword v4, v1, s[4:5]\ns_waitcnt vmcnt(0)\nv_sub_u32 v4, s10, v4\nv_max_u32 v3, v3, v4")
        for w in range(nw[kb]):
            a(f"v_lshlrev_b32 v1, 12, v0\nv_add_u32 v1, {WS_STAMP + kb*(1<<20) + (q*16 + w)*64 + 4*jb}, v1\nglobal_load_dword v4, v1, s[4:5]\ns_waitcnt vmcnt(0)\nv_sub_u32 v4, s10, v4")
            a({"max": "v_min_u32 v8, v8, v4", "min": "v_max_u32 v9, v9, v4", "avg": "v_add_u32 v9, v9, v4"}[op])
    a("s_mov_b32 s12, 0\ns_mov_b32 s13, " + ("-1" if op == "max" else "0") + "\ns_nop 1")
    for l in range(64):
        a(f"v_readlane_b32 s14, v3, {l}\nv_readlane_b32 s15, v{8 if op == 'max' else 9}, {l}\ns_nop 1\ns_max_u32 s12, s12, s14")
        a({"max": "s_min_u32 s13, s13, s15", "min": "s_max_u32 s13, s13, s15", "avg": "s_add_u32 s13, s13, s15"}[op])
    if op == "avg":
        a(f"s_mul_i32 s13, s13, 10\ns_mul_hi_u32 s13, s13, {(1 << 32) // (256 * nw[kb])}\ns_mul_i32 s12, s12, 10\ns_sub_u32 s12, s12, s13")
    else:
        a("s_sub_u32 s12, s12, s13\ns_mul_i32 s12, s12, 10")
    a("s_min_u32 s12, s12, 100000\ns_add_u32 s12, s12, 10000")
    a("L3_spin:\ns_memrealtime s[16:17]\ns_waitcnt lgkmcnt(0)\ns_sub_u32 s16, s16, s10\ns_cmp_lt_u32 s16, s12\ns_cbranch_scc1 L3_spin")
    a("L3_end:\ns_endpgm")
    return a.text(), 16, 32

KD = """.section .rodata,"a"
.p2align 6
.amdhsa_kernel {name}
  .amdhsa_next_free_vgpr {v}
  .amdhsa_next_free_sgpr {s}
  .amdhsa_accum_offset {acc}
  .amdhsa_group_segment_fixed_size 0
  .amdhsa_kernarg_size 88
  .amdhsa_user_sgpr_count 2
  .amdhsa_user_sgpr_kernarg_segment_ptr 1
  .amdhsa_system_sgpr_workgroup_id_x 1
  .amdhsa_float_denorm_mode_32 3
.end_amdhsa_kernel
"""

def build(o):
    ref = open("cdna_kernels/" + NAME + ".s.ref").read().split("\n")
    head = [l for l in ref if l.startswith(";") and "@launch" not in l and "Override" not in l and "grid=ceil" not in l]
    t1, v1, s1 = k1(o)
    t2, v2, s2, lds2 = k2(o)
    out = "\n".join(head) + "\n"
    for _ in range(o.empty):
        out += f"; @launch kernel=tfn_nop_kernel grid=(256,1,1) block=(64,1,1) lds=0\n"
    out += f"; @launch kernel=tfn_bin_kernel grid=(256,1,1) block=(640,1,1) lds=83968\n"
    out += f"; @launch kernel={NAME}_kernel grid=(256,1,1) block=(512,1,1) lds={lds2}\n"
    if o.probe:
        out += f"; @launch kernel=tfn_probe_kernel grid=(1,1,1) block=(64,1,1) lds=0\n"
    out += "; generated by gen/gen.py\n"
    out += '.amdgcn_target "amdgcn-amd-amdhsa--gfx950"\n.text\n'
    ks = [("tfn_bin_kernel", t1, v1, s1), (NAME + "_kernel", t2, v2, s2)]
    if o.probe:
        ks.append(("tfn_probe_kernel",) + k3(o))
    if o.empty:
        ks.append(("tfn_nop_kernel", "    s_endpgm\n", 8, 16))
    for nm, t, v, s in ks:
        out += f".globl {nm}\n.p2align 8\n.type {nm},@function\n{nm}:\n" + t
    for nm, t, v, s in ks:
        out += KD.format(name=nm, v=v, s=s, acc=(v + 3) // 4 * 4)
    return out

def parser():
    p = argparse.ArgumentParser()
    p.add_argument("-o", default="cdna_kernels/" + NAME + ".s")
    p.add_argument("--D", type=int, default=16)
    p.add_argument("--G", type=int, default=4)
    p.add_argument("--lo", type=int, default=1)
    p.add_argument("--prio", type=int, default=0)
    p.add_argument("--pf1", type=int, default=0)
    p.add_argument("--pf2", type=int, default=0)
    p.add_argument("--st1", default="sc0 sc1")
    p.add_argument("--st2", default="sc0 sc1")
    p.add_argument("--empty", type=int, default=0)
    p.add_argument("--probe", default="")
    p.add_argument("--bal", type=int, default=1)
    p.add_argument("--bar", type=int, default=0)
    p.add_argument("--xe", type=int, default=0)
    p.add_argument("--dbgx", default="")
    p.add_argument("--abl", default="")
    p.add_argument("--early", type=int, default=0)
    p.add_argument("--rot", type=int, default=0)
    p.add_argument("--win", type=int, default=0)
    p.add_argument("--stamps", type=int, default=0)
    return p

if __name__ == "__main__":
    o = parser().parse_args()
    open(o.o, "w").write(build(o))
```

```python
import sys, argparse
from gen import A, vr, srd, stamp, stamp_out, k3, KD, NAME, N, E, CH, CS, WS_STAMP

WS_TABLE = 0
WS_WFRAG = 0x40000
WS_MIX   = WS_WFRAG + 4096
WS_CG    = WS_MIX + 32768
WS_AUX   = 0x100000
WS_EF    = 0x800000
AUX_BYTES = 256 * CS * 16
EF_BYTES = 256 * CS * 32

CAP = 1536
PADN = 60
NWIN = 12
NL = CAP + 8 * PADN
L_LIST = 0
L_AGG = NL * 8
L_CELL = L_AGG
L_DEG = L_CELL + 2816
L_INV = L_DEG + 256
L_CNT = L_INV + 256
L_REC = L_CELL + 4096
L_WB = L_REC + CAP * 4
L_EF = L_WB + 36864
L_T = L_EF + 8192
LDS2 = L_T + NL * 32
AGS = 288
assert L_AGG + 160 * AGS <= L_EF and LDS2 <= 163840

def scan(a, v, fill=()):
    fill = list(fill)
    for m in ("row_shr:1 row_mask:0xf", "row_shr:2 row_mask:0xf", "row_shr:4 row_mask:0xf", "row_shr:8 row_mask:0xf",
              "row_bcast:15 row_mask:0xa", "row_bcast:31 row_mask:0xc"):
        g = fill.pop(0) if fill else []
        for x in g:
            a(x)
        if len(g) < 2:
            a(f"s_nop {1 - len(g)}")
        a(f"v_add_u32_dpp v{v}, v{v}, v{v} {m} bank_mask:0xf")
    assert not fill

def k1(o):
    a = A()
    L_AUX, L_HIST, L_BASE = 0, 20480, 21504
    sX, sSRC, sDST, sY, sEF, sWR, sCG, sWM = 4, 6, 8, 10, 12, 14, 16, 18
    sWS, sW, rEF, sST = 20, 22, 24, 60
    a("s_load_dwordx16 s[4:19], s[0:1], 0\ns_load_dwordx2 s[20:21], s[0:1], 80")
    stamp(a, o, 0, sST)
    a("s_cmp_ge_u32 s2, 256\ns_cbranch_scc1 L1_end")
    a(f"s_mul_i32 s34, s2, {CH*4}\nv_lshl_add_u32 v4, v0, 3, s34\nv_lshlrev_b32 v5, 1, v4")
    a(f"v_cmp_gt_u32 vcc, {CH//2}, v0\ns_mov_b64 s[40:41], vcc\ns_mov_b64 exec, vcc")
    a("s_waitcnt lgkmcnt(0)")
    if o.wsoff: a(f"s_add_u32 s20, s20, {o.wsoff << 20}\ns_addc_u32 s21, s21, 0")
    a(f"global_load_dwordx2 v[8:9], v4, s[{sDST}:{sDST+1}]")
    def keys2():
        a(f"global_load_dwordx2 v[10:11], v4, s[{sSRC}:{sSRC+1}]")
        a(f"global_load_dwordx4 v[12:15], v5, s[{sY}:{sY+1}]")
    if not o.dfirst:
        keys2()
    a("s_mov_b64 exec, -1")
    a("v_lshrrev_b32 v1, 6, v0\nv_and_b32 v2, 255, v0\nv_lshlrev_b32 v2, 2, v2\nv_mov_b32 v3, 0")
    a(f"v_readfirstlane_b32 s{sW}, v1\nds_write_b32 v2, v3 offset:{L_HIST}")
    a("s_mov_b64 exec, s[40:41]\ns_waitcnt lgkmcnt(0)\ns_barrier")
    if o.dfirst:
        keys2()
    a("s_mov_b64 exec, -1")
    a(f"v_lshlrev_b32 v6, 4, v0\nv_and_b32 v30, 63, v0")
    a("s_mov_b32 s39, 0\nv_mov_b32 v40, 0\ns_lshl_b32 s3, s2, 6\nv_add_u32 v31, s3, v30")
    a(f"s_mov_b64 s[42:43], s[{sWM}:{sWM+1}]\nv_mov_b32 v32, 0")
    a(f"s_cmp_eq_u32 s{sW}, 4\ns_cbranch_scc0 L1_nomix")
    a("v_bfe_u32 v32, v31, 10, 2\nv_lshlrev_b32 v32, 5, v32\nv_bfe_u32 v33, v31, 7, 2\nv_lshl_add_u32 v32, v33, 3, v32\nv_and_b32 v33, 7, v31\nv_add_u32 v32, v32, v33")
    a("v_bfe_u32 v33, v31, 12, 2\nv_lshlrev_b32 v33, 5, v33\nv_bfe_u32 v34, v31, 3, 4\nv_lshl_add_u32 v33, v34, 1, v33\nv_bfe_u32 v34, v31, 9, 1\nv_add_u32 v33, v33, v34")
    a("v_lshl_add_u32 v32, v32, 7, v33")
    a(f"v_lshlrev_b32 v40, 1, v31\nv_add_u32 v40, {WS_MIX}, v40\ns_mov_b32 s39, 1")
    a("L1_nomix:")
    a(f"s_cmp_eq_u32 s{sW}, 5\ns_cbranch_scc0 L1_now\ns_cmp_lt_u32 s2, 33\ns_cbranch_scc0 L1_now\ns_cmp_eq_u32 s2, 32\ns_cbranch_scc1 L1_cg")
    a("v_bfe_u32 v32, v31, 8, 1\nv_and_b32 v33, 7, v31\nv_lshl_add_u32 v32, v32, 3, v33")
    a("v_bfe_u32 v33, v31, 9, 1\nv_bfe_u32 v34, v31, 3, 5\nv_lshl_add_u32 v33, v33, 5, v34\nv_bfe_u32 v34, v31, 10, 1\nv_lshl_add_u32 v33, v33, 1, v34")
    a("v_lshl_add_u32 v32, v32, 7, v33")
    a(f"v_lshlrev_b32 v40, 1, v31\nv_add_u32 v40, {WS_WFRAG}, v40\ns_mov_b32 s39, 2\ns_mov_b64 s[42:43], s[{sWR}:{sWR+1}]\ns_branch L1_now")
    a("L1_cg:")
    a("v_and_b32 v32, 15, v30\nv_lshrrev_b32 v33, 4, v30\nv_lshl_add_u32 v32, v32, 2, v33")
    a(f"v_lshlrev_b32 v40, 1, v30\nv_add_u32 v40, {WS_CG}, v40\ns_mov_b32 s39, 1\ns_mov_b64 s[42:43], s[{sCG}:{sCG+1}]")
    a("L1_now:")
    a("v_lshlrev_b32 v32, 1, v32\nglobal_load_ushort v41, v32, s[42:43]")
    ncode = 0
    a(f"v_mov_b32 v3, 1\ns_mov_b64 exec, s[40:41]\ns_waitcnt vmcnt(3)")
    stamp(a, o, 1, sST)
    for j in range(2):
        d = 8 + j
        a(f"v_and_b32 v{16+j}, 7, v{d}\nv_bfe_u32 v{18+j}, v{d}, 3, 5\nv_lshl_add_u32 v{16+j}, v{16+j}, 5, v{18+j}\nv_lshlrev_b32 v{16+j}, 2, v{16+j}")
        a(f"ds_add_rtn_u32 v{18+j}, v{16+j}, v3 offset:{L_HIST}")
    a("s_mov_b64 exec, -1\nv_lshlrev_b32 v31, 4, v30")
    a("s_waitcnt lgkmcnt(0)\ns_barrier")
    a(f"ds_read_b128 v[32:35], v31 offset:{L_HIST}")
    a(f"s_mul_i32 s35, s2, {CH << 12}\nv_lshl_add_u32 v2, v0, 13, s35\nv_add_u32 v3, 0x1000, v2\ns_waitcnt vmcnt(1)")
    fill = []
    for j in range(2):
        r = 20 + 4 * j
        fill += [f"v_lshrrev_b32 v{8+j}, 8, v{8+j}", f"v_mul_u32_u24 v{r+2}, {(NWIN << 17) // N}, v{10+j}",
                 f"v_lshl_add_u32 v{r}, v{10+j}, 8, v{8+j}", f"v_lshrrev_b32 v{r+2}, 17, v{r+2}",
                 f"v_lshlrev_b32 v{r}, 2, v{r}", f"v_lshl_add_u32 v{r+1}, v{8+j}, 4, v{r+2}",
                 f"v_lshl_add_u32 v{r+1}, v{r+1}, 2, v{2+j}", f"v_mov_b64 v[{r+2}:{r+3}], v[{12+2*j}:{13+2*j}]"]
    for x in fill[:4]:
        a(x)
    a("s_waitcnt lgkmcnt(0)")
    a("v_add_u32 v36, v32, v33\nv_add3_u32 v36, v36, v34, v35\nv_mov_b32 v37, v36")
    scan(a, 37, [fill[4 + 2*i: 6 + 2*i] for i in range(6)])
    a("v_sub_u32 v48, v37, v36\nv_add_u32 v49, v48, v32\nv_add_u32 v50, v49, v33\nv_add_u32 v51, v50, v34")
    a(f"ds_write_b128 v31, v[48:51] offset:{L_BASE}")
    a("s_mov_b64 exec, s[40:41]")
    a(f"ds_read_b32 v28, v16 offset:{L_BASE}\nds_read_b32 v29, v17 offset:{L_BASE}")
    a("s_waitcnt lgkmcnt(1)\nv_add_lshl_u32 v38, v28, v18, 4")
    a(f"ds_write_b128 v38, v[20:23] offset:{L_AUX}")
    a("s_waitcnt lgkmcnt(1)\nv_add_lshl_u32 v39, v29, v19, 4")
    a(f"ds_write_b128 v39, v[24:27] offset:{L_AUX}")
    a("s_mov_b64 exec, -1")
    a(f"v_mov_b32 v46, 0\ns_cmp_lt_u32 s{sW}, 4\ns_cbranch_scc0 L1_notab")
    a(f"s_set_gpr_idx_on s{sW}, gpr_idx(SRC0)\nv_mov_b32 v44, v32\nv_mov_b32 v52, v48\ns_set_gpr_idx_off")
    a(f"s_mul_i32 s3, s2, {CS}\nv_add_u32 v52, s3, v52\nv_lshl_add_u32 v47, v44, 19, v52")
    a(f"v_lshl_add_u32 v46, v30, 2, s{sW}")
    a("v_and_b32 v53, 31, v46\nv_lshrrev_b32 v46, 5, v46\nv_lshl_add_u32 v46, v53, 3, v46")
    a("s_and_b32 s3, s2, 7\ns_lshl_b32 s3, s3, 5\ns_lshr_b32 s38, s2, 3\ns_add_u32 s3, s3, s38\ns_lshl_b32 s3, s3, 2")
    a(f"v_lshl_add_u32 v46, v46, 10, s3")
    TST = f"global_store_dword v46, v47, s[{sWS}:{sWS+1}]"
    if o.tabpos == 4:
        a(f"s_lshl_b32 s3, s2, 10\nv_lshl_add_u32 v46, v30, 2, s{sW}\nv_lshl_add_u32 v46, v46, 2, s3")
    if o.tabpos in (0, 4): a(TST)
    a("L1_notab:")
    a(f"s_mul_i32 s3, s2, {CS*16}\ns_add_u32 s38, s3, {WS_AUX}\nv_add_u32 v4, s38, v6\nv_add_u32 v5, 10240, v4")
    a("s_waitcnt lgkmcnt(0)\ns_barrier")
    stamp(a, o, 2, sST)
    a(f"ds_read_b128 v[8:11], v6 offset:{L_AUX}\nds_read_b128 v[12:15], v6 offset:{L_AUX + 10240}")
    a("s_waitcnt lgkmcnt(1)")
    a(f"global_store_dwordx4 v4, v[8:11], s[{sWS}:{sWS+1}] {o.st1}")
    a("s_waitcnt lgkmcnt(0)")
    a(f"global_store_dwordx4 v5, v[12:15], s[{sWS}:{sWS+1}] {o.st1}")
    stamp(a, o, 3, sST)
    if o.cpf:
        a(f"s_cmp_lt_u32 s{sW}, 2\ns_cbranch_scc0 L1_nocpf\ns_cmp_lt_u32 s2, 16\ns_cbranch_scc0 L1_nocpf")
        a(f"s_getpc_b64 s[44:45]\nL1_pc:\ns_add_u32 s44, s44, {NAME}_kernel-L1_pc\ns_addc_u32 s45, s45, 0")
        a(f"v_min_u32 v50, {o.cpf - 1}, v0\nv_lshlrev_b32 v50, 7, v50\nv_mov_b32 v49, s45\nv_add_co_u32 v48, vcc, s44, v50\ns_nop 1\nv_addc_co_u32 v49, vcc, 0, v49, vcc")
        a("global_load_dword v45, v[48:49], off\nL1_nocpf:")
    if o.tabpos == 2:
        a(f"s_cmp_lt_u32 s{sW}, 4\ns_cbranch_scc0 L1_notab3\n{TST}\nL1_notab3:")
    a("s_cmp_eq_u32 s39, 0\ns_cbranch_scc1 L1_nost\ns_waitcnt vmcnt(2)\ns_cmp_eq_u32 s39, 1\ns_cbranch_scc1 L1_st1")
    a("v_lshlrev_b32 v42, 16, v41\nv_mul_f32 v42, 0xbfb8aa3b, v42\nv_cvt_pk_bf16_f32 v41, v42, v42")
    a(f"L1_st1:\nglobal_store_short v40, v41, s[{sWS}:{sWS+1}]\nL1_nost:")
    if o.pf1:
        per = o.pf1 * 8 // 32
        assert per <= 640
        srd(a, rEF, sX, N * 1024)
        a(f"s_lshr_b32 s3, s2, 3\ns_mul_i32 s3, s3, {per*128}\nv_min_u32 v2, {per-1}, v0\nv_lshlrev_b32 v2, 7, v2")
        a(f"s_cmp_lt_u32 s{sW}, {(per + 63) // 64}\ns_cbranch_scc0 L1_nopf\nbuffer_load_dword v3, v2, s[{rEF}:{rEF+3}], s3 offen\nL1_nopf:")
    stamp(a, o, 4, sST)
    if o.stamps == 1:
        a("s_waitcnt vmcnt(0)")
    stamp(a, o, 5, sST)
    stamp_out(a, o, 6, sST, sWS, sW, 0, 50)
    a("L1_end:\ns_endpgm")
    return a.text(), 56, 80

R39 = [[0, 3, 9, 16, 39], [1, 17, 24, 30, 36], [2, 12, 23, 25, 38], [4, 11, 18, 29, 37], [5, 15, 19, 27, 35], [6, 10, 22, 31, 33], [7, 13, 21, 26, 34], [8, 14, 20, 28, 32]]
R40 = [[0, 8, 21, 35, 39], [1, 15, 20, 24, 38], [2, 13, 19, 26, 37], [3, 9, 18, 30, 36], [4, 12, 17, 29, 34], [5, 11, 23, 25, 33], [6, 14, 16, 28, 32], [7, 10, 22, 27, 31]]

def k2(o):
    a = A()
    D, G = o.D, o.G
    sX, sOUT, sWS = 4, 6, 8
    rX, rAUX, rEF, rOUT = 12, 16, 20, 24
    sW, sTOT, sR0, sCNT, sBASE, sTMP = 10, 11, 28, 29, 30, 31
    sMA, sMB = 32, 34
    sRING = 36
    S = sRING
    sM = [S + 20, S + 22, S + 24]
    rWB = S + 28
    sT2 = 68
    sST = 72
    sN = 96
    sPAR = 101
    vLANE16, vAD, vH, vPW, vPE, vPT = 1, 2, 3, 4, 5, 6
    vWD = [7, 8]
    vEO, vL = 9, 11
    vTA = 12
    vDD = 16
    vA1, vA2 = 24, 28
    vT = [32, 34]
    vW = 36
    vB = 52
    vACC = 84
    vZ = vACC + 48
    vX = vZ + 64
    NV = vX + 4 * D
    assert NV <= 256
    P = vZ
    def Z(buf, par, s=0): return vZ + 32 * buf + 16 * par + s
    C = P
    RK = P + 3
    vCG = P + 6
    TB = P + 8
    RQ = P + 8
    TQ = P + 20
    TP = P + 36
    vRA = P + 60
    U = vTA
    sEM = 0

    a("s_load_dwordx2 s[8:9], s[0:1], 80\ns_load_dwordx2 s[4:5], s[0:1], 0\ns_load_dwordx2 s[6:7], s[0:1], 64\ns_load_dwordx2 s[20:21], s[0:1], 32")
    stamp(a, o, 0, sST)
    a("s_cmp_ge_u32 s2, 256\ns_cbranch_scc1 L2_end")
    a(f"v_and_b32 v{vL}, 63, v0\ns_lshl_b32 s3, s2, 10\nv_lshlrev_b32 v{vLANE16}, 4, v{vL}\nv_lshrrev_b32 v{U}, 6, v0\nv_add_u32 v{U+1}, s3, v{vLANE16}")
    a(f"v_readfirstlane_b32 s{sW}, v{U}\ns_mov_b32 s{sR0}, 0")
    a("s_waitcnt lgkmcnt(0)")
    if o.wsoff: a(f"s_add_u32 s8, s8, {o.wsoff << 20}\ns_addc_u32 s9, s9, 0")
    if o.k2off:
        for k in range(1, 12): a(f"s_mov_b32 s{sST+2*k}, s{sST}")
        a("s_branch L2_fin")
    a("L2_round:")
    a(f"global_load_dwordx4 v[{TB}:{TB+3}], v{U+1}, s[{sWS}:{sWS+1}]")
    a(f"v_lshlrev_b32 v{vRA}, 2, v0\nv_lshlrev_b32 v{U+2}, 3, v0\nv_mov_b32 v{U+4}, 0\nv_mov_b32 v{U+5}, 0\nv_mov_b32 v{U+3}, 0x03000000")
    a(f"ds_write_b64 v{U+2}, v[{U+4}:{U+5}] offset:{L_CELL}")
    for k in range(3):
        a(f"ds_write_b32 v{vRA}, v{U+3} offset:{L_REC + 2048*k}")
    a(f"v_lshlrev_b32 v{C}, 4, v0\ns_lshl_b32 s{sBASE}, s{sW}, 10")
    srd(a, rWB, sWS, 36864 + 128, WS_WFRAG)
    a("s_waitcnt lgkmcnt(0)\ns_barrier")
    def wbdma(j):
        a(f"s_add_u32 m0, s{sBASE}, {L_WB + 8192*j}\ns_mov_b32 s3, {8192*j}\nbuffer_load_dwordx4 v{C}, s[{rWB}:{rWB+3}], s3 offen lds")
    for j in range(4):
        wbdma(j)
    a(f"v_and_b32 v{U+2}, 15, v{vL}\nv_lshlrev_b32 v{U+2}, 3, v{U+2}\ns_mov_b32 s3, 36864\nbuffer_load_dwordx2 v[{vCG}:{vCG+1}], v{U+2}, s[{rWB}:{rWB+3}], s3 offen")
    for j in range(1, 3):
        a(f"v_add_u32 v{C+j}, {8192*j}, v{C}")
    srd(a, rAUX, sWS, AUX_BYTES, WS_AUX)
    a(f"s_and_b32 s{sTMP}, s{sW}, 3\ns_lshr_b32 s{sPAR}, s{sW}, 2\nv_mov_b32 v{TB+8}, 0")
    a("s_waitcnt vmcnt(5)")
    stamp(a, o, 1, sST)
    for j in range(4):
        a(f"v_lshrrev_b32 v{TB+4+j}, 19, v{TB+j}")
    a(f"v_add_u32 v{TB+10}, v{TB+4}, v{TB+5}\nv_add3_u32 v{U}, v{TB+10}, v{TB+6}, v{TB+7}")
    scan(a, U, [[f"v_add_u32 v{U+1}, s{sR0}, v{U}", f"v_mov_b32 v{TB+9}, v{TB+4}"],
                [f"v_add_u32 v{TB+11}, v{TB+10}, v{TB+6}", f"s_set_gpr_idx_on s{sTMP}, gpr_idx(SRC0)", f"v_mov_b32 v{U+2}, v{TB}", f"v_mov_b32 v{U+3}, v{TB+4}", f"v_mov_b32 v{U+4}, v{TB+8}", "s_set_gpr_idx_off"],
                [f"v_and_b32 v{U+2}, 0x7ffff, v{U+2}", f"v_sub_u32 v{U+4}, v{U+4}, v{U+1}"],
                [f"v_subrev_u32 v{U+5}, s{sPAR}, v{U+3}", f"s_mov_b32 s{sTMP}, s{sPAR}"]])
    a(f"v_add_u32 v{U+4}, v{U+4}, v{U}\nv_readlane_b32 s{sTOT}, v{U}, 63\nv_sub_u32 v{U+2}, v{U+2}, v{U+4}\nv_add_lshl_u32 v{U+6}, v{U+4}, s{sPAR}, 2")
    a(f"s_cmp_gt_u32 s{sTOT}, {CAP}\ns_cbranch_scc1 L2_exp")
    NX = 6
    for i in range(NX):
        a(f"v_cmpx_lt_i32 vcc, {2*i}, v{U+5}\nds_write_b32 v{U+6}, v{U+2} offset:{L_REC + 8*i}")
    a(f"v_cmpx_lt_i32 vcc, {2*NX}, v{U+5}\ns_cbranch_execz L2_expd\ns_add_u32 s{sTMP}, s{sTMP}, {2*NX}")
    a("L2_exp:")
    a(f"s_mov_b64 exec, -1\nv_cmp_lt_u32 vcc, s{sTMP}, v{U+3}\ns_cbranch_vccz L2_expd")
    a(f"v_add_u32 v{U+7}, s{sTMP}, v{U+4}\ns_movk_i32 s3, {CAP}\nv_cmp_gt_u32 s[{sT2}:{sT2+1}], s3, v{U+7}\nv_lshlrev_b32 v{U+7}, 2, v{U+7}\ns_and_b64 exec, vcc, s[{sT2}:{sT2+1}]")
    a(f"ds_write_b32 v{U+7}, v{U+2} offset:{L_REC}\ns_add_u32 s{sTMP}, s{sTMP}, 2\ns_branch L2_exp")
    a("L2_expd:")
    a(f"s_mov_b64 exec, -1\ns_cmp_eq_u32 s{sPAR}, 0\ns_cbranch_scc0 L2_nowb")
    wbdma(4)
    a("L2_nowb:\ns_waitcnt lgkmcnt(0)\ns_barrier")
    stamp(a, o, 2, sST)
    for k in range(3):
        a(f"ds_read_b32 v{U+k}, v{vRA} offset:{L_REC + 2048*k}")
    for k in range(3):
        a(f"s_waitcnt lgkmcnt({2-k})\nv_lshl_add_u32 v{U+k}, v{U+k}, 4, v{C+k}")
        a(f"buffer_load_dwordx4 v[{RQ+4*k}:{RQ+4*k+3}], v{U+k}, s[{rAUX}:{rAUX+3}], 0 offen")
    npf = 0
    if o.pf2:
        per = (o.pf2 - o.pf1) * 8 // 32
        assert per <= 512
        srd(a, rX, sX, N * 1024)
        a(f"s_lshr_b32 s3, s2, 3\ns_mul_i32 s3, s3, {per*128}\ns_add_u32 s3, s3, {o.pf1*1024}\nv_min_u32 v{U+3}, {per-1}, v0\nv_lshlrev_b32 v{U+3}, 7, v{U+3}\ns_barrier")
        a(f"buffer_load_dword v{vX}, v{U+3}, s[{rX}:{rX+3}], s3 offen")
        npf = 1
    a(f"s_sub_u32 s{sCNT}, s{sTOT}, s{sR0}\ns_min_u32 s{sCNT}, s{sCNT}, {CAP}\ns_lshl_b32 s3, s{sCNT}, 4")
    for k in range(3):
        a(f"v_cmp_gt_u32 s[{sM[k]}:{sM[k]+1}], s3, v{C+k}")
    a(f"s_cmp_lg_u32 s{sR0}, 0\ns_cbranch_scc1 L2_noinit")
    for r in range(0, 48, 2):
        a(f"v_mov_b64 v[{vACC+r}:{vACC+r+1}], 0")
    for r in range(0, 8, 2):
        a(f"v_mov_b64 v[{vA1+r}:{vA1+r+1}], 0")
    a(f"s_mov_b32 s{sMA}, 0x0f0f0f0f\ns_mov_b32 s{sMA+1}, s{sMA}\ns_not_b64 s[{sMB}:{sMB+1}], s[{sMA}:{sMA+1}]")
    a(f"s_add_u32 s{sEM}, s{sBASE}, {L_EF}")
    a(f"v_bfe_u32 v{vAD}, v{vL}, 3, 2\nv_and_b32 v{U}, 3, v{vL}\nv_lshl_add_u32 v{vAD}, v{vAD}, 2, v{U}\nv_lshrrev_b32 v{U}, 5, v{vL}\nv_lshl_add_u32 v{vAD}, v{vAD}, 1, v{U}\nv_lshl_add_u32 v{vAD}, v{vAD}, 4, s{sEM}")
    a(f"v_and_b32 v{vH}, 16, v{vLANE16}")
    srd(a, rX, sX, N * 1024)
    srd(a, rOUT, sOUT, N * 1024)
    a(f"s_mov_b32 s{rEF+2}, {E*32}\ns_mov_b32 s{rEF+3}, 0x00020000")
    a("L2_noinit:")
    a(f"v_and_b32 v{vPW}, 15, v{vL}\nv_lshlrev_b32 v{vPW}, 3, v{vPW}")
    a(f"v_lshrrev_b32 v{vPE}, 1, v{vL}\nv_lshlrev_b32 v{vPE}, 3, v{vPE}")
    a(f"v_lshlrev_b32 v{vPT}, 3, v{vL}\nv_add_u32 v{vPT}, {L_T}, v{vPT}")
    a(f"s_mov_b32 s{sT2}, 0\ns_cmp_lt_u32 s2, 16\ns_cbranch_scc1 L2_r40")
    for nm, R in (("39", R39), ("40", R40)):
        if nm == "40": a("s_branch L2_rd\nL2_r40:")
        for w, r in enumerate(R):
            a(f"s_cmp_eq_u32 s{sW}, {w}\ns_cselect_b32 s{sT2}, {hex(sum(x << (6*i) for i, x in enumerate(r)))}, s{sT2}")
    a("L2_rd:")
    a(f"v_mul_u32_u24 v{U+4}, 52, v{vL}\nv_lshrrev_b32 v{U+4}, 8, v{U+4}\nv_mul_u32_u24 v{U+5}, 5, v{U+4}\nv_sub_u32 v{U+5}, v{vL}, v{U+5}")
    a(f"v_mul_u32_u24 v{U+3}, 6, v{U+5}\nv_bfe_u32 v{U+3}, s{sT2}, v{U+3}, 6\nv_lshlrev_b32 v{U+3}, 2, v{U+3}\nv_lshlrev_b32 v{U+4}, 2, v{U+4}\nv_lshlrev_b32 v{U+5}, 19, v{U+5}")
    a(f"s_mul_i32 s3, s{sW}, 5\nv_lshlrev_b32 v{U+6}, 2, v{vL}\nv_add_u32 v{U+9}, s3, v{vL}\nv_lshlrev_b32 v{U+7}, 2, v{U+9}")
    a(f"v_cmp_gt_u32 vcc, 40, v{vL}\nv_add_u32 v{U+8}, 1, v{vL}\nv_add_u32 v{U+9}, 1, v{U+9}\nv_cndmask_b32 v{U+8}, 0, v{U+8}, vcc")
    a(f"s_cmp_gt_u32 s{sTOT}, {CAP}\ns_cselect_b32 s{sT2+1}, 0, 8\nv_mov_b32 v{U+10}, 8")
    for k in range(3):
        a(f"s_waitcnt vmcnt({2 - k + npf})")
        if k == 0: stamp(a, o, 3, sST)
        a(f"s_mov_b64 exec, s[{sM[k]}:{sM[k]+1}]\nv_and_b32 v{U+k}, 0xff, v{RQ+4*k}\nv_and_b32 v{C+k}, 0xfff, v{RQ+4*k+1}")
        a(f"ds_add_u32 v{U+k}, v{U+10} offset:{L_DEG}\nds_add_rtn_u32 v{RK+k}, v{C+k}, v{U+10} offset:{L_CELL}")
    a("s_mov_b64 exec, -1")
    def tcomp(k):
        for oo in range(4):
            a(f"v_mfma_f32_4x4x4_16b_bf16 {vr(TQ+4*oo,4)}, {vr(vCG,2)}, {vr(RQ+4*k+2,2)}, 0 cbsz:4 abid:{oo}")
        a(f"v_and_b32 v{RQ+4*k}, 0xfffffc00, v{RQ+4*k}\nv_lshrrev_b32 v{RQ+4*k+1}, 12, v{RQ+4*k+1}\nv_lshlrev_b32 v{RQ+4*k+1}, 5, v{RQ+4*k+1}")
        for q in range(8):
            a(f"v_cvt_pk_bf16_f32 v{TP+8*k+q}, v{TQ+2*q}, v{TQ+2*q+1}")
    tcomp(0)
    a("s_waitcnt lgkmcnt(0)\ns_barrier")
    a(f"ds_read_b32 v{U}, v{U+6} offset:{L_DEG}\nds_read_b32 v{U+1}, v{U+7} offset:{L_DEG}\nv_lshlrev_b32 v{U+7}, 4, v{U+7}")
    a(f"s_waitcnt lgkmcnt(0)\nv_mad_u32_u24 v{U+9}, v{U+1}, s{sT2+1}, v{U+9}\nv_mad_u32_u24 v{U+8}, v{U}, s{sT2+1}, v{U+8}")
    for j in range(5):
        a(f"v_readlane_b32 s{sN+j}, v{U+9}, {j}")
    a(f"v_lshl_add_u32 v{U+7}, v{U+1}, 16, v{U+7}")
    for j in range(5):
        a(f"v_cmp_lt_u32 s[{S+2*j}:{S+2*j+1}], s{sN+j}, v{U+8}")
    for j in range(5):
        a(f"s_bcnt1_i32_b64 s{sN+j}, s[{S+2*j}:{S+2*j+1}]\nv_writelane_b32 v{U}, s{sN+j}, {j}")
    a(f"s_mov_b64 exec, 31\nv_lshlrev_b32 v{U}, 2, v{U}\nds_write_b32 v{U}, v{U+7} offset:{L_INV}\ns_mov_b64 exec, -1")
    a("s_waitcnt lgkmcnt(0)\ns_barrier")
    a(f"ds_read_b32 v{U}, v{U+3} offset:{L_INV}")
    tcomp(1)
    a(f"s_waitcnt lgkmcnt(0)\nv_add_u32_sdwa v{U+4}, v{U}, v{U+4} dst_sel:DWORD dst_unused:UNUSED_PAD src0_sel:WORD_0 src1_sel:DWORD")
    a(f"ds_read_b32 v{U+1}, v{U+4} offset:{L_CELL}")
    for j in range(5):
        a(f"v_readlane_b32 s{sN+j}, v{U}, {j}")
    a(f"s_add_u32 s3, s{sN}, s{sN+1}\ns_add_u32 s3, s3, s{sN+2}\ns_add_u32 s3, s3, s{sN+3}\ns_add_u32 s3, s3, s{sN+4}\ns_lshr_b32 s{sCNT}, s3, 16")
    a(f"s_add_u32 s3, s{sCNT}, {8*PADN}\nv_mov_b32 v{U+2}, s3\nv_mov_b32 v{U+6}, 0\ns_mov_b64 exec, 1\nds_add_rtn_u32 v{U+2}, v{U+6}, v{U+2} offset:{L_CNT}\ns_mov_b64 exec, -1")
    a("s_waitcnt lgkmcnt(1)")
    scan(a, U + 1, [[f"v_sub_u32 v{U+5}, v{U+5}, v{U+1}"], [], [f"v_mov_b32 v{U+8}, {0x7ffffc00 | 40}", f"v_mov_b32 v{U+9}, 0x7fffff00"], [],
                    ["s_waitcnt lgkmcnt(0)", f"v_readfirstlane_b32 s{sT2+3}, v{U+2}"], [f"s_add_u32 s3, s{sT2+3}, s{sCNT}", f"v_lshl_add_u32 v{U+6}, v{vL}, 3, s3"]])
    a(f"s_mov_b32 exec_hi, 0x0fffffff\nv_add3_u32 v{U+1}, v{U+1}, v{U+5}, s{sT2+3}\nds_write_b32 v{U+4}, v{U+1} offset:{L_CELL}")
    a(f"ds_write_b64 v{U+6}, v[{U+8}:{U+9}] offset:{L_LIST}\ns_mov_b64 exec, -1")
    a("s_waitcnt lgkmcnt(0)\ns_barrier")
    for k in range(3):
        a(f"ds_read_b32 v{U+k}, v{C+k} offset:{L_CELL}")
    a(f"s_cmp_eq_u64 s[{sM[2]}:{sM[2]+1}], 0\ns_cbranch_scc1 L2_not3")
    tcomp(2)
    a("L2_not3:")
    a(f"s_mov_b32 s3, {L_T}")
    for k in range(3):
        a(f"s_mov_b64 exec, s[{sM[k]}:{sM[k]+1}]\ns_waitcnt lgkmcnt(2)")
        a(f"v_add_u32_sdwa v{RK+k}, v{U+k}, v{RK+k} dst_sel:DWORD dst_unused:UNUSED_PAD src0_sel:WORD_0 src1_sel:DWORD")
        a(f"v_or_b32_sdwa v{RQ+4*k}, v{U+k}, v{RQ+4*k} dst_sel:DWORD dst_unused:UNUSED_PAD src0_sel:WORD_1 src1_sel:DWORD")
        a(f"ds_write_b64 v{RK+k}, v[{RQ+4*k}:{RQ+4*k+1}] offset:{L_LIST}")
    a("s_mov_b64 exec, -1")
    a(f"v_add_u32 v{vPW}, s{sT2+3}, v{vPW}\nv_add_u32 v{vPE}, s{sT2+3}, v{vPE}\nv_lshl_add_u32 v{vPT}, s{sT2+3}, 2, v{vPT}\ns_lshr_b32 s{sCNT}, s{sCNT}, 3")
    a("s_waitcnt lgkmcnt(0)\ns_barrier")
    stamp(a, o, 4, sST)
    a(f"ds_read_b32 v{vEO}, v{vPE} offset:4\nds_read_b32 v{U}, v{vPW}\nds_read_b32 v{vWD[0]}, v{vPW} offset:{8*D}")
    for k in range(3):
        a(f"v_lshl_add_u32 v{RK+k}, v{RK+k}, 2, s3")
    EFD = f"buffer_load_dwordx4 v{vEO}, s[{rEF}:{rEF+3}], 0 offen lds"
    a(f"s_mov_b32 m0, s{sEM}\ns_waitcnt lgkmcnt(2)\nv_or_b32 v{vEO}, v{vEO}, v{vH}\n{EFD}\ns_waitcnt lgkmcnt(0)")
    for k in range(D):
        t = sT2 + (k & 1)
        a(f"v_readlane_b32 s{sRING+k}, v{U}, {k}\ns_and_b32 s{t}, s{sRING+k}, 0xfffffc00")
        a(f"buffer_load_dwordx4 v[{vX+4*k}:{vX+4*k+3}], v{vLANE16}, s[{rX}:{rX+3}], s{t} offen")
        if k in (1, 3, 5):
            kk = k >> 1
            a(f"s_mov_b64 exec, s[{sM[kk]}:{sM[kk]+1}]\nds_write_b128 v{RK+kk}, v[{TP+8*kk}:{TP+8*kk+3}]\nds_write_b128 v{RK+kk}, v[{TP+8*kk+4}:{TP+8*kk+7}] offset:16\ns_mov_b64 exec, -1")
    for f in range(4):
        a(f"ds_read_b128 {vr(vW+4*f,4)}, v{vLANE16} offset:{L_WB + 1024*f}")
    a(f"s_and_b32 s3, s{sW}, 3\ns_lshl_b32 s3, s3, 13\nv_add_u32 v{U+4}, s3, v{vLANE16}")
    a(f"v_readlane_b32 s{sRING+D}, v{vWD[0]}, 0\ns_and_b32 s{sTMP}, s{sRING+D}, 0xfffffc00")
    a(f"s_waitcnt lgkmcnt(0)\ns_barrier")
    for f in range(8):
        a(f"ds_read_b128 {vr(vB+4*f,4)}, v{U+4} offset:{L_WB + 4096 + 1024*f}")
    a(f"s_waitcnt vmcnt({D})")
    stamp(a, o, 5, sST)
    if o.stamps: a("s_memtime s[92:93]")

    def rdA(buf, toff):
        a(f"s_mov_b64 exec, s[{sMA}:{sMA+1}]\nds_read_b128 v[{vA1}:{vA1+3}], v{vAD} offset:{512*buf}")
        a(f"s_mov_b64 exec, s[{sMB}:{sMB+1}]\nds_read_b128 v[{vA2}:{vA2+3}], v{vAD} offset:{512*buf}\ns_mov_b64 exec, -1")
        a(f"ds_read_b64 v[{vT[buf]}:{vT[buf]+1}], v{vPT} offset:{toff}")
    def zm(buf, q):
        par, h = q >> 1, q & 1
        z = vr(Z(buf, par), 16)
        return f"v_mfma_f32_32x32x16_bf16 {z}, {vr(vA2 if h else vA1, 4)}, {vr(vW + 4*q, 4)}, {z if h else '0'}"
    def unit(u):
        u %= 32
        return Z(u >> 4, u & 1, (u & 15) & ~1)
    def ta(u): return vTA + 2 * (u & 1)
    def EXP(u, j): return f"v_exp_f32 v{ta(u)+j}, v{unit(u)+j}"
    def RCP(u, j): return f"v_rcp_f32 v{ta(u)+j}, v{ta(u)+j}"
    def PADD(u): return f"v_pk_add_f32 {vr(ta(u),2)}, {vr(ta(u),2)}, 1.0 op_sel_hi:[1,0]"
    def PMUL(u): return f"v_pk_mul_f32 {vr(unit(u),2)}, {vr(unit(u),2)}, {vr(ta(u),2)}"
    rdA(0, 0)
    a("s_waitcnt lgkmcnt(1)")
    for q in range(4):
        a(zm(0, q))
    a("s_waitcnt lgkmcnt(0)\ns_barrier")
    a(f"s_cmp_eq_u32 s{sCNT}, 0\ns_cbranch_scc1 L2_exit\ns_sub_u32 s{sCNT}, s{sCNT}, 1\ns_nop 6")
    a(EXP(0, 0)); a(EXP(0, 1)); a(EXP(1, 0)); a(EXP(1, 1)); a(PADD(0)); a(PADD(1)); a(RCP(0, 0)); a(RCP(0, 1)); a("s_nop 0"); a(PMUL(0))
    zsteps = {5: 0, 7: 1, 9: 2, 11: 3}
    EI = 6
    assert EI > min(zsteps) and EI + D < 18
    a("L2_loop:")
    for i in range(32):
        b, s = i >> 4, i & 15
        x = vX + 4 * (i % D)
        M0 = f"v_mfma_f32_4x4x4_16b_bf16 {vr(vDD,4)}, {vr(vT[b],2)}, {vr(x,2)}, 0 cbsz:4 abid:{s}"
        M1 = f"v_mfma_f32_4x4x4_16b_bf16 {vr(vDD+4,4)}, {vr(vT[b],2)}, {vr(x+2,2)}, 0 cbsz:4 abid:{s}"
        ring = sRING + (i + 1 + D) % 32
        RL = f"v_readlane_b32 s{ring}, v{vWD[((i + 1) >> 4) & 1]}, {(i + 1) & 15}"
        AND = f"s_and_b32 s{sTMP}, s{ring}, 0xfffffc00"
        if o.dbgx == "oob": AND = f"s_or_b32 s{sTMP}, s{ring}, 0x40000000"
        LD = f"buffer_load_dwordx4 {vr(x,4)}, v{vLANE16}, s[{rX}:{rX+3}], s{sTMP} offen"
        WT = f"s_waitcnt vmcnt({D-1})"
        sel = "op_sel_hi:[0,1,1]" if s % 2 == 0 else "op_sel:[1,0,0]"
        FM = [f"v_pk_fma_f32 {vr(vACC+2*q,2)}, {vr(Z(b, q >> 1, s & ~1),2)}, {vr(vDD+2*q,2)}, {vr(vACC+2*q,2)} {sel}" for q in range(4)]
        ON = f"s_set_gpr_idx_on s{sRING + i}, gpr_idx(SRC2,DST)"
        OFF = "s_set_gpr_idx_off"
        if o.prio and i % o.prio == 0:
            a(f"s_setprio {3 - (i // o.prio) % 4}")
        if s == 2:
            a(f"ds_read_b32 v{vWD[1-b]}, v{vPW} offset:{8*D + 128*(b+1)}")
            if b == 0:
                a(f"ds_read_b32 v{vEO}, v{vPE} offset:{4 + 256}")
            rdA(1 - b, 512 * (b + 1))
        if s == min(zsteps):
            a("s_waitcnt lgkmcnt(0)")
        if i == EI:
            a(f"s_mov_b32 m0, s{sEM}\nv_or_b32 v{vEO}, v{vEO}, v{vH}\n{EFD}")
        if EI <= i < EI + D:
            WT = f"s_waitcnt vmcnt({D})"
        E0, E1, R0, R1 = EXP(i+2, 0), EXP(i+2, 1), RCP(i+1, 0), RCP(i+1, 1)
        PA_, PM_ = PADD(i+2), PMUL(i+1)
        if s in zsteps: seq = [WT, M0, RL, M1, zm(1 - b, zsteps[s]), E0, E1, R0, R1, LD, PA_, PM_, ON] + FM + [OFF, AND]
        else: seq = [E0, WT, M0, E1, M1, RL, R0, LD, R1, PA_, PM_, ON] + FM + [OFF, AND]
        for q in seq:
            a(q)
        if (i + 1) % G == 0:
            a(f"s_sub_u32 s{sCNT}, s{sCNT}, {G}\ns_cbranch_scc1 L2_exit")
    a(f"v_add_u32 v{vPW}, 256, v{vPW}\nv_add_u32 v{vPE}, 256, v{vPE}\nv_add_u32 v{vPT}, 1024, v{vPT}")
    a("s_branch L2_loop")
    a("L2_more:")
    a(f"s_lshl_b32 s3, s2, 10\ns_waitcnt vmcnt(0) lgkmcnt(0)\nv_add_u32 v{U+1}, s3, v{vLANE16}\ns_barrier\ns_branch L2_round")
    a("L2_exit:")
    a(f"s_add_u32 s{sR0}, s{sR0}, {CAP}\ns_cmp_lt_u32 s{sR0}, s{sTOT}\ns_cbranch_scc1 L2_more")
    stamp(a, o, 6, sST)
    if o.stamps: a("s_memtime s[94:95]")
    Q = vW
    a(f"s_mov_b32 s{sT2}, 0xbf317218\ns_mov_b32 s{sT2+1}, s{sT2}")
    a(f"v_lshlrev_b32 v{Q+2}, 2, v{vL}")
    for s in range(5):
        c = vACC + 8 * s
        a(f"s_and_b32 s3, s{sN+s}, 0xffff\ns_mul_i32 s3, s3, {4*AGS//64}\nv_add_u32 v{Q+8+s}, s3, v{Q+2}")
        for q in range(4):
            a(f"v_pk_mul_f32 {vr(c+2*q,2)}, {vr(c+2*q,2)}, s[{sT2}:{sT2+1}]")
        for oo in range(4):
            a(f"v_cvt_pk_bf16_f32 v{c+oo}, v{c+oo}, v{c+4+oo}")
        for oo in range(4):
            a(f"ds_write_b32 v{Q+8+s}, v{c+oo} offset:{L_AGG + oo*AGS}")
    a(f"s_mul_i32 s{sTMP}, s{sPAR}, {80*AGS}")
    a(f"v_and_b32 v{Q+3}, 15, v{vL}\nv_lshrrev_b32 v{Q+4}, 4, v{vL}\nv_mul_u32_u24 v{Q+5}, {AGS}, v{Q+3}\nv_lshl_add_u32 v{Q+5}, v{Q+4}, 4, v{Q+5}\nv_add_u32 v{Q+5}, s{sTMP}, v{Q+5}")
    a(f"s_mul_i32 s{sT2}, s{sPAR}, {20*256}\ns_add_u32 s{sT2}, s{sT2}, s2\ns_lshl_b32 s{sT2}, s{sT2}, 10\ns_and_b32 s3, s{sW}, 3\ns_lshl_b32 s3, s3, 8\ns_add_u32 s{sT2}, s{sT2}, s3")
    a(f"v_lshlrev_b32 v{Q+4}, 18, v{Q+4}\nv_lshl_add_u32 v{Q+4}, v{Q+3}, 4, v{Q+4}\nv_add_u32 v{Q+4}, s{sT2}, v{Q+4}")
    a("s_waitcnt lgkmcnt(0)\ns_barrier")
    stamp(a, o, 7, sST)
    AF = vACC
    DF = vACC + 32
    def rdtile(k):
        for ks in range(4):
            a(f"ds_read_b128 {vr(AF+16*(k&1)+4*ks,4)}, v{Q+5} offset:{L_AGG + 16*k*AGS + 64*ks}")
    rdtile(0)
    for k in range(5):
        if k < 4:
            rdtile(k + 1)
        d = DF + 8 * (k & 1)
        for ks in range(4):
            a(f"s_waitcnt lgkmcnt({(4 if k < 4 else 0) + 3 - ks})")
            for par in range(2):
                a(f"v_mfma_f32_16x16x32_bf16 {vr(d+4*par,4)}, {vr(AF+16*(k&1)+4*ks,4)}, {vr(vB+8*ks+4*par,4)}, {'0' if ks == 0 else vr(d+4*par,4)}")
        def fin(kk):
            dd = DF + 8 * (kk & 1)
            t = Q + 8 + 4 * (kk & 1)
            for q in range(4):
                a(f"v_cvt_pk_bf16_f32 v{t+q}, v{dd+2*q}, v{dd+2*q+1}")
            a(f"s_mov_b32 s3, {kk << 20}\nbuffer_store_dwordx4 {vr(t,4)}, v{Q+4}, s[{rOUT}:{rOUT+3}], s3 offen {o.st2}")
        if k > 0:
            fin(k - 1)
        if k == 4:
            a("s_nop 3")
            fin(4)
    stamp(a, o, 8, sST)
    if o.stamps:
        a("s_waitcnt vmcnt(0)")
    stamp(a, o, 9, sST)
    a("L2_fin:")
    stamp_out(a, o, 12, sST, sWS, sW, 1, Q)
    a("L2_end:\ns_endpgm")
    return a.text(), NV, 102

def build(o):
    ref = open("cdna_kernels/" + NAME + ".s.ref").read().split("\n")
    head = [l for l in ref if l.startswith(";") and "@launch" not in l and "Override" not in l and "grid=ceil" not in l]
    out = "\n".join(head) + "\n"
    out += f"; @launch kernel=tfn_bin_kernel grid=(256,1,1) block=(640,1,1) lds=83968\n"
    out += f"; @launch kernel={NAME}_kernel grid=(256,1,1) block=(512,1,1) lds={LDS2}\n"
    if o.probe:
        out += f"; @launch kernel=tfn_probe_kernel grid=(1,1,1) block=(64,1,1) lds=0\n"
    out += "; generated by gen/gen3.py\n"
    out += '.amdgcn_target "amdgcn-amd-amdhsa--gfx950"\n.text\n'
    ks = [("tfn_bin_kernel",) + k1(o), (NAME + "_kernel",) + k2(o)]
    if o.probe:
        ks.append(("tfn_probe_kernel",) + k3(o))
    for nm, t, v, s in ks:
        out += f".globl {nm}\n.p2align 8\n.type {nm},@function\n{nm}:\n" + t
    for nm, t, v, s in ks:
        out += KD.format(name=nm, v=v, s=s, acc=(v + 3) // 4 * 4)
    return out

def parser():
    p = argparse.ArgumentParser()
    p.add_argument("-o", default="cdna_kernels/" + NAME + ".s")
    p.add_argument("--D", type=int, default=8)
    p.add_argument("--G", type=int, default=4)
    p.add_argument("--prio", type=int, default=4)
    p.add_argument("--st1", default="sc0 sc1")
    p.add_argument("--st2", default="sc0 sc1")
    p.add_argument("--d1", type=int, default=2)
    p.add_argument("--d2", type=int, default=4)
    p.add_argument("--b2", type=int, default=1)
    p.add_argument("--efs", default="21111")
    p.add_argument("--dfirst", type=int, default=1)
    p.add_argument("--wsoff", type=int, default=0)
    p.add_argument("--d3", type=int, default=4)
    p.add_argument("--tabpos", type=int, default=0)
    p.add_argument("--k2off", type=int, default=0)
    p.add_argument("--pf1", type=int, default=0)
    p.add_argument("--pf2", type=int, default=0)
    p.add_argument("--cpf", type=int, default=76)
    p.add_argument("--probe", default="")
    p.add_argument("--dbgx", default="")
    p.add_argument("--stamps", type=int, default=0)
    return p

if __name__ == "__main__":
    o = parser().parse_args()
    open(o.o, "w").write(build(o))
```

```python
import sys, argparse
from gen import A, vr, srd, stamp, stamp_out, k3, KD, NAME, N, E, CH, CS, WS_STAMP

WS_TABLE = 0
WS_WFRAG = 0x40000
WS_MIX   = WS_WFRAG + 4096
WS_CG    = WS_MIX + 32768
WS_AUX   = 0x100000
WS_EF    = 0x800000
AUX_BYTES = 256 * CS * 16
EF_BYTES = 256 * CS * 32

CAP = 1536
PADN = 60
NWIN = 12
L_LIST = 0
L_AGG = (CAP + 8 * PADN) * 8
L_CELL = L_AGG
L_INV = L_CELL + 2304
L_CNT = L_INV + 256
L_REC = L_CELL + 4096
L_WB = L_REC + CAP * 4
L_EF = L_WB + 36864
L_T = L_EF + CAP * 32
LDS2 = L_T + CAP * 32
AGS = 288
assert L_AGG + 160 * AGS <= L_EF and L_EF < 65536 and LDS2 <= 163840

def scan(a, v, fill=()):
    fill = list(fill)
    for m in ("row_shr:1 row_mask:0xf", "row_shr:2 row_mask:0xf", "row_shr:4 row_mask:0xf", "row_shr:8 row_mask:0xf",
              "row_bcast:15 row_mask:0xa", "row_bcast:31 row_mask:0xc"):
        g = fill.pop(0) if fill else []
        for x in g:
            a(x)
        if len(g) < 2:
            a(f"s_nop {1 - len(g)}")
        a(f"v_add_u32_dpp v{v}, v{v}, v{v} {m} bank_mask:0xf")
    assert not fill

def k1(o):
    a = A()
    L_RAW, L_AUX, L_HIST, L_BASE, L_ID = 0, 40960, 61440, 62464, 63488
    sX, sSRC, sDST, sY, sEF, sWR, sCG, sWM = 4, 6, 8, 10, 12, 14, 16, 18
    sWS, sW, rEF, sST = 20, 22, 24, 60
    a("s_load_dwordx16 s[4:19], s[0:1], 0\ns_load_dwordx2 s[20:21], s[0:1], 80")
    stamp(a, o, 0, sST)
    a("s_cmp_ge_u32 s2, 256\ns_cbranch_scc1 L1_end")
    a(f"s_mul_i32 s34, s2, {CH*4}\nv_lshl_add_u32 v4, v0, 3, s34\nv_lshlrev_b32 v5, 1, v4")
    a(f"v_cmp_gt_u32 vcc, {CH//2}, v0\ns_mov_b64 s[40:41], vcc\ns_mov_b64 exec, vcc")
    a("s_waitcnt lgkmcnt(0)")
    if o.wsoff: a(f"s_add_u32 s20, s20, {o.wsoff << 20}\ns_addc_u32 s21, s21, 0")
    a(f"global_load_dwordx2 v[8:9], v4, s[{sDST}:{sDST+1}]")
    def keys2():
        a(f"global_load_dwordx2 v[10:11], v4, s[{sSRC}:{sSRC+1}]")
        a(f"global_load_dwordx4 v[12:15], v5, s[{sY}:{sY+1}]")
    if not o.dfirst:
        keys2()
    a("s_mov_b64 exec, -1")
    a("v_lshrrev_b32 v1, 6, v0\nv_and_b32 v2, 255, v0\nv_lshlrev_b32 v2, 2, v2\nv_mov_b32 v3, 0")
    a(f"v_readfirstlane_b32 s{sW}, v1\nds_write_b32 v2, v3 offset:{L_HIST}")
    if o.dfirst:
        a("s_mov_b64 exec, s[40:41]\ns_barrier")
        keys2()
        a("s_mov_b64 exec, -1")
    a(f"s_lshl_b32 s36, s34, 3\nv_lshlrev_b32 v6, 4, v0\nv_and_b32 v30, 63, v0\ns_lshl_b32 s37, s{sW}, 10")
    srd(a, rEF, sEF, E * 32)
    a("s_waitcnt lgkmcnt(0)\ns_barrier")
    def dma(j):
        a(f"s_add_u32 m0, s37, {L_RAW + j*10240}\ns_add_u32 s38, s36, {j*10240}")
        a(f"buffer_load_dwordx4 v6, s[{rEF}:{rEF+3}], s38 offen lds")
    for j in range(o.d1):
        dma(j)
    a("s_mov_b32 s39, 0\nv_mov_b32 v40, 0\ns_lshl_b32 s3, s2, 6\nv_add_u32 v31, s3, v30")
    a(f"s_mov_b64 s[42:43], s[{sWM}:{sWM+1}]\nv_mov_b32 v32, 0")
    a(f"s_cmp_eq_u32 s{sW}, 4\ns_cbranch_scc0 L1_nomix")
    a("v_bfe_u32 v32, v31, 10, 2\nv_lshlrev_b32 v32, 5, v32\nv_bfe_u32 v33, v31, 7, 2\nv_lshl_add_u32 v32, v33, 3, v32\nv_and_b32 v33, 7, v31\nv_add_u32 v32, v32, v33")
    a("v_bfe_u32 v33, v31, 12, 2\nv_lshlrev_b32 v33, 5, v33\nv_bfe_u32 v34, v31, 3, 4\nv_lshl_add_u32 v33, v34, 1, v33\nv_bfe_u32 v34, v31, 9, 1\nv_add_u32 v33, v33, v34")
    a("v_lshl_add_u32 v32, v32, 7, v33")
    a(f"v_lshlrev_b32 v40, 1, v31\nv_add_u32 v40, {WS_MIX}, v40\ns_mov_b32 s39, 1")
    a("L1_nomix:")
    a(f"s_cmp_eq_u32 s{sW}, 5\ns_cbranch_scc0 L1_now\ns_cmp_lt_u32 s2, 33\ns_cbranch_scc0 L1_now\ns_cmp_eq_u32 s2, 32\ns_cbranch_scc1 L1_cg")
    a("v_bfe_u32 v32, v31, 8, 1\nv_and_b32 v33, 7, v31\nv_lshl_add_u32 v32, v32, 3, v33")
    a("v_bfe_u32 v33, v31, 9, 1\nv_bfe_u32 v34, v31, 3, 5\nv_lshl_add_u32 v33, v33, 5, v34\nv_bfe_u32 v34, v31, 10, 1\nv_lshl_add_u32 v33, v33, 1, v34")
    a("v_lshl_add_u32 v32, v32, 7, v33")
    a(f"v_lshlrev_b32 v40, 1, v31\nv_add_u32 v40, {WS_WFRAG}, v40\ns_mov_b32 s39, 2\ns_mov_b64 s[42:43], s[{sWR}:{sWR+1}]\ns_branch L1_now")
    a("L1_cg:")
    a("v_and_b32 v32, 15, v30\nv_lshrrev_b32 v33, 4, v30\nv_lshl_add_u32 v32, v32, 2, v33")
    a(f"v_lshlrev_b32 v40, 1, v30\nv_add_u32 v40, {WS_CG}, v40\ns_mov_b32 s39, 1\ns_mov_b64 s[42:43], s[{sCG}:{sCG+1}]")
    a("L1_now:")
    if o.cpf:
        a(f"s_cmp_lt_u32 s{sW}, 2\ns_cbranch_scc0 L1_nocpf\ns_cmp_lt_u32 s2, 8\ns_cbranch_scc0 L1_nocpf")
        a(f"s_getpc_b64 s[44:45]\nL1_pc:\ns_add_u32 s44, s44, {NAME}_kernel-L1_pc\ns_addc_u32 s45, s45, 0")
        a(f"v_min_u32 v50, {o.cpf - 1}, v0\nv_lshlrev_b32 v50, 7, v50\nv_mov_b32 v49, s45\nv_add_co_u32 v48, vcc, s44, v50\ns_nop 1\nv_addc_co_u32 v49, vcc, 0, v49, vcc")
        a("global_load_dword v41, v[48:49], off\ns_branch L1_xd\nL1_nocpf:")
    a("v_lshlrev_b32 v32, 1, v32\nglobal_load_ushort v41, v32, s[42:43]\nL1_xd:")
    ncode = 0
    a(f"v_mov_b32 v3, 1\ns_mov_b64 exec, s[40:41]\ns_waitcnt vmcnt({2 + o.d1 + 1 + ncode})")
    stamp(a, o, 1, sST)
    for j in range(2):
        d = 8 + j
        a(f"v_and_b32 v{16+j}, 7, v{d}\nv_bfe_u32 v{18+j}, v{d}, 3, 5\nv_lshl_add_u32 v{16+j}, v{16+j}, 5, v{18+j}\nv_lshlrev_b32 v{16+j}, 2, v{16+j}")
        a(f"ds_add_rtn_u32 v{18+j}, v{16+j}, v3 offset:{L_HIST}")
    a("s_mov_b64 exec, -1\nv_lshlrev_b32 v31, 4, v30")
    for j in range(o.d1, o.d2):
        dma(j)
    a("s_waitcnt lgkmcnt(0)\ns_barrier")
    a(f"ds_read_b128 v[32:35], v31 offset:{L_HIST}")
    a(f"s_waitcnt vmcnt({o.d2 + 1 + ncode})")
    fill = []
    for j in range(2):
        r = 20 + 4 * j
        fill += [f"v_lshlrev_b32 v{r}, 10, v{10+j}", f"v_mul_u32_u24 v{r+2}, {(NWIN << 17) // N}, v{10+j}",
                 f"v_lshrrev_b32 v{r+1}, 8, v{8+j}", f"v_lshrrev_b32 v{r+2}, 17, v{r+2}",
                 f"v_mul_u32_u24 v{r+1}, {52 * 0x10001}, v{r+1}", f"v_lshl_add_u32 v{r+1}, v{r+2}, 2, v{r+1}",
                 f"v_add_u32 v{r+1}, {L_CELL | (L_CELL + 48) << 16}, v{r+1}", f"v_mov_b64 v[{r+2}:{r+3}], v[{12+2*j}:{13+2*j}]"]
    if o.rot:
        assert False or True
        pre = []
        a(f"s_movk_i32 s46, {N // 8}")
        for j in range(2):
            a(f"v_and_b32 v{54+j}, 7, v{8+j}\nv_mad_u32_u24 v{54+j}, v{54+j}, s46, v{10+j}\nv_subrev_u32 v53, {N}, v{54+j}\nv_min_u32 v{54+j}, v{54+j}, v53")
        fill = [x.replace(f"{(NWIN << 17) // N}, v10", f"{(NWIN << 17) // N}, v54").replace(f"{(NWIN << 17) // N}, v11", f"{(NWIN << 17) // N}, v55") for x in fill]
    for x in fill[:4]:
        a(x)
    a("s_waitcnt lgkmcnt(0)")
    a("v_add_u32 v36, v32, v33\nv_add3_u32 v36, v36, v34, v35\nv_mov_b32 v37, v36")
    scan(a, 37, [fill[4 + 2*i: 6 + 2*i] for i in range(6)])
    a("v_sub_u32 v48, v37, v36\nv_add_u32 v49, v48, v32\nv_add_u32 v50, v49, v33\nv_add_u32 v51, v50, v34")
    a(f"ds_write_b128 v31, v[48:51] offset:{L_BASE}")
    a("s_mov_b64 exec, s[40:41]")
    a(f"ds_read_b32 v28, v16 offset:{L_BASE}\nds_read_b32 v29, v17 offset:{L_BASE}")
    a("v_lshlrev_b32 v36, 6, v0\nv_add_u32 v37, 32, v36")
    a("s_waitcnt lgkmcnt(1)\nv_add_lshl_u32 v38, v28, v18, 4\nv_add_lshl_u32 v28, v28, v18, 1")
    a(f"ds_write_b128 v38, v[20:23] offset:{L_AUX}\nds_write_b16 v28, v36 offset:{L_ID}")
    a("s_waitcnt lgkmcnt(2)\nv_add_lshl_u32 v39, v29, v19, 4\nv_add_lshl_u32 v29, v29, v19, 1")
    a(f"ds_write_b128 v39, v[24:27] offset:{L_AUX}\nds_write_b16 v29, v37 offset:{L_ID}")
    a("s_mov_b64 exec, -1")
    for j in range(o.d2, o.d3):
        dma(j)
    a(f"v_mov_b32 v46, 0\ns_cmp_lt_u32 s{sW}, 4\ns_cbranch_scc0 L1_notab")
    a(f"s_set_gpr_idx_on s{sW}, gpr_idx(SRC0)\nv_mov_b32 v44, v32\nv_mov_b32 v52, v48\ns_set_gpr_idx_off")
    a(f"s_mul_i32 s3, s2, {CS}\nv_add_u32 v52, s3, v52\nv_lshl_add_u32 v47, v44, 19, v52")
    a(f"v_lshl_add_u32 v46, v30, 2, s{sW}")
    a("v_and_b32 v53, 31, v46\nv_lshrrev_b32 v46, 5, v46\nv_lshl_add_u32 v46, v53, 3, v46")
    a("s_and_b32 s3, s2, 7\ns_lshl_b32 s3, s3, 5\ns_lshr_b32 s38, s2, 3\ns_add_u32 s3, s3, s38\ns_lshl_b32 s3, s3, 2")
    a(f"v_lshl_add_u32 v46, v46, 10, s3")
    TST = f"global_store_dword v46, v47, s[{sWS}:{sWS+1}]"
    if o.tabpos == 4:
        a(f"s_lshl_b32 s3, s2, 10\nv_lshl_add_u32 v46, v30, 2, s{sW}\nv_lshl_add_u32 v46, v46, 2, s3")
    if o.tabpos in (0, 4): a(TST)
    a("L1_notab:")
    a(f"v_and_b32 v7, -2, v0\nv_add_u32 v7, {L_ID}, v7")
    a(f"s_mul_i32 s3, s2, {CS*16}\ns_add_u32 s38, s3, {WS_AUX}\nv_add_u32 v4, s38, v6\nv_add_u32 v5, 10240, v4\nv_and_b32 v20, 16, v6")
    a("s_waitcnt lgkmcnt(0)\ns_barrier")
    stamp(a, o, 2, sST)
    a(f"ds_read_b128 v[8:11], v6 offset:{L_AUX}\nds_read_b128 v[12:15], v6 offset:{L_AUX + 10240}")
    for j in range(4):
        a(f"ds_read_u16 v{16+j}, v7 offset:{j*640}")
    a("v_mov_b32 v21, v4")
    if not o.auxlate:
        a("s_waitcnt lgkmcnt(5)")
        a(f"global_store_dwordx4 v21, v[8:11], s[{sWS}:{sWS+1}] {o.st1}")
        a("s_waitcnt lgkmcnt(4)")
        a(f"global_store_dwordx4 v5, v[12:15], s[{sWS}:{sWS+1}] {o.st1}")
    a(f"s_lshl_b32 s3, s3, 1\ns_add_u32 s3, s3, {WS_EF}\nv_add_u32 v4, s3, v6")
    a("s_waitcnt lgkmcnt(0)")
    for j in range(4):
        a(f"v_and_or_b32 v{16+j}, v{16+j}, -16, v20".replace("-16, v20", "-16, v20"))
    for j in range(o.d3, 4):
        dma(j)
    ny = 2 if o.d3 == 4 and not o.auxlate else 0
    if o.tabpos == 1:
        a(f"s_cmp_lt_u32 s{sW}, 4\ns_cbranch_scc0 L1_notab2")
        a(f"{TST}\ns_waitcnt vmcnt({ny+1})\ns_branch L1_tabd")
        a("L1_notab2:")
    a(f"s_waitcnt vmcnt({ny})\nL1_tabd:\ns_barrier")
    stamp(a, o, 3, sST)
    for j in range(4):
        a(f"ds_read_b128 v[{24+4*j}:{27+4*j}], v{16+j} offset:{L_RAW}")
    if o.auxlate:
        a(f"global_store_dwordx4 v21, v[8:11], s[{sWS}:{sWS+1}] {o.st1}")
        a(f"global_store_dwordx4 v5, v[12:15], s[{sWS}:{sWS+1}] {o.st1}")
    for j in range(4):
        a(f"s_waitcnt lgkmcnt({3-j})")
        a(f"global_store_dwordx4 v4, v[{24+4*j}:{27+4*j}], s[{sWS}:{sWS+1}] {o.st1 if j < 4 - o.nplain else ''}")
        if j < 3:
            a("v_add_u32 v4, 10240, v4")
    if o.tabpos == 2:
        a(f"s_cmp_lt_u32 s{sW}, 4\ns_cbranch_scc0 L1_notab3\n{TST}\nL1_notab3:")
    a("s_cmp_eq_u32 s39, 0\ns_cbranch_scc1 L1_nost\ns_cmp_eq_u32 s39, 1\ns_cbranch_scc1 L1_st1")
    a("v_lshlrev_b32 v42, 16, v41\nv_mul_f32 v42, 0xbfb8aa3b, v42\nv_cvt_pk_bf16_f32 v41, v42, v42")
    a(f"L1_st1:\nglobal_store_short v40, v41, s[{sWS}:{sWS+1}]\nL1_nost:")
    stamp(a, o, 4, sST)
    if o.stamps:
        a("s_waitcnt vmcnt(0)")
    stamp(a, o, 5, sST)
    stamp_out(a, o, 6, sST, sWS, sW, 0, 50)
    a("L1_end:\ns_endpgm")
    return a.text(), 56, 80

R39 = [[0, 3, 9, 16, 39], [1, 17, 24, 30, 36], [2, 12, 23, 25, 38], [4, 11, 18, 29, 37], [5, 15, 19, 27, 35], [6, 10, 22, 31, 33], [7, 13, 21, 26, 34], [8, 14, 20, 28, 32]]
R40 = [[0, 8, 21, 35, 39], [1, 15, 20, 24, 38], [2, 13, 19, 26, 37], [3, 9, 18, 30, 36], [4, 12, 17, 29, 34], [5, 11, 23, 25, 33], [6, 14, 16, 28, 32], [7, 10, 22, 27, 31]]

def k2(o):
    a = A()
    D, G = o.D, o.G
    sX, sOUT, sWS = 4, 6, 8
    rX, rAUX, rEF, rOUT = 12, 16, 20, 24
    sW, sTOT, sR0, sCNT, sBASE, sTMP = 10, 11, 28, 29, 30, 31
    sMA, sMB = 32, 34
    sRING = 36
    S = sRING
    sM = [S + 20, S + 22, S + 24]
    rWB = S + 28
    sT2 = 68
    sST = 72
    sN = 96
    sPAR = 101
    vLANE16, vLA, vLT, vPW, vPA, vPT = 1, 2, 3, 4, 5, 6
    vWD = [7, 8]
    vIA, vIT, vL = 9, 10, 11
    vTA = 12
    vDD = 16
    vA1, vA2 = 24, 28
    vT = [32, 34]
    vW = 36
    vB = 52
    vACC = 84
    vZ = vACC + 48
    vX = vZ + 64
    NV = vX + 4 * D
    assert NV <= 256
    P = vZ
    def Z(buf, par, s=0): return vZ + 32 * buf + 16 * par + s
    C = P
    TB = P + 8
    RQ = P + 8
    DL = P + 20
    RK = P + 26
    LW = P + 30
    TQ = P + 36
    vCG = P + 60
    U = vTA
    vRA, vRB = P + 62, P + 63

    a("s_load_dwordx2 s[8:9], s[0:1], 80\ns_load_dwordx2 s[4:5], s[0:1], 0\ns_load_dwordx2 s[6:7], s[0:1], 64")
    stamp(a, o, 0, sST)
    a("s_cmp_ge_u32 s2, 256\ns_cbranch_scc1 L2_end")
    a(f"v_and_b32 v{vL}, 63, v0\ns_lshl_b32 s3, s2, 10\nv_lshlrev_b32 v{vLANE16}, 4, v{vL}\nv_lshrrev_b32 v{U}, 6, v0\nv_add_u32 v{U+1}, s3, v{vLANE16}")
    a(f"v_readfirstlane_b32 s{sW}, v{U}\ns_mov_b32 s{sR0}, 0")
    a("s_waitcnt lgkmcnt(0)")
    if o.wsoff: a(f"s_add_u32 s8, s8, {o.wsoff << 20}\ns_addc_u32 s9, s9, 0")
    if o.k2off:
        for k in range(1, 12): a(f"s_mov_b32 s{sST+2*k}, s{sST}")
        a("s_branch L2_fin")
    a("L2_round:")
    a(f"global_load_dwordx4 v[{TB}:{TB+3}], v{U+1}, s[{sWS}:{sWS+1}]")
    a(f"v_lshlrev_b32 v{vRA}, 2, v0\nv_lshlrev_b32 v{U+2}, 3, v0\nv_mov_b32 v{U+4}, 0\nv_mov_b32 v{U+5}, 0\nv_mov_b32 v{U+3}, 0x03000000")
    a(f"ds_write_b64 v{U+2}, v[{U+4}:{U+5}] offset:{L_CELL}")
    for k in range(3):
        a(f"ds_write_b32 v{vRA}, v{U+3} offset:{L_REC + 2048*k}")
    a(f"v_lshlrev_b32 v{C}, 4, v0\ns_lshl_b32 s{sBASE}, s{sW}, 10")
    srd(a, rWB, sWS, 36864 + 128, WS_WFRAG)
    a("s_waitcnt lgkmcnt(0)\ns_barrier")
    def wbdma(j):
        a(f"s_add_u32 m0, s{sBASE}, {L_WB + 8192*j}\ns_mov_b32 s3, {8192*j}\nbuffer_load_dwordx4 v{C}, s[{rWB}:{rWB+3}], s3 offen lds")
    for j in range(4):
        wbdma(j)
    a(f"v_and_b32 v{U+2}, 15, v{vL}\nv_lshlrev_b32 v{U+2}, 3, v{U+2}\ns_mov_b32 s3, 36864\nbuffer_load_dwordx2 v[{vCG}:{vCG+1}], v{U+2}, s[{rWB}:{rWB+3}], s3 offen")
    npf = 0
    if o.pf2:
        per = o.pf2 * 8 // 32
        assert per <= 512
        srd(a, rX, sX, N * 1024)
        a(f"s_sub_u32 s3, 0, s2\ns_and_b32 s3, s3, 7\ns_mul_i32 s3, s3, {N // 8 * 1024 * o.rot}\ns_lshr_b32 s{sTMP}, s2, 3\ns_mul_i32 s{sTMP}, s{sTMP}, {per*128}\ns_add_u32 s3, s3, s{sTMP}")
        a(f"v_cmp_gt_u32 vcc, {per}, v0\nv_lshlrev_b32 v{U+3}, 7, v0\nv_mov_b32 v{U+4}, 0x7fffff00\nv_cndmask_b32 v{U+3}, v{U+4}, v{U+3}, vcc")
        a(f"buffer_load_dword v{vX}, v{U+3}, s[{rX}:{rX+3}], s3 offen")
        npf = 1
    for j in range(1, 6):
        a(f"v_add_u32 v{C+j}, {8192*j}, v{C}")
    a(f"v_lshrrev_b32 v{vRB}, 1, v0\nv_lshlrev_b32 v{vRB}, 2, v{vRB}")
    srd(a, rAUX, sWS, AUX_BYTES, WS_AUX)
    srd(a, rEF, sWS, EF_BYTES, WS_EF)
    a(f"s_and_b32 s{sTMP}, s{sW}, 3\ns_lshr_b32 s{sPAR}, s{sW}, 2\nv_mov_b32 v{TB+8}, 0")
    a(f"s_waitcnt vmcnt({5 + npf})")
    stamp(a, o, 1, sST)
    for j in range(4):
        a(f"v_lshrrev_b32 v{TB+4+j}, 19, v{TB+j}")
    a(f"v_add_u32 v{TB+10}, v{TB+4}, v{TB+5}\nv_add3_u32 v{U}, v{TB+10}, v{TB+6}, v{TB+7}")
    scan(a, U, [[f"v_add_u32 v{U+1}, s{sR0}, v{U}", f"v_mov_b32 v{TB+9}, v{TB+4}"],
                [f"v_add_u32 v{TB+11}, v{TB+10}, v{TB+6}", f"s_set_gpr_idx_on s{sTMP}, gpr_idx(SRC0)", f"v_mov_b32 v{U+2}, v{TB}", f"v_mov_b32 v{U+3}, v{TB+4}", f"v_mov_b32 v{U+4}, v{TB+8}", "s_set_gpr_idx_off"],
                [f"v_and_b32 v{U+2}, 0x7ffff, v{U+2}", f"v_sub_u32 v{U+4}, v{U+4}, v{U+1}"],
                [f"v_subrev_u32 v{U+5}, s{sPAR}, v{U+3}", f"s_mov_b32 s{sTMP}, s{sPAR}"]])
    a(f"v_add_u32 v{U+4}, v{U+4}, v{U}\nv_readlane_b32 s{sTOT}, v{U}, 63\nv_sub_u32 v{U+2}, v{U+2}, v{U+4}\nv_add_lshl_u32 v{U+6}, v{U+4}, s{sPAR}, 2")
    a(f"s_cmp_gt_u32 s{sTOT}, {CAP}\ns_cbranch_scc1 L2_exp")
    NX = 6
    for i in range(NX):
        a(f"v_cmpx_lt_i32 vcc, {2*i}, v{U+5}\nds_write_b32 v{U+6}, v{U+2} offset:{L_REC + 8*i}")
    a(f"v_cmpx_lt_i32 vcc, {2*NX}, v{U+5}\ns_cbranch_execz L2_expd\ns_add_u32 s{sTMP}, s{sTMP}, {2*NX}")
    a("L2_exp:")
    a(f"s_mov_b64 exec, -1\nv_cmp_lt_u32 vcc, s{sTMP}, v{U+3}\ns_cbranch_vccz L2_expd")
    a(f"v_add_u32 v{U+7}, s{sTMP}, v{U+4}\ns_movk_i32 s3, {CAP}\nv_cmp_gt_u32 s[{sT2}:{sT2+1}], s3, v{U+7}\nv_lshlrev_b32 v{U+7}, 2, v{U+7}\ns_and_b64 exec, vcc, s[{sT2}:{sT2+1}]")
    a(f"ds_write_b32 v{U+7}, v{U+2} offset:{L_REC}\ns_add_u32 s{sTMP}, s{sTMP}, 2\ns_branch L2_exp")
    a("L2_expd:")
    a("s_mov_b64 exec, -1\ns_waitcnt lgkmcnt(0)\ns_barrier")
    stamp(a, o, 2, sST)
    for k in range(3):
        a(f"ds_read_b32 v{U+k}, v{vRA} offset:{L_REC + 2048*k}")
    for j in range(6):
        a(f"ds_read_b32 v{DL+j}, v{vRB} offset:{L_REC + 1024*j}")
    for k in range(3):
        a(f"s_waitcnt lgkmcnt({8-k})\nv_lshl_add_u32 v{U+k}, v{U+k}, 4, v{C+k}")
        a(f"buffer_load_dwordx4 v[{RQ+4*k}:{RQ+4*k+3}], v{U+k}, s[{rAUX}:{rAUX+3}], 0 offen")
    a("s_waitcnt lgkmcnt(0)")
    for j in range(6):
        a(f"v_lshl_add_u32 v{DL+j}, v{DL+j}, 5, v{C+j}")
    if o.b2:
        a("s_barrier")
    nef = [0]
    def efdma(n):
        for _ in range(n):
            j = nef[0]; nef[0] += 1
            a(f"s_add_u32 m0, s{sBASE}, {L_EF + 8192*j}\ns_nop 0\nbuffer_load_dwordx4 v{DL+j}, s[{rEF}:{rEF+3}], 0 offen lds")
    EFS = [int(c) for c in o.efs]; assert sum(EFS) == 6 and len(EFS) == 5
    efdma(EFS[0])
    a(f"s_sub_u32 s{sCNT}, s{sTOT}, s{sR0}\ns_min_u32 s{sCNT}, s{sCNT}, {CAP}\ns_lshl_b32 s3, s{sCNT}, 4")
    for k in range(3):
        a(f"v_cmp_gt_u32 s[{sM[k]}:{sM[k]+1}], s3, v{C+k}\nv_lshlrev_b32 v{LW+2*k+1}, 1, v{C+k}")
    a(f"s_cmp_lg_u32 s{sR0}, 0\ns_cbranch_scc1 L2_noinit")
    for r in range(0, 48, 2):
        a(f"v_mov_b64 v[{vACC+r}:{vACC+r+1}], 0")
    for r in range(0, 8, 2):
        a(f"v_mov_b64 v[{vA1+r}:{vA1+r+1}], 0")
    a(f"s_mov_b32 s{sMA}, 0x0f0f0f0f\ns_mov_b32 s{sMA+1}, s{sMA}\ns_not_b64 s[{sMB}:{sMB+1}], s[{sMA}:{sMA+1}]")
    a(f"v_lshrrev_b32 v{vLA}, 5, v{vL}\nv_lshlrev_b32 v{vLA}, 4, v{vLA}")
    a(f"v_and_b32 v{vLT}, 3, v{vL}\nv_lshlrev_b32 v{vLT}, 3, v{vLT}\nv_add_u32 v{vLT}, {L_T}, v{vLT}")
    srd(a, rX, sX, N * 1024)
    srd(a, rOUT, sOUT, N * 1024)
    a("L2_noinit:")
    a(f"v_and_b32 v{vPW}, 15, v{vL}\nv_lshlrev_b32 v{vPW}, 3, v{vPW}")
    a(f"v_bfe_u32 v{vPA}, v{vL}, 3, 2\nv_and_b32 v{U}, 3, v{vL}\nv_lshl_add_u32 v{vPA}, v{vPA}, 2, v{U}\nv_lshlrev_b32 v{vPA}, 3, v{vPA}")
    a(f"v_lshrrev_b32 v{vPT}, 2, v{vL}\nv_lshlrev_b32 v{vPT}, 3, v{vPT}")
    a(f"s_mov_b32 s{sT2}, 0\ns_cmp_lt_u32 s2, 16\ns_cbranch_scc1 L2_r40")
    for nm, R in (("39", R39), ("40", R40)):
        if nm == "40": a("s_branch L2_rd\nL2_r40:")
        for w, r in enumerate(R):
            a(f"s_cmp_eq_u32 s{sW}, {w}\ns_cselect_b32 s{sT2}, {hex(sum(x << (6*i) for i, x in enumerate(r)))}, s{sT2}")
    a("L2_rd:")
    a(f"v_mul_u32_u24 v{U+4}, 52, v{vL}\nv_lshrrev_b32 v{U+4}, 8, v{U+4}\nv_mul_u32_u24 v{U+5}, 5, v{U+4}\nv_sub_u32 v{U+5}, v{vL}, v{U+5}")
    a(f"v_mul_u32_u24 v{U+3}, 6, v{U+5}\nv_bfe_u32 v{U+3}, s{sT2}, v{U+3}, 6\nv_lshlrev_b32 v{U+3}, 2, v{U+3}\nv_lshlrev_b32 v{U+4}, 2, v{U+4}\nv_lshlrev_b32 v{U+5}, 19, v{U+5}")
    a(f"s_mul_i32 s3, s{sW}, 5\nv_min_u32 v{U+6}, 43, v{vL}\nv_mul_u32_u24 v{U+6}, 52, v{U+6}\nv_add_u32 v{U+9}, s3, v{vL}\nv_min_u32 v{U+7}, 43, v{U+9}\nv_mul_u32_u24 v{U+7}, 52, v{U+7}")
    a(f"v_cmp_gt_u32 vcc, 40, v{vL}\nv_add_u32 v{U+8}, 1, v{vL}\nv_add_u32 v{U+9}, 1, v{U+9}\nv_cndmask_b32 v{U+8}, 0, v{U+8}, vcc")
    a(f"s_cmp_gt_u32 s{sTOT}, {CAP}\ns_cselect_b32 s{sT2+1}, 0, 8\nv_mov_b32 v{U+10}, 8")
    a(f"s_cmp_lt_u32 s{sW}, 4\ns_cselect_b32 s{sT2+2}, 1, 0")
    for k in range(3):
        a(f"s_waitcnt vmcnt({2 - k + EFS[0]})")
        if k == 0: stamp(a, o, 3, sST)
        a(f"s_mov_b64 exec, s[{sM[k]}:{sM[k]+1}]\nv_lshrrev_b32 v{U+k}, 16, v{RQ+4*k+1}\nv_and_b32 v{RQ+4*k+1}, 0xffff, v{RQ+4*k+1}")
        a(f"ds_add_u32 v{U+k}, v{U+10}\nds_add_rtn_u32 v{RK+k}, v{RQ+4*k+1}, v{U+10}")
    a("s_mov_b64 exec, -1")
    def tcomp(k):
        for oo in range(4):
            a(f"v_mfma_f32_4x4x4_16b_bf16 {vr(TQ+4*oo,4)}, {vr(vCG,2)}, {vr(RQ+4*k+2,2)}, 0 cbsz:4 abid:{oo}")
        a(f"v_add_u32 v{U+11}, {L_T}, v{LW+2*k+1}\ns_nop 0")
        for q in range(8):
            a(f"v_cvt_pk_bf16_f32 v{TQ+16+q}, v{TQ+2*q}, v{TQ+2*q+1}")
    def twrite():
        a(f"ds_write_b128 v{U+11}, v[{TQ+16}:{TQ+19}]\nds_write_b128 v{U+11}, v[{TQ+20}:{TQ+23}] offset:16")
    if o.fine: stamp(a, o, 6, sST)
    efdma(EFS[1])
    tcomp(0)
    a("s_waitcnt lgkmcnt(0)\ns_barrier")
    if o.fine: stamp(a, o, 7, sST)
    a(f"ds_read_b32 v{U}, v{U+6} offset:{L_CELL+48}\nds_read_b32 v{U+1}, v{U+7} offset:{L_CELL+48}")
    twrite()
    a(f"s_waitcnt lgkmcnt(2)\nv_mad_u32_u24 v{U+9}, v{U+1}, s{sT2+1}, v{U+9}\nv_mad_u32_u24 v{U+8}, v{U}, s{sT2+1}, v{U+8}")
    for j in range(5):
        a(f"v_readlane_b32 s{sN+j}, v{U+9}, {j}")
    a(f"v_lshl_add_u32 v{U+7}, v{U+1}, 16, v{U+7}")
    for j in range(5):
        a(f"v_cmp_lt_u32 s[{S+2*j}:{S+2*j+1}], s{sN+j}, v{U+8}")
    for j in range(5):
        a(f"s_bcnt1_i32_b64 s{sN+j}, s[{S+2*j}:{S+2*j+1}]\nv_writelane_b32 v{U}, s{sN+j}, {j}")
    a(f"s_mov_b64 exec, 31\nv_lshlrev_b32 v{U}, 2, v{U}\nds_write_b32 v{U}, v{U+7} offset:{L_INV}\ns_mov_b64 exec, -1")
    efdma(EFS[2])
    a("s_waitcnt lgkmcnt(0)\ns_barrier")
    if o.fine: stamp(a, o, 8, sST)
    a(f"ds_read_b32 v{U}, v{U+3} offset:{L_INV}")
    tcomp(1)
    a(f"s_waitcnt lgkmcnt(0)\nv_add_u32_sdwa v{U+4}, v{U}, v{U+4} dst_sel:DWORD dst_unused:UNUSED_PAD src0_sel:WORD_0 src1_sel:DWORD")
    a(f"ds_read_b32 v{U+1}, v{U+4} offset:{L_CELL}")
    for j in range(5):
        a(f"v_readlane_b32 s{sN+j}, v{U}, {j}")
    a(f"s_add_u32 s3, s{sN}, s{sN+1}\ns_add_u32 s3, s3, s{sN+2}\ns_add_u32 s3, s3, s{sN+3}\ns_add_u32 s3, s3, s{sN+4}\ns_lshr_b32 s{sCNT}, s3, 16")
    a(f"s_add_u32 s3, s{sCNT}, {8*PADN}\nv_mov_b32 v{U+2}, s3\nv_mov_b32 v{U+6}, 0\ns_mov_b64 exec, 1\nds_add_rtn_u32 v{U+2}, v{U+6}, v{U+2} offset:{L_CNT}\ns_mov_b64 exec, -1")
    a("s_waitcnt lgkmcnt(1)")
    scan(a, U + 1, [[f"v_sub_u32 v{U+5}, v{U+5}, v{U+1}"], [], [f"v_mov_b32 v{U+8}, {0x7ffffc00 | 40}", f"v_mov_b32 v{U+9}, 0"], [],
                    ["s_waitcnt lgkmcnt(0)", f"v_readfirstlane_b32 s{sT2+3}, v{U+2}"], [f"s_add_u32 s3, s{sT2+3}, s{sCNT}", f"v_lshl_add_u32 v{U+6}, v{vL}, 3, s3"]])
    a(f"s_mov_b32 exec_hi, 0x0fffffff\nv_add3_u32 v{U+1}, v{U+1}, v{U+5}, s{sT2+3}\nds_write_b32 v{U+4}, v{U+1} offset:{L_CELL}")
    a(f"ds_write_b64 v{U+6}, v[{U+8}:{U+9}] offset:{L_LIST}\ns_mov_b64 exec, -1")
    twrite()
    efdma(EFS[3])
    a("s_waitcnt lgkmcnt(2)\ns_barrier")
    if o.fine: stamp(a, o, 9, sST)
    for k in range(3):
        a(f"ds_read_b32 v{U+k}, v{RQ+4*k+1}")
    a(f"v_add_u32 v{vPW}, s{sT2+3}, v{vPW}\nv_add_u32 v{vPA}, s{sT2+3}, v{vPA}\nv_add_u32 v{vPT}, s{sT2+3}, v{vPT}\ns_lshr_b32 s{sCNT}, s{sCNT}, 3")
    for k in range(3):
        a(f"s_mov_b64 exec, s[{sM[k]}:{sM[k]+1}]\ns_waitcnt lgkmcnt(2)")
        a(f"v_add_u32_sdwa v{RK+k}, v{U+k}, v{RK+k} dst_sel:DWORD dst_unused:UNUSED_PAD src0_sel:WORD_0 src1_sel:DWORD")
        a(f"v_or_b32_sdwa v{LW+2*k}, v{U+k}, v{RQ+4*k} dst_sel:DWORD dst_unused:UNUSED_PAD src0_sel:WORD_1 src1_sel:DWORD")
        a(f"ds_write_b64 v{RK+k}, v[{LW+2*k}:{LW+2*k+1}] offset:{L_LIST}")
    a("s_mov_b64 exec, -1")
    efdma(EFS[4])
    a(f"s_cmp_eq_u32 s{sT2+2}, 0\ns_cbranch_scc1 L2_nowb")
    wbdma(4)
    a("L2_nowb:")
    a("s_waitcnt lgkmcnt(0)\ns_barrier")
    stamp(a, o, 4, sST)
    a(f"ds_read_b32 v{U}, v{vPW}\nds_read_b32 v{vWD[0]}, v{vPW} offset:{8*D}\nds_read_b32 v{vIA}, v{vPA} offset:4\nds_read_b32 v{vIT}, v{vPT} offset:4")
    a(f"s_cmp_eq_u64 s[{sM[2]}:{sM[2]+1}], 0\ns_cbranch_scc1 L2_not3")
    tcomp(2)
    twrite()
    a("L2_not3:")
    for f in range(4):
        a(f"ds_read_b128 {vr(vW+4*f,4)}, v{vLANE16} offset:{L_WB + 1024*f}")
    a("s_waitcnt lgkmcnt(4)")
    for k in range(D):
        t = sT2 + (k & 1)
        a(f"v_readlane_b32 s{sRING+k}, v{U}, {k}\ns_and_b32 s{t}, s{sRING+k}, 0xfffffc00")
        a(f"buffer_load_dwordx4 v[{vX+4*k}:{vX+4*k+3}], v{vLANE16}, s[{rX}:{rX+3}], s{t} offen")
    a(f"v_add_u32 v{vIA}, v{vIA}, v{vLA}\nv_add_u32 v{vIT}, v{vIT}, v{vLT}")
    a(f"s_and_b32 s3, s{sW}, 3\ns_lshl_b32 s3, s3, 13\nv_add_u32 v{U+4}, s3, v{vLANE16}")
    a(f"v_readlane_b32 s{sRING+D}, v{vWD[0]}, 0\ns_and_b32 s{sTMP}, s{sRING+D}, 0xfffffc00")
    a(f"s_waitcnt vmcnt({D}) lgkmcnt(0)\ns_barrier")
    stamp(a, o, 5, sST)
    if o.stamps: a("s_memtime s[92:93]")

    def rdA(buf):
        a(f"s_mov_b64 exec, s[{sMA}:{sMA+1}]\nds_read_b128 v[{vA1}:{vA1+3}], v{vIA} offset:{L_EF}")
        a(f"s_mov_b64 exec, s[{sMB}:{sMB+1}]\nds_read_b128 v[{vA2}:{vA2+3}], v{vIA} offset:{L_EF}\ns_mov_b64 exec, -1")
        a(f"ds_read_b64 v[{vT[buf]}:{vT[buf]+1}], v{vIT}")
    def zm(buf, q):
        par, h = q >> 1, q & 1
        z = vr(Z(buf, par), 16)
        return f"v_mfma_f32_32x32x16_bf16 {z}, {vr(vA2 if h else vA1, 4)}, {vr(vW + 4*q, 4)}, {z if h else '0'}"
    def unit(u):
        u %= 32
        return Z(u >> 4, u & 1, (u & 15) & ~1)
    def ta(u): return vTA + 2 * (u & 1)
    def EXP(u, j): return f"v_exp_f32 v{ta(u)+j}, v{unit(u)+j}"
    def RCP(u, j): return f"v_rcp_f32 v{ta(u)+j}, v{ta(u)+j}"
    def PADD(u): return f"v_pk_add_f32 {vr(ta(u),2)}, {vr(ta(u),2)}, 1.0 op_sel_hi:[1,0]"
    def PMUL(u): return f"v_pk_mul_f32 {vr(unit(u),2)}, {vr(unit(u),2)}, {vr(ta(u),2)}"
    rdA(0)
    for f in range(8):
        a(f"ds_read_b128 {vr(vB+4*f,4)}, v{U+4} offset:{L_WB + 4096 + 1024*f}")
    a("s_waitcnt lgkmcnt(9)")
    for q in range(4):
        a(zm(0, q))
    a("s_waitcnt lgkmcnt(0)\ns_barrier")
    a(f"s_cmp_eq_u32 s{sCNT}, 0\ns_cbranch_scc1 L2_exit\ns_sub_u32 s{sCNT}, s{sCNT}, 1\ns_nop 6")
    a(EXP(0, 0)); a(EXP(0, 1)); a(EXP(1, 0)); a(EXP(1, 1)); a(PADD(0)); a(PADD(1)); a(RCP(0, 0)); a(RCP(0, 1)); a("s_nop 0"); a(PMUL(0))
    zsteps = {5: 0, 7: 1, 9: 2, 11: 3}
    a("L2_loop:")
    for i in range(32):
        b, s = i >> 4, i & 15
        x = vX + 4 * (i % D)
        M0 = f"v_mfma_f32_4x4x4_16b_bf16 {vr(vDD,4)}, {vr(vT[b],2)}, {vr(x,2)}, 0 cbsz:4 abid:{s}"
        M1 = f"v_mfma_f32_4x4x4_16b_bf16 {vr(vDD+4,4)}, {vr(vT[b],2)}, {vr(x+2,2)}, 0 cbsz:4 abid:{s}"
        ring = sRING + (i + 1 + D) % 32
        RL = f"v_readlane_b32 s{ring}, v{vWD[((i + 1) >> 4) & 1]}, {(i + 1) & 15}"
        AND = f"s_and_b32 s{sTMP}, s{ring}, 0xfffffc00"
        if o.dbgx == "oob": AND = f"s_or_b32 s{sTMP}, s{ring}, 0x40000000"
        LD = f"buffer_load_dwordx4 {vr(x,4)}, v{vLANE16}, s[{rX}:{rX+3}], s{sTMP} offen"
        WT = f"s_waitcnt vmcnt({D-1})"
        sel = "op_sel_hi:[0,1,1]" if s % 2 == 0 else "op_sel:[1,0,0]"
        FM = [f"v_pk_fma_f32 {vr(vACC+2*q,2)}, {vr(Z(b, q >> 1, s & ~1),2)}, {vr(vDD+2*q,2)}, {vr(vACC+2*q,2)} {sel}" for q in range(4)]
        ON = f"s_set_gpr_idx_on s{sRING + i}, gpr_idx(SRC2,DST)"
        OFF = "s_set_gpr_idx_off"
        if o.prio and i % o.prio == 0:
            a(f"s_setprio {3 - (i // o.prio) % 4}")
        if s == 0:
            a(f"ds_read_b32 v{vIA}, v{vPA} offset:{4 + 128*(b+1)}\nds_read_b32 v{vIT}, v{vPT} offset:{4 + 128*(b+1)}")
            a(f"ds_read_b32 v{vWD[1-b]}, v{vPW} offset:{8*D + 128*(b+1)}")
        if s == 2:
            a(f"s_waitcnt lgkmcnt(0)\nv_add_u32 v{vIA}, v{vIA}, v{vLA}\nv_add_u32 v{vIT}, v{vIT}, v{vLT}")
            rdA(1 - b)
        if s == min(zsteps):
            a("s_waitcnt lgkmcnt(0)")
        E0, E1, R0, R1 = EXP(i+2, 0), EXP(i+2, 1), RCP(i+1, 0), RCP(i+1, 1)
        PA_, PM_ = PADD(i+2), PMUL(i+1)
        if s in zsteps: seq = [WT, M0, RL, M1, zm(1 - b, zsteps[s]), E0, E1, R0, R1, LD, PA_, PM_, ON] + FM + [OFF, AND]
        else: seq = [E0, WT, M0, E1, M1, RL, R0, LD, R1, PA_, PM_, ON] + FM + [OFF, AND]
        for q in seq:
            a(q)
        if (i + 1) % G == 0:
            a(f"s_sub_u32 s{sCNT}, s{sCNT}, {G}\ns_cbranch_scc1 L2_exit")
    a(f"v_add_u32 v{vPW}, 256, v{vPW}\nv_add_u32 v{vPA}, 256, v{vPA}\nv_add_u32 v{vPT}, 256, v{vPT}")
    a("s_branch L2_loop")
    a("L2_more:")
    a(f"s_lshl_b32 s3, s2, 10\ns_waitcnt vmcnt(0) lgkmcnt(0)\nv_add_u32 v{U+1}, s3, v{vLANE16}\ns_barrier\ns_branch L2_round")
    a("L2_exit:")
    a(f"s_add_u32 s{sR0}, s{sR0}, {CAP}\ns_cmp_lt_u32 s{sR0}, s{sTOT}\ns_cbranch_scc1 L2_more")
    if not o.fine: stamp(a, o, 6, sST)
    if o.stamps: a("s_memtime s[94:95]")
    Q = vW
    a(f"s_mov_b32 s{sT2}, 0xbf317218\ns_mov_b32 s{sT2+1}, s{sT2}")
    a(f"v_lshlrev_b32 v{Q+2}, 2, v{vL}")
    for s in range(5):
        c = vACC + 8 * s
        a(f"s_and_b32 s3, s{sN+s}, 0xffff\ns_mul_i32 s3, s3, 1261\ns_lshr_b32 s3, s3, 16\ns_mul_i32 s3, s3, {4*AGS}\nv_add_u32 v{Q+8+s}, s3, v{Q+2}")
        for q in range(4):
            a(f"v_pk_mul_f32 {vr(c+2*q,2)}, {vr(c+2*q,2)}, s[{sT2}:{sT2+1}]")
        for oo in range(4):
            a(f"v_cvt_pk_bf16_f32 v{c+oo}, v{c+oo}, v{c+4+oo}")
        for oo in range(4):
            a(f"ds_write_b32 v{Q+8+s}, v{c+oo} offset:{L_AGG + oo*AGS}")
    a(f"s_mul_i32 s{sTMP}, s{sPAR}, {80*AGS}")
    a(f"v_and_b32 v{Q+3}, 15, v{vL}\nv_lshrrev_b32 v{Q+4}, 4, v{vL}\nv_mul_u32_u24 v{Q+5}, {AGS}, v{Q+3}\nv_lshl_add_u32 v{Q+5}, v{Q+4}, 4, v{Q+5}\nv_add_u32 v{Q+5}, s{sTMP}, v{Q+5}")
    a(f"s_mul_i32 s{sT2}, s{sPAR}, {20*256}\ns_add_u32 s{sT2}, s{sT2}, s2\ns_lshl_b32 s{sT2}, s{sT2}, 10\ns_and_b32 s3, s{sW}, 3\ns_lshl_b32 s3, s3, 8\ns_add_u32 s{sT2}, s{sT2}, s3")
    a(f"v_lshlrev_b32 v{Q+4}, 18, v{Q+4}\nv_lshl_add_u32 v{Q+4}, v{Q+3}, 4, v{Q+4}\nv_add_u32 v{Q+4}, s{sT2}, v{Q+4}")
    a("s_waitcnt lgkmcnt(0)\ns_barrier")
    if not o.fine: stamp(a, o, 7, sST)
    AF = vACC
    DF = vACC + 32
    def rdtile(k):
        for ks in range(4):
            a(f"ds_read_b128 {vr(AF+16*(k&1)+4*ks,4)}, v{Q+5} offset:{L_AGG + 16*k*AGS + 64*ks}")
    rdtile(0)
    for k in range(5):
        if k < 4:
            rdtile(k + 1)
        d = DF + 8 * (k & 1)
        for ks in range(4):
            a(f"s_waitcnt lgkmcnt({(4 if k < 4 else 0) + 3 - ks})")
            for par in range(2):
                a(f"v_mfma_f32_16x16x32_bf16 {vr(d+4*par,4)}, {vr(AF+16*(k&1)+4*ks,4)}, {vr(vB+8*ks+4*par,4)}, {'0' if ks == 0 else vr(d+4*par,4)}")
        def fin(kk):
            dd = DF + 8 * (kk & 1)
            t = Q + 8 + 4 * (kk & 1)
            for q in range(4):
                a(f"v_cvt_pk_bf16_f32 v{t+q}, v{dd+2*q}, v{dd+2*q+1}")
            a(f"s_mov_b32 s3, {kk << 20}\nbuffer_store_dwordx4 {vr(t,4)}, v{Q+4}, s[{rOUT}:{rOUT+3}], s3 offen {o.st2}")
        if k > 0:
            fin(k - 1)
        if k == 4:
            a("s_nop 3")
            fin(4)
    if not o.fine: stamp(a, o, 8, sST)
    if o.stamps:
        a("s_waitcnt vmcnt(0)")
    if not o.fine: stamp(a, o, 9, sST)
    a("L2_fin:")
    stamp_out(a, o, 12, sST, sWS, sW, 1, Q)
    a("L2_end:\ns_endpgm")
    return a.text(), NV, 102

def k0(o):
    import copy
    off, nbytes = {"x": (0, N*1024), "ef": (32, E*32), "Y": (24, E*8), "src": (8, E*4), "dst": (16, E*4), "out": (64, N*1024), "ws": (80, N*1024)}[o.k0]
    a = A()
    oo = copy.copy(o); oo.stamps = 1
    a(f"s_load_dwordx2 s[4:5], s[0:1], {off}\ns_load_dwordx2 s[20:21], s[0:1], 80")
    stamp(a, oo, 0, 60)
    a("s_cmp_ge_u32 s2, 256\ns_cbranch_scc1 L0_end\nv_lshrrev_b32 v1, 6, v0\nv_lshlrev_b32 v2, 4, v0\nv_readfirstlane_b32 s22, v1\ns_waitcnt lgkmcnt(0)")
    srd(a, 8, 4, nbytes)
    per = nbytes // 256
    a(f"s_mul_i32 s3, s2, {per}")
    for j in range((per + 10239) // 10240):
        if (j + 1) * 10240 > per:
            a(f"v_cmp_gt_u32 vcc, {(per - j*10240 + 15) // 16}, v0\nv_mov_b32 v3, 0x7ffffff0\ns_nop 0\nv_cndmask_b32 v2, v3, v2, vcc")
        a(f"buffer_load_dwordx4 v[{4+4*j}:{7+4*j}], v2, s[8:11], s3 offen\ns_add_u32 s3, s3, 10240")
    a("s_waitcnt vmcnt(0)")
    for k in range(1, 6): stamp(a, oo, k, 60)
    stamp_out(a, oo, 6, 60, 20, 22, 0, 30)
    a("L0_end:\ns_endpgm")
    return a.text(), 40, 80

def build(o):
    ref = open("cdna_kernels/" + NAME + ".s.ref").read().split("\n")
    head = [l for l in ref if l.startswith(";") and "@launch" not in l and "Override" not in l and "grid=ceil" not in l]
    out = "\n".join(head) + "\n"
    if o.k0:
        out += f"; @launch kernel=tfn_k0_kernel grid=(256,1,1) block=(640,1,1) lds=83968\n"
    out += f"; @launch kernel=tfn_bin_kernel grid=(256,1,1) block=(640,1,1) lds=83968\n"
    out += f"; @launch kernel={NAME}_kernel grid=(256,1,1) block=(512,1,1) lds={LDS2}\n"
    if o.probe:
        out += f"; @launch kernel=tfn_probe_kernel grid=(1,1,1) block=(64,1,1) lds=0\n"
    out += "; generated by gen/gen2.py\n"
    out += '.amdgcn_target "amdgcn-amd-amdhsa--gfx950"\n.text\n'
    ks = [("tfn_bin_kernel",) + k1(o), (NAME + "_kernel",) + k2(o)]
    if o.k0:
        ks.append(("tfn_k0_kernel",) + k0(o))
    if o.probe:
        ks.append(("tfn_probe_kernel",) + k3(o))
    for nm, t, v, s in ks:
        out += f".globl {nm}\n.p2align 8\n.type {nm},@function\n{nm}:\n" + t
    for nm, t, v, s in ks:
        out += KD.format(name=nm, v=v, s=s, acc=(v + 3) // 4 * 4)
    return out

def parser():
    p = argparse.ArgumentParser()
    p.add_argument("-o", default="cdna_kernels/" + NAME + ".s")
    p.add_argument("--D", type=int, default=8)
    p.add_argument("--G", type=int, default=4)
    p.add_argument("--prio", type=int, default=4)
    p.add_argument("--st1", default="sc0 sc1")
    p.add_argument("--st2", default="sc0 sc1")
    p.add_argument("--d1", type=int, default=2)
    p.add_argument("--d2", type=int, default=4)
    p.add_argument("--b2", type=int, default=1)
    p.add_argument("--efs", default="21111")
    p.add_argument("--dfirst", type=int, default=1)
    p.add_argument("--wsoff", type=int, default=0)
    p.add_argument("--d3", type=int, default=4)
    p.add_argument("--tabpos", type=int, default=0)
    p.add_argument("--k2off", type=int, default=0)
    p.add_argument("--k0", default="")
    p.add_argument("--rot", type=int, default=1)
    p.add_argument("--auxlate", type=int, default=0)
    p.add_argument("--nplain", type=int, default=0)
    p.add_argument("--pf2", type=int, default=0)
    p.add_argument("--fine", type=int, default=0)
    p.add_argument("--cpf", type=int, default=76)
    p.add_argument("--probe", default="")
    p.add_argument("--dbgx", default="")
    p.add_argument("--stamps", type=int, default=0)
    return p

if __name__ == "__main__":
    o = parser().parse_args()
    open(o.o, "w").write(build(o))
```

```python
import sys, argparse
from gen import A, vr, srd, stamp, stamp_out, KD, NAME, N, E, WS_STAMP
from gen2 import scan, R39, R40

CH, CS = 1250, 1256
WS_EPOCH = 0
WS_TABLE = 0x1000
WS_AUX   = 0x100000
WS_EF    = 0x800000
AUX_BYTES = 256 * CS * 16
EF_BYTES = 256 * CS * 32

CAP = 1536
PADN = 60
NWIN = 12
L_LIST = 0
L_AGG = (CAP + 8 * PADN) * 8
L_CELL = L_AGG
L_INV = L_CELL + 2304
L_CNT = L_INV + 256
L_REC = L_CELL + 4096
L_WB = L_REC + CAP * 4
L_EF = L_WB + 36864
L_T = L_EF + CAP * 32
L_TBL = L_T + CAP * 32
L_CG = L_TBL + 1024
LDS = L_CG + 1024
AGS = 288
assert L_AGG + 160 * AGS <= L_EF and L_EF < 65536 and LDS <= 163840
L_HIST, L_BASE, L_ID = 0, 1024, 2048
L_AUX, L_RAW = L_EF, L_T

def kern(o):
    a = A()
    D, G = o.D, o.G
    sX, sSRC, sDST, sY, sEFI, sWR, sCG, sWM, sOUT, sWS = 4, 6, 8, 10, 12, 14, 16, 18, 20, 22
    rX, rAUX, rEF, rOUT = 4, 8, 12, 16
    sW, sTOT, sTAG, sPAR, sR0, sCNT, sBASE, sTMP = 24, 25, 26, 27, 28, 29, 30, 31
    sMA, sMB = 32, 34
    sRING = 36
    S = sRING
    sM = [S + 20, S + 22, S + 24]
    rPA, rPE = S + 12, S + 16
    sT2, sST, sN, sRK = 68, 72, 96, 101
    vLANE16, vLA, vLT, vPW, vPA, vPT = 1, 2, 3, 4, 5, 6
    vWD = [7, 8]
    vIA, vIT, vL = 9, 10, 11
    vTA, vDD, vA1, vA2 = 12, 16, 24, 28
    vT = [32, 34]
    vW, vB, vACC = 36, 52, 84
    vZ = vACC + 48
    vX = vZ + 64
    vCG = vX + 4 * D
    NV = vCG + 2
    assert NV <= 256
    P, U = vZ, vTA
    def Z(buf, par, s=0): return vZ + 32 * buf + 16 * par + s
    LDF = o.ldf

    DS_, SR_, YY, QA, RKP, RC, HC, HB, T0 = P, P + 4, P + 8, P + 14, P + 17, P + 20, P + 32, P + 36, P + 40
    TR = vX
    a("s_load_dwordx16 s[4:19], s[0:1], 0\ns_load_dwordx2 s[22:23], s[0:1], 80\ns_load_dwordx2 s[20:21], s[0:1], 64")
    stamp(a, o, 0, sST)
    a("s_cmp_ge_u32 s2, 256\ns_cbranch_scc1 L_end")
    a(f"v_mul_u32_u24 v{T0}, 3, v0\ns_mul_i32 s3, s2, {CH}\nv_min_u32 v{T0}, {CH-3}, v{T0}\nv_add_lshl_u32 v{T0+1}, v{T0}, s3, 2")
    a(f"v_lshrrev_b32 v{U}, 6, v0\nv_and_b32 v{U+1}, 255, v0\nv_lshlrev_b32 v{U+1}, 2, v{U+1}\nv_mov_b32 v{U+4}, 0")
    a(f"v_readfirstlane_b32 s{sW}, v{U}\nds_write_b32 v{U+1}, v{U+4} offset:{L_HIST}\nv_lshlrev_b32 v{T0+2}, 1, v{T0+1}")
    a("s_waitcnt lgkmcnt(0)")
    a(f"global_load_dwordx3 v[{DS_}:{DS_+2}], v{T0+1}, s[{sDST}:{sDST+1}]")
    a(f"s_load_dword s{sTAG}, s[{sWS}:{sWS+1}], {WS_EPOCH}\ns_barrier")
    a(f"global_load_dwordx3 v[{SR_}:{SR_+2}], v{T0+1}, s[{sSRC}:{sSRC+1}]")
    a(f"global_load_dwordx4 v[{YY}:{YY+3}], v{T0+2}, s[{sY}:{sY+1}]\nglobal_load_dwordx2 v[{YY+4}:{YY+5}], v{T0+2}, s[{sY}:{sY+1}] offset:16")
    C = P + 56
    vRA, vRB = P + 62, P + 63
    a(f"v_lshlrev_b32 v{C}, 4, v0\nv_and_b32 v{vL}, 63, v0\ns_lshl_b32 s{sBASE}, s{sW}, 10\ns_lshl_b32 s3, s3, 5\ns_add_u32 s{sEFI}, s{sEFI}, s3\ns_addc_u32 s{sEFI+1}, s{sEFI+1}, 0")
    for j in range(1, 6):
        a(f"v_add_u32 v{C+j}, {8192*j}, v{C}")
    a(f"v_min_u32 v{T0+3}, {CH*32-16}, v{C+4}\nv_lshlrev_b32 v{vLANE16}, 4, v{vL}")
    a("s_barrier")
    nd = [0]
    def dma(n):
        for _ in range(n):
            j = nd[0]; nd[0] += 1
            if j < 5:
                a(f"s_add_u32 m0, s{sBASE}, {L_RAW + 8192*j}\ns_nop 0\nglobal_load_lds_dwordx4 v{C+j if j < 4 else T0+3}, s[{sEFI}:{sEFI+1}]")
            elif j < 9:
                a(f"s_add_u32 m0, s{sBASE}, {L_WB + 8192*(j-5)}\ns_nop 0\nglobal_load_lds_dwordx4 v{C+j-5}, s[{sWM}:{sWM+1}]")
            else:
                a(f"s_add_u32 s{sT2+2}, s{sBASE}, {L_WB + 32768}\nv_min_u32 v{T0+13}, 112, v{vLANE16}\ns_cmp_lt_u32 s{sW}, 4\ns_cselect_b64 vcc, -1, 0")
                a(f"s_cselect_b32 m0, s{sT2+2}, {L_CG}\ns_cselect_b64 s[{sT2}:{sT2+1}], s[{sWR}:{sWR+1}], s[{sCG}:{sCG+1}]\nv_cndmask_b32 v{T0+13}, v{T0+13}, v{C}, vcc")
                a(f"global_load_lds_dwordx4 v{T0+13}, s[{sT2}:{sT2+1}]")
    PD = [int(c, 16) for c in o.pd]; assert sum(PD) == 10 and len(PD) == 4 and sum(PD[:3]) >= 5
    dma(PD[0])
    def init_lds():
        a(f"v_lshlrev_b32 v{vRA}, 2, v0\nv_lshlrev_b32 v{U+2}, 3, v0\nv_mov_b32 v{U+4}, 0\nv_mov_b32 v{U+5}, 0\nv_mov_b32 v{U+3}, 0x03000000")
        a(f"ds_write_b64 v{U+2}, v[{U+4}:{U+5}] offset:{L_CELL}")
        for k in range(3):
            a(f"ds_write_b32 v{vRA}, v{U+3} offset:{L_REC + 2048*k}")
        a(f"v_lshrrev_b32 v{vRB}, 1, v0\nv_lshlrev_b32 v{vRB}, 2, v{vRB}")
    init_lds()
    a(f"v_cmp_gt_u32 vcc, {CH//3}, v0\ns_mov_b64 s[{S}:{S+1}], vcc\nv_cmp_gt_u32 vcc, {CH//3+1}, v0\ns_mov_b64 s[{S+2}:{S+3}], vcc")
    a(f"v_mov_b32 v{U}, 1\ns_movk_i32 s{S+4}, {N // 8}\ns_lshr_b32 s{sPAR}, s{sW}, 2\ns_mov_b32 s{sR0}, 0")
    a(f"s_waitcnt vmcnt({3 + PD[0]})")
    stamp(a, o, 1, sST)
    a(f"s_mov_b64 exec, s[{S+2}:{S+3}]")
    for j in (1, 2, 0):
        if j == 0: a(f"s_mov_b64 exec, s[{S}:{S+1}]")
        a(f"v_and_b32 v{RC+4*j+3}, 7, v{DS_+j}\nv_bfe_u32 v{RKP+j}, v{DS_+j}, 3, 5\nv_lshl_add_u32 v{QA+j}, v{RC+4*j+3}, 5, v{RKP+j}\nv_lshlrev_b32 v{QA+j}, 2, v{QA+j}")
        a(f"ds_add_rtn_u32 v{RKP+j}, v{QA+j}, v{U} offset:{L_HIST}")
    a("s_mov_b64 exec, -1")
    dma(PD[1])
    a("s_waitcnt lgkmcnt(0)\ns_barrier")
    a(f"ds_read_b128 v[{HC}:{HC+3}], v{vLANE16} offset:{L_HIST}")
    fill = []
    for j in range(3):
        fill += [f"v_lshrrev_b32 v{DS_+j}, 8, v{DS_+j}", f"v_mul_u32_u24 v{DS_+j}, {52 * 0x10001}, v{DS_+j}",
                 f"v_add_u32 v{DS_+j}, {L_CELL | (L_CELL + 48) << 16}, v{DS_+j}", f"v_add_lshl_u32 v{T0+5+j}, v{T0}, {j}, 5"]
    a(f"s_mul_i32 s3, s2, {CS}\ns_add_u32 s{sTAG}, s{sTAG}, 1\ns_waitcnt lgkmcnt(0)")
    a(f"v_add_u32 v{T0+8}, v{HC}, v{HC+1}\nv_add3_u32 v{T0+8}, v{T0+8}, v{HC+2}, v{HC+3}\nv_mov_b32 v{T0+9}, v{T0+8}")
    scan(a, T0 + 9, [fill[2*i: 2*i + 2] for i in range(6)])
    a(f"v_sub_u32 v{HB}, v{T0+9}, v{T0+8}\nv_add_u32 v{HB+1}, v{HB}, v{HC}\nv_add_u32 v{HB+2}, v{HB+1}, v{HC+1}\nv_add_u32 v{HB+3}, v{HB+2}, v{HC+2}")
    a(f"ds_write_b128 v{vLANE16}, v[{HB}:{HB+3}] offset:{L_BASE}")
    a(f"s_mov_b64 exec, s[{S+2}:{S+3}]")
    for j in (1, 2, 0):
        if j == 0: a(f"s_mov_b64 exec, s[{S}:{S+1}]")
        a(f"ds_read_b32 v{QA+j}, v{QA+j} offset:{L_BASE}")
    a("s_mov_b64 exec, -1")
    a(f"s_waitcnt vmcnt({PD[0] + PD[1]})")
    for j in range(3):
        r = RC + 4 * j
        a(f"v_mad_u32_u24 v{r+3}, v{r+3}, s{S+4}, v{SR_+j}\nv_lshlrev_b32 v{r}, 10, v{SR_+j}\nv_subrev_u32 v{r+2}, {N}, v{r+3}\nv_min_u32 v{r+3}, v{r+3}, v{r+2}")
        a(f"v_mul_u32_u24 v{r+3}, {(NWIN << 17) // N}, v{r+3}\nv_lshrrev_b32 v{r+3}, 17, v{r+3}\nv_lshl_add_u32 v{r+1}, v{r+3}, 2, v{DS_+j}\nv_mov_b64 v[{r+2}:{r+3}], v[{YY+2*j}:{YY+2*j+1}]")
    a(f"s_mov_b64 exec, s[{S+2}:{S+3}]\ns_waitcnt lgkmcnt(0)")
    for j in (1, 2, 0):
        if j == 0: a(f"s_mov_b64 exec, s[{S}:{S+1}]")
        a(f"v_add_lshl_u32 v{T0+10+j}, v{QA+j}, v{RKP+j}, 4\nv_add_lshl_u32 v{QA+j}, v{QA+j}, v{RKP+j}, 1")
        a(f"ds_write_b128 v{T0+10+j}, v[{RC+4*j}:{RC+4*j+3}] offset:{L_AUX}\nds_write_b16 v{QA+j}, v{T0+5+j} offset:{L_ID}")
    a("s_mov_b64 exec, -1")
    dma(PD[2])
    for j in range(4):
        a(f"v_add_u32 v{HB+j}, s3, v{HB+j}\nv_lshl_add_u32 v{TR+2*j}, v{HC+j}, 19, v{HB+j}\nv_mov_b32 v{TR+2*j+1}, s{sTAG}")
    a(f"s_lshl_b32 s3, s3, 4\ns_add_u32 s{sTMP}, s3, {WS_AUX}\ns_add_u32 s{rPA}, s{sWS}, s{sTMP}\ns_addc_u32 s{rPA+1}, s{sWS+1}, 0\ns_mov_b32 s{rPA+2}, {CS*16}\ns_mov_b32 s{rPA+3}, 0x00020000")
    a(f"s_lshl_b32 s3, s3, 1\ns_add_u32 s{sTMP}, s3, {WS_EF}\ns_add_u32 s{rPE}, s{sWS}, s{sTMP}\ns_addc_u32 s{rPE+1}, s{sWS+1}, 0\ns_mov_b32 s{rPE+2}, {CS*32}\ns_mov_b32 s{rPE+3}, 0x00020000")
    a(f"v_and_b32 v{T0}, -2, v0\nv_and_b32 v{T0+1}, 16, v{C}\nv_add_u32 v{T0+1}, {L_RAW}, v{T0+1}")
    a("s_waitcnt lgkmcnt(0)\ns_barrier")
    stamp(a, o, 2, sST)
    for k in range(3):
        a(f"ds_read_b128 v[{P+4*k}:{P+4*k+3}], v{C+k} offset:{L_AUX}")
    for j in range(5):
        a(f"ds_read_u16 v{T0+2+j}, v{T0} offset:{L_ID + 512*j}")
    dma(PD[3])
    for k in range(3):
        a(f"s_waitcnt lgkmcnt({7-k})\nbuffer_store_dwordx4 v[{P+4*k}:{P+4*k+3}], v{C+k}, s[{rPA}:{rPA+3}], 0 offen {o.st1}")
    a("s_waitcnt lgkmcnt(0)")
    for j in range(5):
        if j == 4: a(f"v_min_u32 v{T0+2+j}, {CH*32-32}, v{T0+2+j}\nv_and_b32 v{T0+2+j}, -16, v{T0+2+j}")
        a(f"v_add_u32 v{T0+2+j}, v{T0+2+j}, v{T0+1}")
    for r in range(0, 48, 2):
        a(f"v_mov_b64 v[{vACC+r}:{vACC+r+1}], 0")
    for r in range(0, 8, 2):
        a(f"v_mov_b64 v[{vA1+r}:{vA1+r+1}], 0")
    a(f"s_mov_b32 s{sMA}, 0x0f0f0f0f\ns_mov_b32 s{sMA+1}, s{sMA}\ns_not_b64 s[{sMB}:{sMB+1}], s[{sMA}:{sMA+1}]")
    a(f"v_lshrrev_b32 v{vLA}, 5, v{vL}\nv_lshlrev_b32 v{vLA}, 4, v{vLA}")
    a(f"v_and_b32 v{vLT}, 3, v{vL}\nv_lshlrev_b32 v{vLT}, 3, v{vLT}\nv_add_u32 v{vLT}, {L_T}, v{vLT}")
    a(f"s_mov_b32 s{rX+2}, {N*1024}\ns_mov_b32 s{rX+3}, 0x00020000")
    srd(a, rAUX, sWS, AUX_BYTES, WS_AUX)
    srd(a, rEF, sWS, EF_BYTES, WS_EF)
    srd(a, rOUT, sOUT, N * 1024)
    a(f"s_mov_b32 s{sRK}, 0\ns_cmp_lt_u32 s2, 16\ns_cbranch_scc1 L_r40")
    for nm, R in (("39", R39), ("40", R40)):
        if nm == "40": a("s_branch L_rd\nL_r40:")
        for w, r in enumerate(R):
            a(f"s_cmp_eq_u32 s{sW}, {w}\ns_cselect_b32 s{sRK}, {hex(sum(x << (6*i) for i, x in enumerate(r)))}, s{sRK}")
    a("L_rd:")
    a("s_waitcnt vmcnt(8)\ns_barrier")
    stamp(a, o, 3, sST)
    for j in range(5):
        a(f"ds_read_b128 v[{P+12+4*j}:{P+15+4*j}], v{T0+2+j}")
    for j in range(5):
        a(f"s_waitcnt lgkmcnt({4-j})\nbuffer_store_dwordx4 v[{P+12+4*j}:{P+15+4*j}], v{C+j}, s[{rPE}:{rPE+3}], 0 offen {o.st1}")
    a(f"s_lshl_b32 s3, s2, 11\ns_add_u32 s3, s3, {WS_TABLE}\nv_add_u32 v{T0}, s3, v{vLANE16}")
    a(f"s_and_b32 s3, s2, 7\ns_lshl_b32 s3, s3, 7\ns_bfe_u32 s{sTMP}, s2, {(3 << 16) | 5}\ns_lshl_b32 s{sTMP}, s{sTMP}, 4\ns_add_u32 s3, s3, s{sTMP}")
    a(f"s_and_b32 s{sTMP}, s2, 8\ns_add_u32 s3, s3, s{sTMP}\ns_and_b32 s{sTMP}, s2, 16\ns_lshl_b32 s{sTMP}, s{sTMP}, 6\ns_add_u32 s3, s3, s{sTMP}\ns_add_u32 s3, s3, {WS_TABLE}")
    a(f"v_lshl_add_u32 v{T0+1}, v0, 11, s3")
    a("s_waitcnt vmcnt(0)\ns_barrier")
    stamp(a, o, 4, sST)
    a(f"s_cmp_eq_u32 s{sW}, 7\ns_cbranch_scc0 L_nopub")
    a(f"global_store_dwordx4 v{T0}, v[{TR}:{TR+3}], s[{sWS}:{sWS+1}] sc0 sc1\nglobal_store_dwordx4 v{T0}, v[{TR+4}:{TR+7}], s[{sWS}:{sWS+1}] offset:1024 sc0 sc1")
    a("L_nopub:")
    F = P
    a(f"v_lshrrev_b32 v{U}, 5, v{vL}\nv_and_b32 v{U+1}, 31, v{vL}\nv_lshlrev_b32 v{U+1}, 2, v{U+1}\nv_lshl_add_u32 v{U}, v{U}, 11, v{U+1}")
    for h in range(2):
        if h: a("s_waitcnt lgkmcnt(7)")
        for e in range(8):
            a(f"ds_read_b32 v{F+8*h+e}, v{U} offset:{L_WB + 32768 + 256*e + 128*h}")
    a(f"v_and_b32 v{U+2}, 3, v{vL}\nv_bfe_u32 v{U+3}, v{vL}, 2, 2\nv_lshlrev_b32 v{U+3}, 1, v{U+3}\nv_lshl_add_u32 v{U+2}, v{U+2}, 5, v{U+3}\nv_add_u32 v{U+2}, {L_CG}, v{U+2}")
    a(f"s_mov_b32 s{sT2}, 0xbfb8aa3b\ns_mov_b32 s{sT2+1}, s{sT2}\ns_mov_b32 s{sT2+2}, 0x05040100\ns_mov_b32 s{sT2+3}, 0x07060302")
    a(f"s_and_b32 s3, s{sW}, 3\ns_lshl_b32 s3, s3, 6\nv_lshrrev_b32 v{U+4}, 4, v{vL}\nv_and_b32 v{U+5}, 15, v{vL}\nv_lshl_add_u32 v{U+5}, v{U+5}, 2, s3\nv_lshl_add_u32 v{U+4}, v{U+4}, 11, v{U+5}")
    a("s_waitcnt lgkmcnt(0)")
    for f in range(4):
        a(f"ds_read_u16 v{U+6+f}, v{U+2} offset:{8*f}")
    def brd(ks):
        for e in range(8):
            a(f"ds_read_b32 v{F+16+8*(ks&1)+e}, v{U+4} offset:{L_WB + 8192*ks + 256*e}")
    brd(0)
    for h in range(2):
        for ep in range(4):
            x0 = F + 8 * h + 2 * ep
            a(f"v_lshlrev_b32 v{F+32}, 16, v{x0}\nv_lshlrev_b32 v{F+33}, 16, v{x0+1}\nv_and_b32 v{x0}, 0xffff0000, v{x0}\nv_and_b32 v{x0+1}, 0xffff0000, v{x0+1}")
            a(f"v_pk_mul_f32 v[{F+32}:{F+33}], v[{F+32}:{F+33}], s[{sT2}:{sT2+1}]\nv_pk_mul_f32 v[{x0}:{x0+1}], v[{x0}:{x0+1}], s[{sT2}:{sT2+1}]")
            a(f"v_cvt_pk_bf16_f32 v{vW+4*h+ep}, v{F+32}, v{F+33}\nv_cvt_pk_bf16_f32 v{vW+8+4*h+ep}, v{x0}, v{x0+1}")
    a(f"s_waitcnt lgkmcnt(0)\nv_lshl_or_b32 v{vCG}, v{U+7}, 16, v{U+6}\nv_lshl_or_b32 v{vCG+1}, v{U+9}, 16, v{U+8}")
    for ks in range(4):
        if ks < 3:
            if ks: a("s_waitcnt lgkmcnt(7)")
            brd(ks + 1)
        if ks > 0: a(f"s_waitcnt lgkmcnt({8 if ks < 3 else 0})")
        for ep in range(4):
            x0 = F + 16 + 8 * (ks & 1) + 2 * ep
            a(f"v_perm_b32 v{vB+8*ks+ep}, v{x0+1}, v{x0}, s{sT2+2}\nv_perm_b32 v{vB+8*ks+4+ep}, v{x0+1}, v{x0}, s{sT2+3}")
    a(f"s_cmp_eq_u32 s{sPAR}, 0\ns_cbranch_scc0 L_polled\ns_mov_b32 s3, 0")
    a("L_poll:")
    a(f"global_load_dwordx2 v[{U}:{U+1}], v{T0+1}, s[{sWS}:{sWS+1}] sc1\ns_add_u32 s3, s3, 1\ns_waitcnt vmcnt(0)")
    a(f"v_cmpx_ne_u32 vcc, s{sTAG}, v{U+1}\ns_cbranch_execz L_pok\ns_cmp_lt_u32 s3, 400000\ns_cbranch_scc1 L_poll\nv_mov_b32 v{U}, 0")
    a("L_pok:")
    a(f"s_mov_b64 exec, -1\nv_add_u32 v{U+2}, {L_TBL}, v{vRA}\nds_write_b32 v{U+2}, v{U}")
    a("L_polled:")
    a("L_round:")
    TB = P + 8
    RQ = P + 8
    DL = P + 20
    RK = P + 0
    LW = P + 26
    TQ = P + 32
    a(f"v_add_u32 v{U+3}, {L_TBL}, v{vLANE16}\ns_and_b32 s{sTMP}, s{sW}, 3\nv_mov_b32 v{TB+8}, 0")
    a("s_waitcnt lgkmcnt(0)\ns_barrier")
    stamp(a, o, 5, sST)
    a(f"ds_read_b128 v[{TB}:{TB+3}], v{U+3}\ns_waitcnt lgkmcnt(0)")
    for j in range(4):
        a(f"v_lshrrev_b32 v{TB+4+j}, 19, v{TB+j}")
    a(f"v_add_u32 v{TB+10}, v{TB+4}, v{TB+5}\nv_add3_u32 v{U}, v{TB+10}, v{TB+6}, v{TB+7}")
    scan(a, U, [[f"v_add_u32 v{U+1}, s{sR0}, v{U}", f"v_mov_b32 v{TB+9}, v{TB+4}"],
                [f"v_add_u32 v{TB+11}, v{TB+10}, v{TB+6}", f"s_set_gpr_idx_on s{sTMP}, gpr_idx(SRC0)", f"v_mov_b32 v{U+2}, v{TB}", f"v_mov_b32 v{U+3}, v{TB+4}", f"v_mov_b32 v{U+4}, v{TB+8}", "s_set_gpr_idx_off"],
                [f"v_and_b32 v{U+2}, 0x7ffff, v{U+2}", f"v_sub_u32 v{U+4}, v{U+4}, v{U+1}"],
                [f"v_subrev_u32 v{U+5}, s{sPAR}, v{U+3}", f"s_mov_b32 s{sTMP}, s{sPAR}"]])
    a(f"v_add_u32 v{U+4}, v{U+4}, v{U}\nv_readlane_b32 s{sTOT}, v{U}, 63\nv_sub_u32 v{U+2}, v{U+2}, v{U+4}\nv_add_lshl_u32 v{U+6}, v{U+4}, s{sPAR}, 2")
    a(f"s_cmp_gt_u32 s{sTOT}, {CAP}\ns_cbranch_scc1 L_exp")
    NX = 6
    for i in range(NX):
        a(f"v_cmpx_lt_i32 vcc, {2*i}, v{U+5}\nds_write_b32 v{U+6}, v{U+2} offset:{L_REC + 8*i}")
    a(f"v_cmpx_lt_i32 vcc, {2*NX}, v{U+5}\ns_cbranch_execz L_expd\ns_add_u32 s{sTMP}, s{sTMP}, {2*NX}")
    a("L_exp:")
    a(f"s_mov_b64 exec, -1\nv_cmp_lt_u32 vcc, s{sTMP}, v{U+3}\ns_cbranch_vccz L_expd")
    a(f"v_add_u32 v{U+7}, s{sTMP}, v{U+4}\ns_movk_i32 s3, {CAP}\nv_cmp_gt_u32 s[{sT2}:{sT2+1}], s3, v{U+7}\nv_lshlrev_b32 v{U+7}, 2, v{U+7}\ns_and_b64 exec, vcc, s[{sT2}:{sT2+1}]")
    a(f"ds_write_b32 v{U+7}, v{U+2} offset:{L_REC}\ns_add_u32 s{sTMP}, s{sTMP}, 2\ns_branch L_exp")
    a("L_expd:")
    a("s_mov_b64 exec, -1\ns_waitcnt lgkmcnt(0)\ns_barrier")
    for k in range(3):
        a(f"ds_read_b32 v{U+k}, v{vRA} offset:{L_REC + 2048*k}")
    for j in range(6):
        a(f"ds_read_b32 v{DL+j}, v{vRB} offset:{L_REC + 1024*j}")
    for k in range(3):
        a(f"s_waitcnt lgkmcnt({8-k})\nv_lshl_add_u32 v{U+k}, v{U+k}, 4, v{C+k}")
        a(f"buffer_load_dwordx4 v[{RQ+4*k}:{RQ+4*k+3}], v{U+k}, s[{rAUX}:{rAUX+3}], 0 offen {LDF}")
    a("s_waitcnt lgkmcnt(0)")
    for j in range(6):
        a(f"v_lshl_add_u32 v{DL+j}, v{DL+j}, 5, v{C+j}")
    a("s_barrier")
    nef = [0]
    def efdma(n):
        for _ in range(n):
            j = nef[0]; nef[0] += 1
            a(f"s_add_u32 m0, s{sBASE}, {L_EF + 8192*j}\ns_nop 0\nbuffer_load_dwordx4 v{DL+j}, s[{rEF}:{rEF+3}], 0 offen {LDF} lds")
    EFS = [int(c) for c in o.efs]; assert sum(EFS) == 6 and len(EFS) == 5
    efdma(EFS[0])
    a(f"s_sub_u32 s{sCNT}, s{sTOT}, s{sR0}\ns_min_u32 s{sCNT}, s{sCNT}, {CAP}\ns_lshl_b32 s3, s{sCNT}, 4")
    for k in range(3):
        a(f"v_cmp_gt_u32 s[{sM[k]}:{sM[k]+1}], s3, v{C+k}\nv_lshlrev_b32 v{LW+2*k+1}, 1, v{C+k}")
    a(f"v_and_b32 v{vPW}, 15, v{vL}\nv_lshlrev_b32 v{vPW}, 3, v{vPW}")
    a(f"v_bfe_u32 v{vPA}, v{vL}, 3, 2\nv_and_b32 v{U}, 3, v{vL}\nv_lshl_add_u32 v{vPA}, v{vPA}, 2, v{U}\nv_lshlrev_b32 v{vPA}, 3, v{vPA}")
    a(f"v_lshrrev_b32 v{vPT}, 2, v{vL}\nv_lshlrev_b32 v{vPT}, 3, v{vPT}")
    a(f"v_mul_u32_u24 v{U+4}, 52, v{vL}\nv_lshrrev_b32 v{U+4}, 8, v{U+4}\nv_mul_u32_u24 v{U+5}, 5, v{U+4}\nv_sub_u32 v{U+5}, v{vL}, v{U+5}")
    a(f"v_mul_u32_u24 v{U+3}, 6, v{U+5}\nv_bfe_u32 v{U+3}, s{sRK}, v{U+3}, 6\nv_lshlrev_b32 v{U+3}, 2, v{U+3}\nv_lshlrev_b32 v{U+4}, 2, v{U+4}\nv_lshlrev_b32 v{U+5}, 19, v{U+5}")
    a(f"s_mul_i32 s3, s{sW}, 5\nv_min_u32 v{U+6}, 43, v{vL}\nv_mul_u32_u24 v{U+6}, 52, v{U+6}\nv_add_u32 v{U+9}, s3, v{vL}\nv_min_u32 v{U+7}, 43, v{U+9}\nv_mul_u32_u24 v{U+7}, 52, v{U+7}")
    a(f"v_cmp_gt_u32 vcc, 40, v{vL}\nv_add_u32 v{U+8}, 1, v{vL}\nv_add_u32 v{U+9}, 1, v{U+9}\nv_cndmask_b32 v{U+8}, 0, v{U+8}, vcc")
    a(f"s_cmp_gt_u32 s{sTOT}, {CAP}\ns_cselect_b32 s{sT2+1}, 0, 8\nv_mov_b32 v{U+10}, 8")
    for k in range(3):
        a(f"s_waitcnt vmcnt({2 - k + EFS[0]})")
        if k == 0: stamp(a, o, 6, sST)
        a(f"s_mov_b64 exec, s[{sM[k]}:{sM[k]+1}]\nv_lshrrev_b32 v{U+k}, 16, v{RQ+4*k+1}\nv_and_b32 v{RQ+4*k+1}, 0xffff, v{RQ+4*k+1}")
        a(f"ds_add_u32 v{U+k}, v{U+10}\nds_add_rtn_u32 v{RK+k}, v{RQ+4*k+1}, v{U+10}")
    a("s_mov_b64 exec, -1")
    def tcomp(k):
        for oo in range(4):
            a(f"v_mfma_f32_4x4x4_16b_bf16 {vr(TQ+4*oo,4)}, {vr(vCG,2)}, {vr(RQ+4*k+2,2)}, 0 cbsz:4 abid:{oo}")
        a(f"v_add_u32 v{U+11}, {L_T}, v{LW+2*k+1}\ns_nop 0")
        for q in range(8):
            a(f"v_cvt_pk_bf16_f32 v{TQ+16+q}, v{TQ+2*q}, v{TQ+2*q+1}")
    def twrite():
        a(f"ds_write_b128 v{U+11}, v[{TQ+16}:{TQ+19}]\nds_write_b128 v{U+11}, v[{TQ+20}:{TQ+23}] offset:16")
    efdma(EFS[1])
    tcomp(0)
    a("s_waitcnt lgkmcnt(0)\ns_barrier")
    a(f"ds_read_b32 v{U}, v{U+6} offset:{L_CELL+48}\nds_read_b32 v{U+1}, v{U+7} offset:{L_CELL+48}")
    twrite()
    a(f"s_waitcnt lgkmcnt(2)\nv_mad_u32_u24 v{U+9}, v{U+1}, s{sT2+1}, v{U+9}\nv_mad_u32_u24 v{U+8}, v{U}, s{sT2+1}, v{U+8}")
    for j in range(5):
        a(f"v_readlane_b32 s{sN+j}, v{U+9}, {j}")
    a(f"v_lshl_add_u32 v{U+7}, v{U+1}, 16, v{U+7}")
    for j in range(5):
        a(f"v_cmp_lt_u32 s[{S+2*j}:{S+2*j+1}], s{sN+j}, v{U+8}")
    for j in range(5):
        a(f"s_bcnt1_i32_b64 s{sN+j}, s[{S+2*j}:{S+2*j+1}]\nv_writelane_b32 v{U}, s{sN+j}, {j}")
    a(f"s_mov_b64 exec, 31\nv_lshlrev_b32 v{U}, 2, v{U}\nds_write_b32 v{U}, v{U+7} offset:{L_INV}\ns_mov_b64 exec, -1")
    efdma(EFS[2])
    a("s_waitcnt lgkmcnt(0)\ns_barrier")
    a(f"ds_read_b32 v{U}, v{U+3} offset:{L_INV}")
    tcomp(1)
    a(f"s_waitcnt lgkmcnt(0)\nv_add_u32_sdwa v{U+4}, v{U}, v{U+4} dst_sel:DWORD dst_unused:UNUSED_PAD src0_sel:WORD_0 src1_sel:DWORD")
    a(f"ds_read_b32 v{U+1}, v{U+4} offset:{L_CELL}")
    for j in range(5):
        a(f"v_readlane_b32 s{sN+j}, v{U}, {j}")
    a(f"s_add_u32 s3, s{sN}, s{sN+1}\ns_add_u32 s3, s3, s{sN+2}\ns_add_u32 s3, s3, s{sN+3}\ns_add_u32 s3, s3, s{sN+4}\ns_lshr_b32 s{sCNT}, s3, 16")
    a(f"s_add_u32 s3, s{sCNT}, {8*PADN}\nv_mov_b32 v{U+2}, s3\nv_mov_b32 v{U+6}, 0\ns_mov_b64 exec, 1\nds_add_rtn_u32 v{U+2}, v{U+6}, v{U+2} offset:{L_CNT}\ns_mov_b64 exec, -1")
    a("s_waitcnt lgkmcnt(1)")
    scan(a, U + 1, [[f"v_sub_u32 v{U+5}, v{U+5}, v{U+1}"], [], [f"v_mov_b32 v{U+8}, {0x7ffffc00 | 40}", f"v_mov_b32 v{U+9}, 0"], [],
                    ["s_waitcnt lgkmcnt(0)", f"v_readfirstlane_b32 s{sT2+3}, v{U+2}"], [f"s_add_u32 s3, s{sT2+3}, s{sCNT}", f"v_lshl_add_u32 v{U+6}, v{vL}, 3, s3"]])
    a(f"s_mov_b32 exec_hi, 0x0fffffff\nv_add3_u32 v{U+1}, v{U+1}, v{U+5}, s{sT2+3}\nds_write_b32 v{U+4}, v{U+1} offset:{L_CELL}")
    a(f"ds_write_b64 v{U+6}, v[{U+8}:{U+9}] offset:{L_LIST}\ns_mov_b64 exec, -1")
    twrite()
    efdma(EFS[3])
    a("s_waitcnt lgkmcnt(2)\ns_barrier")
    for k in range(3):
        a(f"ds_read_b32 v{U+k}, v{RQ+4*k+1}")
    a(f"v_add_u32 v{vPW}, s{sT2+3}, v{vPW}\nv_add_u32 v{vPA}, s{sT2+3}, v{vPA}\nv_add_u32 v{vPT}, s{sT2+3}, v{vPT}\ns_lshr_b32 s{sCNT}, s{sCNT}, 3")
    for k in range(3):
        a(f"s_mov_b64 exec, s[{sM[k]}:{sM[k]+1}]\ns_waitcnt lgkmcnt(2)")
        a(f"v_add_u32_sdwa v{RK+k}, v{U+k}, v{RK+k} dst_sel:DWORD dst_unused:UNUSED_PAD src0_sel:WORD_0 src1_sel:DWORD")
        a(f"v_or_b32_sdwa v{LW+2*k}, v{U+k}, v{RQ+4*k} dst_sel:DWORD dst_unused:UNUSED_PAD src0_sel:WORD_1 src1_sel:DWORD")
        a(f"ds_write_b64 v{RK+k}, v[{LW+2*k}:{LW+2*k+1}] offset:{L_LIST}")
    a("s_mov_b64 exec, -1")
    efdma(EFS[4])
    a("s_waitcnt lgkmcnt(0)\ns_barrier")
    stamp(a, o, 7, sST)
    a(f"ds_read_b32 v{U}, v{vPW}\nds_read_b32 v{vWD[0]}, v{vPW} offset:{8*D}\nds_read_b32 v{vIA}, v{vPA} offset:4\nds_read_b32 v{vIT}, v{vPT} offset:4")
    a(f"s_cmp_eq_u64 s[{sM[2]}:{sM[2]+1}], 0\ns_cbranch_scc1 L_not3")
    tcomp(2)
    twrite()
    a("s_waitcnt lgkmcnt(2)\ns_branch L_t3\nL_not3:\ns_waitcnt lgkmcnt(0)\nL_t3:")
    for k in range(D):
        t = sT2 + (k & 1)
        a(f"v_readlane_b32 s{sRING+k}, v{U}, {k}\ns_and_b32 s{t}, s{sRING+k}, 0xfffffc00")
        a(f"buffer_load_dwordx4 v[{vX+4*k}:{vX+4*k+3}], v{vLANE16}, s[{rX}:{rX+3}], s{t} offen")
    a(f"v_add_u32 v{vIA}, v{vIA}, v{vLA}\nv_add_u32 v{vIT}, v{vIT}, v{vLT}")
    a(f"v_readlane_b32 s{sRING+D}, v{vWD[0]}, 0\ns_and_b32 s{sTMP}, s{sRING+D}, 0xfffffc00")
    a(f"s_waitcnt vmcnt({D}) lgkmcnt(0)\ns_barrier")
    stamp(a, o, 8, sST)
    a(f"s_cmp_eq_u32 s{sCNT}, 0\ns_cbranch_scc1 L_exit\ns_sub_u32 s{sCNT}, s{sCNT}, 1")

    def rdA(buf):
        a(f"s_mov_b64 exec, s[{sMA}:{sMA+1}]\nds_read_b128 v[{vA1}:{vA1+3}], v{vIA} offset:{L_EF}")
        a(f"s_mov_b64 exec, s[{sMB}:{sMB+1}]\nds_read_b128 v[{vA2}:{vA2+3}], v{vIA} offset:{L_EF}\ns_mov_b64 exec, -1")
        a(f"ds_read_b64 v[{vT[buf]}:{vT[buf]+1}], v{vIT}")
    def zm(buf, q):
        par, h = q >> 1, q & 1
        z = vr(Z(buf, par), 16)
        return f"v_mfma_f32_32x32x16_bf16 {z}, {vr(vA2 if h else vA1, 4)}, {vr(vW + 4*q, 4)}, {z if h else '0'}"
    def unit(u):
        u %= 32
        return Z(u >> 4, u & 1, (u & 15) & ~1)
    def ta(u): return vTA + 2 * (u & 1)
    def EXP(u, j): return f"v_exp_f32 v{ta(u)+j}, v{unit(u)+j}"
    def RCP(u, j): return f"v_rcp_f32 v{ta(u)+j}, v{ta(u)+j}"
    def PADD(u): return f"v_pk_add_f32 {vr(ta(u),2)}, {vr(ta(u),2)}, 1.0 op_sel_hi:[1,0]"
    def PMUL(u): return f"v_pk_mul_f32 {vr(unit(u),2)}, {vr(unit(u),2)}, {vr(ta(u),2)}"
    rdA(0)
    a("s_waitcnt lgkmcnt(1)")
    for q in range(4):
        a(zm(0, q))
    a("s_waitcnt lgkmcnt(0)\ns_nop 7\ns_nop 2")
    a(EXP(0, 0)); a(EXP(0, 1)); a(EXP(1, 0)); a(EXP(1, 1)); a(PADD(0)); a(PADD(1)); a(RCP(0, 0)); a(RCP(0, 1)); a("s_nop 0"); a(PMUL(0))
    zsteps = {5: 0, 7: 1, 9: 2, 11: 3}
    a("L_loop:")
    for i in range(32):
        b, s = i >> 4, i & 15
        x = vX + 4 * (i % D)
        M0 = f"v_mfma_f32_4x4x4_16b_bf16 {vr(vDD,4)}, {vr(vT[b],2)}, {vr(x,2)}, 0 cbsz:4 abid:{s}"
        M1 = f"v_mfma_f32_4x4x4_16b_bf16 {vr(vDD+4,4)}, {vr(vT[b],2)}, {vr(x+2,2)}, 0 cbsz:4 abid:{s}"
        ring = sRING + (i + 1 + D) % 32
        RL = f"v_readlane_b32 s{ring}, v{vWD[((i + 1) >> 4) & 1]}, {(i + 1) & 15}"
        AND = f"s_and_b32 s{sTMP}, s{ring}, 0xfffffc00"
        LD = f"buffer_load_dwordx4 {vr(x,4)}, v{vLANE16}, s[{rX}:{rX+3}], s{sTMP} offen"
        WT = f"s_waitcnt vmcnt({D-1})"
        sel = "op_sel_hi:[0,1,1]" if s % 2 == 0 else "op_sel:[1,0,0]"
        FM = [f"v_pk_fma_f32 {vr(vACC+2*q,2)}, {vr(Z(b, q >> 1, s & ~1),2)}, {vr(vDD+2*q,2)}, {vr(vACC+2*q,2)} {sel}" for q in range(4)]
        ON = f"s_set_gpr_idx_on s{sRING + i}, gpr_idx(SRC2,DST)"
        OFF = "s_set_gpr_idx_off"
        if o.prio and i % o.prio == 0:
            a(f"s_setprio {3 - (i // o.prio) % 4}")
        if s == 0:
            a(f"ds_read_b32 v{vIA}, v{vPA} offset:{4 + 128*(b+1)}\nds_read_b32 v{vIT}, v{vPT} offset:{4 + 128*(b+1)}")
            a(f"ds_read_b32 v{vWD[1-b]}, v{vPW} offset:{8*D + 128*(b+1)}")
        if s == 2:
            a(f"s_waitcnt lgkmcnt(0)\nv_add_u32 v{vIA}, v{vIA}, v{vLA}\nv_add_u32 v{vIT}, v{vIT}, v{vLT}")
            rdA(1 - b)
        if s == min(zsteps):
            a("s_waitcnt lgkmcnt(0)")
        E0, E1, R0, R1 = EXP(i+2, 0), EXP(i+2, 1), RCP(i+1, 0), RCP(i+1, 1)
        PA_, PM_ = PADD(i+2), PMUL(i+1)
        if s in zsteps: seq = [WT, M0, RL, M1, zm(1 - b, zsteps[s]), E0, E1, R0, R1, LD, PA_, PM_, ON] + FM + [OFF, AND]
        else: seq = [E0, WT, M0, E1, M1, RL, R0, LD, R1, PA_, PM_, ON] + FM + [OFF, AND]
        for q in seq:
            a(q)
        if (i + 1) % G == 0:
            a(f"s_sub_u32 s{sCNT}, s{sCNT}, {G}\ns_cbranch_scc1 L_exit")
    a(f"v_add_u32 v{vPW}, 256, v{vPW}\nv_add_u32 v{vPA}, 256, v{vPA}\nv_add_u32 v{vPT}, 256, v{vPT}")
    a("s_branch L_loop")
    a("L_more:")
    a(f"s_waitcnt vmcnt(0) lgkmcnt(0)\ns_barrier\nv_lshlrev_b32 v{C}, 4, v0")
    for j in range(1, 6):
        a(f"v_add_u32 v{C+j}, {8192*j}, v{C}")
    init_lds()
    a("s_branch L_round")
    a("L_exit:")
    a(f"s_add_u32 s{sR0}, s{sR0}, {CAP}\ns_cmp_lt_u32 s{sR0}, s{sTOT}\ns_cbranch_scc1 L_more")
    stamp(a, o, 9, sST)
    Q = vW
    a(f"s_mov_b32 s{sT2}, 0xbf317218\ns_mov_b32 s{sT2+1}, s{sT2}")
    a(f"v_lshlrev_b32 v{Q+2}, 2, v{vL}")
    for s in range(5):
        c = vACC + 8 * s
        a(f"s_and_b32 s3, s{sN+s}, 0xffff\ns_mul_i32 s3, s3, 1261\ns_lshr_b32 s3, s3, 16\ns_mul_i32 s3, s3, {4*AGS}\nv_add_u32 v{Q+8+s}, s3, v{Q+2}")
        for q in range(4):
            a(f"v_pk_mul_f32 {vr(c+2*q,2)}, {vr(c+2*q,2)}, s[{sT2}:{sT2+1}]")
        for oo in range(4):
            a(f"v_cvt_pk_bf16_f32 v{c+oo}, v{c+oo}, v{c+4+oo}")
        for oo in range(4):
            a(f"ds_write_b32 v{Q+8+s}, v{c+oo} offset:{L_AGG + oo*AGS}")
    a(f"s_mul_i32 s{sTMP}, s{sPAR}, {80*AGS}")
    a(f"v_and_b32 v{Q+3}, 15, v{vL}\nv_lshrrev_b32 v{Q+4}, 4, v{vL}\nv_mul_u32_u24 v{Q+5}, {AGS}, v{Q+3}\nv_lshl_add_u32 v{Q+5}, v{Q+4}, 4, v{Q+5}\nv_add_u32 v{Q+5}, s{sTMP}, v{Q+5}")
    a(f"s_mul_i32 s{sT2}, s{sPAR}, {20*256}\ns_add_u32 s{sT2}, s{sT2}, s2\ns_lshl_b32 s{sT2}, s{sT2}, 10\ns_and_b32 s3, s{sW}, 3\ns_lshl_b32 s3, s3, 8\ns_add_u32 s{sT2}, s{sT2}, s3")
    a(f"v_lshlrev_b32 v{Q+4}, 18, v{Q+4}\nv_lshl_add_u32 v{Q+4}, v{Q+3}, 4, v{Q+4}\nv_add_u32 v{Q+4}, s{sT2}, v{Q+4}")
    a(f"s_or_b32 s3, s2, s{sW}\ns_cbranch_scc1 L_noep\nv_mov_b32 v{Q+6}, s{sTAG}\nglobal_store_dword v{Q+2}, v{Q+6}, s[{sWS}:{sWS+1}] offset:{WS_EPOCH} sc0 sc1\nL_noep:")
    a("s_waitcnt lgkmcnt(0)\ns_barrier")
    stamp(a, o, 10, sST)
    AF = vACC
    DF = vACC + 32
    def rdtile(k):
        for ks in range(4):
            a(f"ds_read_b128 {vr(AF+16*(k&1)+4*ks,4)}, v{Q+5} offset:{L_AGG + 16*k*AGS + 64*ks}")
    rdtile(0)
    for k in range(5):
        if k < 4:
            rdtile(k + 1)
        d = DF + 8 * (k & 1)
        for ks in range(4):
            a(f"s_waitcnt lgkmcnt({(4 if k < 4 else 0) + 3 - ks})")
            for par in range(2):
                a(f"v_mfma_f32_16x16x32_bf16 {vr(d+4*par,4)}, {vr(AF+16*(k&1)+4*ks,4)}, {vr(vB+8*ks+4*par,4)}, {'0' if ks == 0 else vr(d+4*par,4)}")
        def fin(kk):
            dd = DF + 8 * (kk & 1)
            t = Q + 8 + 4 * (kk & 1)
            for q in range(4):
                a(f"v_cvt_pk_bf16_f32 v{t+q}, v{dd+2*q}, v{dd+2*q+1}")
            a(f"s_mov_b32 s3, {kk << 20}\nbuffer_store_dwordx4 {vr(t,4)}, v{Q+4}, s[{rOUT}:{rOUT+3}], s3 offen {o.st2}")
        if k > 0:
            fin(k - 1)
        if k == 4:
            a("s_nop 3")
            fin(4)
    if o.stamps:
        a("s_waitcnt vmcnt(0)")
    stamp(a, o, 11, sST)
    stamp_out(a, o, 12, sST, sWS, sW, 0, Q)
    a("L_end:\ns_endpgm")
    return a.text(), NV, 102

def build(o):
    ref = open("cdna_kernels/" + NAME + ".s.ref").read().split("\n")
    head = [l for l in ref if l.startswith(";") and "@launch" not in l and "Override" not in l and "grid=ceil" not in l]
    out = "\n".join(head) + "\n"
    if o.aslist:
        out += f"; @launch kernel={NAME}_kernel grid=(256,1,1) block=(512,1,1) lds={LDS}\n"
    else:
        out += f"; @launch grid=(256,1,1) block=(512,1,1) lds={LDS}\n"
    out += "; generated by gen/gen4.py\n"
    out += '.amdgcn_target "amdgcn-amd-amdhsa--gfx950"\n.text\n'
    ks = [(NAME + "_kernel",) + kern(o)]
    for nm, t, v, s in ks:
        out += f".globl {nm}\n.p2align 8\n.type {nm},@function\n{nm}:\n" + t
    for nm, t, v, s in ks:
        out += KD.format(name=nm, v=v, s=s, acc=(v + 3) // 4 * 4)
    return out

def parser():
    p = argparse.ArgumentParser()
    p.add_argument("-o", default="cdna_kernels/" + NAME + ".s")
    p.add_argument("--D", type=int, default=8)
    p.add_argument("--G", type=int, default=4)
    p.add_argument("--prio", type=int, default=4)
    p.add_argument("--st1", default="sc0 sc1")
    p.add_argument("--st2", default="sc0 sc1")
    p.add_argument("--ldf", default="sc1")
    p.add_argument("--pd", default="3223")
    p.add_argument("--efs", default="21111")
    p.add_argument("--aslist", type=int, default=0)
    p.add_argument("--stamps", type=int, default=0)
    return p

if __name__ == "__main__":
    o = parser().parse_args()
    open(o.o, "w").write(build(o))
```

```python
import sys, argparse
from gen import A, vr, srd, stamp, stamp_out, KD, NAME, N, WS_STAMP
from gen2 import scan

R39 = [[8, 14, 18, 23, 36], [3, 13, 19, 29, 37], [0, 4, 9, 17, 39], [1, 12, 21, 31, 38], [2, 16, 26, 30, 33], [6, 11, 22, 28, 34], [7, 15, 20, 25, 32], [5, 10, 24, 27, 35]]
R40 = [[1, 15, 26, 28, 34], [7, 12, 16, 29, 32], [5, 8, 21, 27, 35], [0, 13, 23, 30, 39], [4, 11, 17, 24, 37], [3, 9, 19, 25, 38], [2, 14, 20, 31, 33], [6, 10, 18, 22, 36]]

CH, CS = 1250, 1280
WS_EPOCH = 0
WS_TABLE = 0x1000
WS_AUX   = 0x100000
WS_EF    = 0x800000
AUX_BYTES = 256 * CS * 12
EF_BYTES = 256 * CS * 32
AUX_W = (CH * 12 + 127) // 128 * 128
EF_W = (CH * 32 + 127) // 128 * 128

CAP = 1536
PADN = 60
NWIN = 12
L_LIST = 0
L_AGG = (CAP + 8 * PADN) * 8
L_CELL = L_AGG
L_DEG = L_CELL + 2560
L_INV = L_DEG + 512
L_CNT = L_INV + 256
L_REC = L_CELL + 4096
L_WB = L_REC + CAP * 4
L_EF = L_WB + 36864
L_T = L_EF + CAP * 32
L_TBL = L_T + CAP * 32
L_CG = L_TBL + 1024
LDS = L_CG + 1024
AGS = 288
assert L_AGG + 160 * AGS <= L_EF and L_EF < 65536 and LDS <= 163840
L_HIST, L_BASE, L_ID = 0, 1024, 2048
L_AUX, L_RAW = L_EF, L_T

def kern(o):
    a = A()
    D, G = 8, o.G
    sX, sSRC, sDST, sY, sEFI, sWR, sCG, sWM, sOUT, sWS = 4, 6, 8, 10, 12, 14, 16, 18, 20, 22
    rX, rAUX, rEF, rOUT = 4, 8, 12, 16
    sW, sTOT, sTAG, sPAR, sR0, sCNT, sBASE, sTMP = 24, 25, 26, 27, 28, 29, 30, 31
    sMA, sMB = 32, 34
    sRING = 36
    S = sRING
    sM = [S + 20, S + 22, S + 24]
    rPA, rPE = S + 12, S + 16
    sT2, sST, sN, sRK = 68, 72, 96, 101
    vLANE16, vLA, vLT, vPW, vPA, vPT = 1, 2, 3, 4, 5, 6
    vWD = [7, 8]
    vIA, vIT, vL = 9, 10, 11
    vTA, vDD, vA1, vA2 = 12, 16, 24, 28
    vT = [32, 34]
    vW, vB, vACC = 36, 52, 84
    vZ = vACC + 48
    vX = vZ + 64
    vCG = vX + 4 * D
    vEA, vEO = vCG + 2, vCG + 3
    NV = vEO + 1
    P, U = vZ, vTA
    def Z(buf, par, s=0): return vZ + 32 * buf + 16 * par + s

    DS_, SR_, YY, QA, RKP, RC, HC, HB, T0 = P, P + 4, P + 8, P + 14, P + 17, P + 20, P + 32, P + 36, P + 40
    TR = vX
    C = P + 56
    vRA, vRB = P + 62, P + 63
    a("s_load_dwordx16 s[4:19], s[0:1], 0\ns_load_dwordx2 s[22:23], s[0:1], 80\ns_load_dwordx2 s[20:21], s[0:1], 64")
    stamp(a, o, 0, sST)
    a("s_cmp_ge_u32 s2, 256\ns_cbranch_scc1 L_end")
    a(f"v_mul_u32_u24 v{T0}, 3, v0\ns_mul_i32 s3, s2, {CH}\nv_min_u32 v{T0}, {CH-3}, v{T0}\nv_add_lshl_u32 v{T0+1}, v{T0}, s3, 2")
    a(f"v_lshrrev_b32 v{U}, 6, v0\nv_and_b32 v{U+1}, 255, v0\nv_lshlrev_b32 v{U+1}, 2, v{U+1}\nv_mov_b32 v{U+4}, 0")
    a(f"v_readfirstlane_b32 s{sW}, v{U}\nds_write_b32 v{U+1}, v{U+4} offset:{L_HIST}\nv_lshlrev_b32 v{T0+2}, 1, v{T0+1}")
    a("s_waitcnt lgkmcnt(0)")
    a(f"global_load_dwordx3 v[{DS_}:{DS_+2}], v{T0+1}, s[{sDST}:{sDST+1}]")
    a(f"s_load_dword s{sTAG}, s[{sWS}:{sWS+1}], {WS_EPOCH}\ns_barrier")
    a(f"global_load_dwordx3 v[{SR_}:{SR_+2}], v{T0+1}, s[{sSRC}:{sSRC+1}]")
    a(f"global_load_dwordx4 v[{YY}:{YY+3}], v{T0+2}, s[{sY}:{sY+1}]\nglobal_load_dwordx2 v[{YY+4}:{YY+5}], v{T0+2}, s[{sY}:{sY+1}] offset:16")
    def cpf():
        a(f"s_cmp_eq_u32 s{sW}, 7\ns_cbranch_scc0 L_nocpf\ns_cmp_lt_u32 s2, 8\ns_cbranch_scc0 L_nocpf")
        a(f"s_getpc_b64 s[{sT2}:{sT2+1}]\nL_pc:\nv_and_b32 v{U+6}, 63, v0\nv_lshlrev_b32 v{U+6}, 7, v{U+6}\nv_mov_b32 v{U+7}, 0\nv_lshl_add_u64 v[{U+8}:{U+9}], v[{U+6}:{U+7}], 0, s[{sT2}:{sT2+1}]")
        a(f"global_load_dword v{vX+8}, v[{U+8}:{U+9}], off\nv_min_u32 v{U+6}, L_end-L_pc-8192, v{U+6}\nv_add_u32 v{U+6}, 8192, v{U+6}")
        a(f"v_lshl_add_u64 v[{U+8}:{U+9}], v[{U+6}:{U+7}], 0, s[{sT2}:{sT2+1}]\nglobal_load_dword v{vX+9}, v[{U+8}:{U+9}], off")
        a("L_nocpf:")
    if o.cpf == 1: cpf()
    a(f"v_lshlrev_b32 v{C}, 4, v0\nv_and_b32 v{vL}, 63, v0\ns_lshl_b32 s{sBASE}, s{sW}, 10\ns_lshl_b32 s3, s3, 5\ns_add_u32 s{sEFI}, s{sEFI}, s3\ns_addc_u32 s{sEFI+1}, s{sEFI+1}, 0")
    for j in range(1, 6):
        a(f"v_add_u32 v{C+j}, {8192*j}, v{C}")
    a(f"v_min_u32 v{T0+3}, {CH*32-16}, v{C+4}\nv_lshlrev_b32 v{vLANE16}, 4, v{vL}")
    a("s_barrier")
    nd = [0]
    def dma(n):
        for _ in range(n):
            j = nd[0]; nd[0] += 1
            if j < 5:
                a(f"s_add_u32 m0, s{sBASE}, {L_RAW + 8192*j}\ns_nop 0\nglobal_load_lds_dwordx4 v{C+j if j < 4 else T0+3}, s[{sEFI}:{sEFI+1}]")
            elif j < 9:
                a(f"s_add_u32 m0, s{sBASE}, {L_WB + 8192*(j-5)}\ns_nop 0\nglobal_load_lds_dwordx4 v{C+j-5}, s[{sWM}:{sWM+1}]")
            else:
                a(f"s_add_u32 s{sT2+2}, s{sBASE}, {L_WB + 32768}\nv_min_u32 v{T0+13}, 112, v{vLANE16}\ns_cmp_lt_u32 s{sW}, 4\ns_cselect_b64 vcc, -1, 0")
                a(f"s_cselect_b32 m0, s{sT2+2}, {L_CG}\ns_cselect_b64 s[{sT2}:{sT2+1}], s[{sWR}:{sWR+1}], s[{sCG}:{sCG+1}]\nv_cndmask_b32 v{T0+13}, v{T0+13}, v{C}, vcc")
                a(f"global_load_lds_dwordx4 v{T0+13}, s[{sT2}:{sT2+1}]")
    PD = [int(c, 16) for c in o.pd.ljust(5, '0')]; assert sum(PD) == 10 and len(PD) == 5 and sum(PD[:3]) >= 5
    dma(PD[0])
    if o.cpf == 2: cpf()
    def init_lds():
        a(f"v_lshlrev_b32 v{vRA}, 2, v0\nv_lshlrev_b32 v{U+2}, 3, v0\nv_mov_b32 v{U+4}, 0\nv_mov_b32 v{U+5}, 0\nv_mov_b32 v{U+3}, 0x00300000")
        a(f"ds_write_b64 v{U+2}, v[{U+4}:{U+5}] offset:{L_CELL}")
        for k in range(3):
            a(f"ds_write_b32 v{vRA}, v{U+3} offset:{L_REC + 2048*k}")
        a(f"v_lshrrev_b32 v{vRB}, 1, v0\nv_lshlrev_b32 v{vRB}, 2, v{vRB}")
    init_lds()
    a(f"v_cmp_gt_u32 vcc, {CH//3}, v0\ns_mov_b64 s[{S}:{S+1}], vcc\nv_cmp_gt_u32 vcc, {CH//3+1}, v0\ns_mov_b64 s[{S+2}:{S+3}], vcc")
    a(f"v_mov_b32 v{U}, 1\ns_movk_i32 s{S+4}, {N // 8}\ns_mov_b32 s{S+5}, {L_AUX}\ns_lshr_b32 s{sPAR}, s{sW}, 2\ns_mov_b32 s{sR0}, 0")
    a(f"s_waitcnt vmcnt({3 + PD[0]})")
    stamp(a, o, 1, sST)
    a(f"s_mov_b64 exec, s[{S+2}:{S+3}]")
    for j in (1, 2, 0):
        if j == 0: a(f"s_mov_b64 exec, s[{S}:{S+1}]")
        a(f"v_and_b32 v{RC+j}, 7, v{DS_+j}\nv_bfe_u32 v{RKP+j}, v{DS_+j}, 3, 5\nv_lshl_add_u32 v{QA+j}, v{RC+j}, 5, v{RKP+j}\nv_lshlrev_b32 v{QA+j}, 2, v{QA+j}")
        a(f"ds_add_rtn_u32 v{RKP+j}, v{QA+j}, v{U} offset:{L_HIST}")
    a("s_mov_b64 exec, -1")
    dma(PD[1])
    a("s_waitcnt lgkmcnt(0)\ns_barrier")
    a(f"ds_read_b128 v[{HC}:{HC+3}], v{vLANE16} offset:{L_HIST}")
    fill = []
    for j in range(3):
        fill += [f"v_lshrrev_b32 v{DS_+j}, 8, v{DS_+j}", f"v_lshlrev_b32 v{RC+4+j}, 26, v{DS_+j}",
                 f"v_lshl_add_u32 v{DS_+j}, v{DS_+j}, 4, v{RC+4+j}", f"v_add_lshl_u32 v{T0+5+j}, v{T0}, {j}, 5"]
    a(f"s_mul_i32 s3, s2, {CS}\ns_add_u32 s{sTAG}, s{sTAG}, 1\ns_waitcnt lgkmcnt(0)")
    a(f"v_add_u32 v{T0+8}, v{HC}, v{HC+1}\nv_add3_u32 v{T0+8}, v{T0+8}, v{HC+2}, v{HC+3}\nv_mov_b32 v{T0+9}, v{T0+8}")
    scan(a, T0 + 9, [fill[2*i: 2*i + 2] for i in range(6)])
    a(f"v_sub_u32 v{HB}, v{T0+9}, v{T0+8}\nv_add_u32 v{HB+1}, v{HB}, v{HC}\nv_add_u32 v{HB+2}, v{HB+1}, v{HC+1}\nv_add_u32 v{HB+3}, v{HB+2}, v{HC+2}")
    a(f"ds_write_b128 v{vLANE16}, v[{HB}:{HB+3}] offset:{L_BASE}")
    a(f"s_mov_b64 exec, s[{S+2}:{S+3}]")
    for j in (1, 2, 0):
        if j == 0: a(f"s_mov_b64 exec, s[{S}:{S+1}]")
        a(f"ds_read_b32 v{QA+j}, v{QA+j} offset:{L_BASE}")
    a("s_mov_b64 exec, -1")
    a(f"s_waitcnt vmcnt({PD[0] + PD[1]})")
    for j in range(3):
        a(f"v_mad_u32_u24 v{RC+j}, v{RC+j}, s{S+4}, v{SR_+j}\nv_lshl_add_u32 v{DS_+j}, v{SR_+j}, 10, v{DS_+j}\nv_subrev_u32 v{RC+4+j}, {N}, v{RC+j}\nv_min_u32 v{RC+j}, v{RC+j}, v{RC+4+j}")
        a(f"v_mul_u32_u24 v{RC+j}, {(NWIN << 17) // N}, v{RC+j}\nv_lshrrev_b32 v{RC+j}, 17, v{RC+j}\nv_add_u32 v{RC+j}, v{RC+j}, v{DS_+j}")
    a(f"s_mov_b64 exec, s[{S+2}:{S+3}]\ns_waitcnt lgkmcnt(0)")
    for j in (1, 2, 0):
        if j == 0: a(f"s_mov_b64 exec, s[{S}:{S+1}]")
        a(f"v_add_lshl_u32 v{QA+j}, v{QA+j}, v{RKP+j}, 1\nv_mad_u32_u24 v{T0+10+j}, v{QA+j}, 6, s{S+5}")
        a(f"ds_write_b16 v{QA+j}, v{T0+5+j} offset:{L_ID}\nds_write2_b32 v{T0+10+j}, v{YY+2*j}, v{YY+2*j+1} offset1:1\nds_write_b32 v{T0+10+j}, v{RC+j} offset:8")
    a("s_mov_b64 exec, -1")
    dma(PD[2])
    TA_, TP_ = T0 + 14, T0 + 15
    for j in range(4):
        a(f"v_add_u32 v{HB+j}, s3, v{HB+j}\nv_lshl_add_u32 v{TR+2*j}, v{HC+j}, 19, v{HB+j}\nv_mov_b32 v{TR+2*j+1}, s{sTAG}")
    a(f"s_lshl_b32 s{sTMP}, s2, 11\ns_add_u32 s{sTMP}, s{sTMP}, {WS_TABLE}\nv_add_u32 v{TA_}, s{sTMP}, v{vLANE16}")
    a(f"s_mul_i32 s{sTMP}, s3, 12\ns_add_u32 s{sTMP}, s{sTMP}, {WS_AUX}\ns_add_u32 s{rPA}, s{sWS}, s{sTMP}\ns_addc_u32 s{rPA+1}, s{sWS+1}, 0\ns_mov_b32 s{rPA+2}, {AUX_W}\ns_mov_b32 s{rPA+3}, 0x00020000")
    a(f"s_lshl_b32 s3, s3, 5\ns_add_u32 s{sTMP}, s3, {WS_EF}\ns_add_u32 s{rPE}, s{sWS}, s{sTMP}\ns_addc_u32 s{rPE+1}, s{sWS+1}, 0\ns_mov_b32 s{rPE+2}, {EF_W}\ns_mov_b32 s{rPE+3}, 0x00020000")
    a(f"v_and_b32 v{T0}, -2, v0\nv_and_b32 v{T0+1}, 16, v{C}\nv_add_u32 v{T0+1}, {L_RAW}, v{T0+1}")
    a("s_waitcnt lgkmcnt(0)\ns_barrier")
    if not o.cyc: stamp(a, o, 2, sST)
    for k in range(2):
        a(f"ds_read_b128 v[{P+4*k}:{P+4*k+3}], v{C+k} offset:{L_AUX}")
    for j in range(5):
        a(f"ds_read_u16 v{T0+2+j}, v{T0} offset:{L_ID + 512*j}")
    dma(PD[3])
    def auxst(k):
        a(f"buffer_store_dwordx4 v[{P+4*k}:{P+4*k+3}], v{C+k}, s[{rPA}:{rPA+3}], 0 offen sc0 sc1")
    for k in range(2):
        if not o.late:
            a(f"s_waitcnt lgkmcnt({6-k})")
            auxst(k)
    a("s_waitcnt lgkmcnt(0)")
    for j in range(5):
        if j == 4: a(f"v_min_u32 v{T0+2+j}, {CH*32-32}, v{T0+2+j}\nv_and_b32 v{T0+2+j}, -16, v{T0+2+j}")
        a(f"v_add_u32 v{T0+2+j}, v{T0+2+j}, v{T0+1}")
    for r in range(0, 48, 2):
        a(f"v_mov_b64 v[{vACC+r}:{vACC+r+1}], 0")
    for r in range(0, 8, 2):
        a(f"v_mov_b64 v[{vA1+r}:{vA1+r+1}], 0")
    a(f"s_mov_b32 s{sMA}, 0x0f0f0f0f\ns_mov_b32 s{sMA+1}, s{sMA}\ns_not_b64 s[{sMB}:{sMB+1}], s[{sMA}:{sMA+1}]")
    a(f"v_lshrrev_b32 v{vLA}, 5, v{vL}\nv_lshlrev_b32 v{vLA}, 4, v{vLA}")
    a(f"v_and_b32 v{vLT}, 3, v{vL}\nv_lshlrev_b32 v{vLT}, 3, v{vLT}\nv_add_u32 v{vLT}, {L_T}, v{vLT}")
    a(f"s_mov_b32 s{rX+2}, {N*1024}\ns_mov_b32 s{rX+3}, 0x00020000")
    srd(a, rAUX, sWS, AUX_BYTES, WS_AUX)
    a(f"s_mov_b32 s{sRK}, 0\ns_cmp_lt_u32 s2, 16\ns_cbranch_scc1 L_r40")
    for nm, R in (("39", R39), ("40", R40)):
        if nm == "40": a("s_branch L_rd\nL_r40:")
        for w, r in enumerate(R):
            a(f"s_cmp_eq_u32 s{sW}, {w}\ns_cselect_b32 s{sRK}, {hex(sum(x << (6*i) for i, x in enumerate(r)))}, s{sRK}")
    a("L_rd:")
    a(f"s_and_b32 s3, s2, 7\ns_lshl_b32 s3, s3, 7\ns_bfe_u32 s{sTMP}, s2, {(3 << 16) | 5}\ns_lshl_b32 s{sTMP}, s{sTMP}, 4\ns_add_u32 s3, s3, s{sTMP}")
    a(f"s_and_b32 s{sTMP}, s2, 8\ns_add_u32 s3, s3, s{sTMP}\ns_and_b32 s{sTMP}, s2, 16\ns_lshl_b32 s{sTMP}, s{sTMP}, 6\ns_add_u32 s3, s3, s{sTMP}\ns_add_u32 s3, s3, {WS_TABLE}")
    a(f"v_and_b32 v{TP_}, 255, v0\nv_lshl_add_u32 v{TP_}, v{TP_}, 11, s3")
    assert o.late or PD[4] == 0
    dma(PD[4])
    a(f"s_waitcnt vmcnt({(0 if o.late else 2) + 5})\ns_barrier")
    stamp(a, o, 3, sST)
    for j in range(5):
        a(f"ds_read_b128 v[{P+12+4*j}:{P+15+4*j}], v{T0+2+j}")
    if o.late:
        for k in range(2): auxst(k)
    for j in range(5):
        a(f"s_waitcnt lgkmcnt({4-j})\nbuffer_store_dwordx4 v[{P+12+4*j}:{P+15+4*j}], v{C+j}, s[{rPE}:{rPE+3}], 0 offen sc0 sc1")
    srd(a, rEF, sWS, EF_BYTES, WS_EF)
    srd(a, rOUT, sOUT, N * 1024)
    a("s_waitcnt vmcnt(0)\ns_barrier")
    stamp(a, o, 4, sST)
    a(f"s_cmp_eq_u32 s{sW}, 7\ns_cbranch_scc0 L_nopub")
    a(f"global_store_dwordx4 v{TA_}, v[{TR}:{TR+3}], s[{sWS}:{sWS+1}] sc0 sc1\nglobal_store_dwordx4 v{TA_}, v[{TR+4}:{TR+7}], s[{sWS}:{sWS+1}] offset:1024 sc0 sc1")
    a("L_nopub:")
    def xpf(r0, nrows, lab):
        per = nrows * 8 // 32
        assert per <= 256
        a(f"s_cmp_eq_u32 s{sPAR}, 0\ns_cbranch_scc1 {lab}")
        a(f"s_sub_u32 s3, 0, s2\ns_and_b32 s3, s3, 7\ns_mul_i32 s3, s3, {N // 8 * 1024}\ns_lshr_b32 s{sTMP}, s2, 3\ns_mul_i32 s{sTMP}, s{sTMP}, {per*128}\ns_add_u32 s3, s3, s{sTMP}\ns_add_u32 s3, s3, {r0*1024}")
        a(f"v_and_b32 v{vX+12}, 255, v0\nv_cmp_gt_u32 vcc, {per}, v{vX+12}\nv_lshlrev_b32 v{vX+12}, 7, v{vX+12}\nv_mov_b32 v{vX+13}, 0x7fffff00\nv_cndmask_b32 v{vX+12}, v{vX+13}, v{vX+12}, vcc")
        a(f"buffer_load_dword v{vX+14}, v{vX+12}, s[{rX}:{rX+3}], s3 offen\n{lab}:")
    if o.pfa: xpf(0, o.pfa, "L_pfa")
    F, V = P, U
    a(f"v_lshrrev_b32 v{V}, 5, v{vL}\nv_and_b32 v{V+1}, 31, v{vL}\nv_lshlrev_b32 v{V+1}, 2, v{V+1}\nv_lshl_add_u32 v{V}, v{V}, 11, v{V+1}")
    for h in range(2):
        if h: a("s_waitcnt lgkmcnt(7)")
        for e in range(8):
            a(f"ds_read_b32 v{F+8*h+e}, v{V} offset:{L_WB + 32768 + 256*e + 128*h}")
    a(f"v_and_b32 v{V+2}, 3, v{vL}\nv_bfe_u32 v{V+3}, v{vL}, 2, 2\nv_lshlrev_b32 v{V+3}, 1, v{V+3}\nv_lshl_add_u32 v{V+2}, v{V+2}, 5, v{V+3}\nv_add_u32 v{V+2}, {L_CG}, v{V+2}")
    a(f"s_mov_b32 s{sT2}, 0xbfb8aa3b\ns_mov_b32 s{sT2+1}, s{sT2}\ns_mov_b32 s{sT2+2}, 0x05040100\ns_mov_b32 s{sT2+3}, 0x07060302")
    a(f"s_and_b32 s3, s{sW}, 3\ns_lshl_b32 s3, s3, 6\nv_lshrrev_b32 v{V+4}, 4, v{vL}\nv_and_b32 v{V+5}, 15, v{vL}\nv_lshl_add_u32 v{V+5}, v{V+5}, 2, s3\nv_lshl_add_u32 v{V+4}, v{V+4}, 11, v{V+5}")
    a("s_waitcnt lgkmcnt(0)")
    for f in range(4):
        a(f"ds_read_u16 v{V+6+f}, v{V+2} offset:{8*f}")
    def brd(ks):
        for e in range(8):
            a(f"ds_read_b32 v{F+16+8*(ks&1)+e}, v{V+4} offset:{L_WB + 8192*ks + 256*e}")
    brd(0)
    for h in range(2):
        for ep in range(4):
            x0 = F + 8 * h + 2 * ep
            a(f"v_lshlrev_b32 v{V+10}, 16, v{x0}\nv_lshlrev_b32 v{V+11}, 16, v{x0+1}\nv_and_b32 v{x0}, 0xffff0000, v{x0}\nv_and_b32 v{x0+1}, 0xffff0000, v{x0+1}")
            a(f"v_pk_mul_f32 v[{V+10}:{V+11}], v[{V+10}:{V+11}], s[{sT2}:{sT2+1}]\nv_pk_mul_f32 v[{x0}:{x0+1}], v[{x0}:{x0+1}], s[{sT2}:{sT2+1}]")
            a(f"v_cvt_pk_bf16_f32 v{vW+4*h+ep}, v{V+10}, v{V+11}\nv_cvt_pk_bf16_f32 v{vW+8+4*h+ep}, v{x0}, v{x0+1}")
    a(f"s_waitcnt lgkmcnt(0)\nv_lshl_or_b32 v{vCG}, v{V+7}, 16, v{V+6}\nv_lshl_or_b32 v{vCG+1}, v{V+9}, 16, v{V+8}")
    PL = vX + 10
    POLL = f"global_load_dwordx2 v[{PL}:{PL+1}], v{TP_}, s[{sWS}:{sWS+1}] sc1"
    for ks in range(4):
        if ks == o.pk:
            a(f"s_cmp_eq_u32 s{sPAR}, 0\ns_cbranch_scc0 L_npe\n{POLL}\nL_npe:")
        if ks < 3:
            if ks: a("s_waitcnt lgkmcnt(7)")
            brd(ks + 1)
        if ks > 0: a(f"s_waitcnt lgkmcnt({8 if ks < 3 else 0})")
        for ep in range(4):
            x0 = F + 16 + 8 * (ks & 1) + 2 * ep
            a(f"v_perm_b32 v{vB+8*ks+ep}, v{x0+1}, v{x0}, s{sT2+2}\nv_perm_b32 v{vB+8*ks+4+ep}, v{x0+1}, v{x0}, s{sT2+3}")
    if o.pfb: xpf(o.pfa, o.pfb, "L_pfb")
    a(f"s_cmp_eq_u32 s{sPAR}, 0\ns_cbranch_scc0 L_round\ns_mov_b32 s3, 0")
    if o.pk < 4: a("s_branch L_poll1")
    a(f"L_poll:\n{POLL}\nL_poll1:\ns_add_u32 s3, s3, 1\ns_waitcnt vmcnt(0)")
    a(f"v_cmpx_ne_u32 vcc, s{sTAG}, v{PL+1}\ns_cbranch_execz L_pok\ns_cmp_lt_u32 s3, 400000\ns_cbranch_scc1 L_poll\nv_mov_b32 v{PL}, 0")
    a("L_pok:")
    a(f"s_mov_b64 exec, -1\nv_add_u32 v{U+2}, {L_TBL}, v{vRA}\nds_write_b32 v{U+2}, v{PL}")
    a("L_round:")
    TB = P + 8
    RQ = P + 8
    DL = P + 20
    RK = P + 0
    C12 = P + 3
    LW = P + 26
    TQ = P + 32
    a(f"v_add_u32 v{U+3}, {L_TBL}, v{vLANE16}\ns_and_b32 s{sTMP}, s{sW}, 3\nv_mov_b32 v{TB+8}, 0")
    a("s_waitcnt lgkmcnt(0)\ns_barrier")
    stamp(a, o, 5, sST)
    a(f"ds_read_b128 v[{TB}:{TB+3}], v{U+3}")
    a(f"v_mul_u32_u24 v{C12}, 12, v0\nv_add_u32 v{C12+1}, {512*12}, v{C12}\nv_add_u32 v{C12+2}, {1024*12}, v{C12}")
    a("s_waitcnt lgkmcnt(0)")
    for j in range(4):
        a(f"v_lshrrev_b32 v{TB+4+j}, 19, v{TB+j}")
    a(f"v_add_u32 v{TB+10}, v{TB+4}, v{TB+5}\nv_add3_u32 v{U}, v{TB+10}, v{TB+6}, v{TB+7}")
    scan(a, U, [[f"v_add_u32 v{U+1}, s{sR0}, v{U}", f"v_mov_b32 v{TB+9}, v{TB+4}"],
                [f"v_add_u32 v{TB+11}, v{TB+10}, v{TB+6}", f"s_set_gpr_idx_on s{sTMP}, gpr_idx(SRC0)", f"v_mov_b32 v{U+2}, v{TB}", f"v_mov_b32 v{U+3}, v{TB+4}", f"v_mov_b32 v{U+4}, v{TB+8}", "s_set_gpr_idx_off"],
                [f"v_and_b32 v{U+2}, 0x7ffff, v{U+2}", f"v_sub_u32 v{U+4}, v{U+4}, v{U+1}"],
                [f"v_subrev_u32 v{U+5}, s{sPAR}, v{U+3}", f"s_mov_b32 s{sTMP}, s{sPAR}"]])
    a(f"v_add_u32 v{U+4}, v{U+4}, v{U}\nv_readlane_b32 s{sTOT}, v{U}, 63\nv_sub_u32 v{U+2}, v{U+2}, v{U+4}\nv_add_lshl_u32 v{U+6}, v{U+4}, s{sPAR}, 2")
    a(f"s_cmp_gt_u32 s{sTOT}, {CAP}\ns_cbranch_scc1 L_exp")
    NX = 6
    for i in range(NX):
        a(f"v_cmpx_lt_i32 vcc, {2*i}, v{U+5}\nds_write_b32 v{U+6}, v{U+2} offset:{L_REC + 8*i}")
    a(f"v_cmpx_lt_i32 vcc, {2*NX}, v{U+5}\ns_cbranch_execz L_expd\ns_add_u32 s{sTMP}, s{sTMP}, {2*NX}")
    a("L_exp:")
    a(f"s_mov_b64 exec, -1\nv_cmp_lt_u32 vcc, s{sTMP}, v{U+3}\ns_cbranch_vccz L_expd")
    a(f"v_add_u32 v{U+7}, s{sTMP}, v{U+4}\ns_movk_i32 s3, {CAP}\nv_cmp_gt_u32 s[{sT2}:{sT2+1}], s3, v{U+7}\nv_lshlrev_b32 v{U+7}, 2, v{U+7}\ns_and_b64 exec, vcc, s[{sT2}:{sT2+1}]")
    a(f"ds_write_b32 v{U+7}, v{U+2} offset:{L_REC}\ns_add_u32 s{sTMP}, s{sTMP}, 2\ns_branch L_exp")
    a("L_expd:")
    a("s_mov_b64 exec, -1\ns_waitcnt lgkmcnt(0)\ns_barrier")
    for k in range(3):
        a(f"ds_read_b32 v{U+k}, v{vRA} offset:{L_REC + 2048*k}")
    for j in range(6):
        a(f"ds_read_b32 v{DL+j}, v{vRB} offset:{L_REC + 1024*j}")
    for k in range(3):
        a(f"s_waitcnt lgkmcnt({8-k})\nv_mad_i32_i24 v{U+k}, v{U+k}, 12, v{C12+k}")
        a(f"buffer_load_dwordx3 v[{RQ+4*k}:{RQ+4*k+2}], v{U+k}, s[{rAUX}:{rAUX+3}], 0 offen sc1")
    a("s_waitcnt lgkmcnt(0)")
    for j in range(6):
        a(f"v_lshl_add_u32 v{DL+j}, v{DL+j}, 5, v{C+j}")
    a("s_barrier")
    nef = [0]
    def efdma(n):
        for _ in range(n):
            j = nef[0]; nef[0] += 1
            a(f"s_add_u32 m0, s{sBASE}, {L_EF + 8192*j}\ns_nop 0\nbuffer_load_dwordx4 v{DL+j}, s[{rEF}:{rEF+3}], 0 offen sc1 lds")
    EFS = [int(c) for c in o.efs]; assert sum(EFS) == 6 and len(EFS) == 5
    efdma(EFS[0])
    a(f"s_sub_u32 s{sCNT}, s{sTOT}, s{sR0}\ns_min_u32 s{sCNT}, s{sCNT}, {CAP}\ns_lshl_b32 s3, s{sCNT}, 4")
    for k in range(3):
        a(f"v_cmp_gt_u32 s[{sM[k]}:{sM[k]+1}], s3, v{C+k}\nv_lshlrev_b32 v{LW+2*k+1}, 1, v{C+k}\nv_mov_b32 v{RQ+4*k+3}, 0")
    a(f"v_and_b32 v{vPW}, 15, v{vL}\nv_lshrrev_b32 v{U+1}, 4, v{vL}")
    a(f"s_mul_i32 s3, s{sPAR}, {80*AGS}\nv_mul_u32_u24 v{vEA}, {AGS}, v{vPW}\nv_lshl_add_u32 v{vEA}, v{U+1}, 4, v{vEA}\nv_add_u32 v{vEA}, s3, v{vEA}")
    a(f"s_mul_i32 s{sT2}, s{sPAR}, {20*256}\ns_add_u32 s{sT2}, s{sT2}, s2\ns_lshl_b32 s{sT2}, s{sT2}, 10\ns_and_b32 s3, s{sW}, 3\ns_lshl_b32 s3, s3, 8\ns_add_u32 s{sT2}, s{sT2}, s3")
    a(f"v_lshl_add_u32 v{vEO}, v{U+1}, 18, s{sT2}\nv_lshl_add_u32 v{vEO}, v{vPW}, 4, v{vEO}\nv_lshlrev_b32 v{vPW}, 3, v{vPW}")
    a(f"v_bfe_u32 v{vPA}, v{vL}, 3, 2\nv_and_b32 v{U}, 3, v{vL}\nv_lshl_add_u32 v{vPA}, v{vPA}, 2, v{U}\nv_lshlrev_b32 v{vPA}, 3, v{vPA}")
    a(f"v_lshrrev_b32 v{vPT}, 2, v{vL}\nv_lshlrev_b32 v{vPT}, 3, v{vPT}")
    a(f"v_mul_u32_u24 v{U+4}, 52, v{vL}\nv_lshrrev_b32 v{U+4}, 8, v{U+4}\nv_mul_u32_u24 v{U+5}, 5, v{U+4}\nv_sub_u32 v{U+5}, v{vL}, v{U+5}")
    a(f"v_mul_u32_u24 v{U+3}, 6, v{U+5}\nv_bfe_u32 v{U+3}, s{sRK}, v{U+3}, 6\nv_lshlrev_b32 v{U+3}, 2, v{U+3}\nv_lshlrev_b32 v{U+4}, 2, v{U+4}\nv_lshlrev_b32 v{U+5}, 19, v{U+5}")
    a(f"s_mul_i32 s3, s{sW}, 5\nv_lshlrev_b32 v{U+6}, 2, v{vL}\nv_add_u32 v{U+9}, s3, v{vL}\nv_lshlrev_b32 v{U+7}, 2, v{U+9}")
    a(f"v_cmp_gt_u32 vcc, 40, v{vL}\nv_add_u32 v{U+8}, 1, v{vL}\nv_add_u32 v{U+9}, 1, v{U+9}\nv_cndmask_b32 v{U+8}, 0, v{U+8}, vcc")
    a(f"s_cmp_gt_u32 s{sTOT}, {CAP}\ns_cselect_b32 s{sT2+1}, 0, 8\nv_mov_b32 v{U+10}, 8")
    for k in range(3):
        a(f"s_waitcnt vmcnt({2 - k + EFS[0]})")
        if k == 0: stamp(a, o, 6, sST)
        a(f"s_mov_b64 exec, s[{sM[k]}:{sM[k]+1}]\nv_and_b32 v{RQ+4*k+3}, 0x3ff, v{RQ+4*k+2}\nv_lshrrev_b32 v{U+k}, 24, v{RQ+4*k+2}\nv_lshlrev_b32 v{RQ+4*k+3}, 2, v{RQ+4*k+3}")
        a(f"ds_add_u32 v{U+k}, v{U+10} offset:{L_DEG}\nds_add_rtn_u32 v{RK+k}, v{RQ+4*k+3}, v{U+10} offset:{L_CELL}")
    a("s_mov_b64 exec, -1")
    def tcomp(k):
        for oo in range(4):
            a(f"v_mfma_f32_4x4x4_16b_bf16 {vr(TQ+4*oo,4)}, {vr(vCG,2)}, {vr(RQ+4*k,2)}, 0 cbsz:4 abid:{oo}")
        a(f"v_add_u32 v{U+11}, {L_T}, v{LW+2*k+1}\ns_nop 0")
        for q in range(8):
            a(f"v_cvt_pk_bf16_f32 v{TQ+16+q}, v{TQ+2*q}, v{TQ+2*q+1}")
    def twrite():
        a(f"ds_write_b128 v{U+11}, v[{TQ+16}:{TQ+19}]\nds_write_b128 v{U+11}, v[{TQ+20}:{TQ+23}] offset:16")
    efdma(EFS[1])
    tcomp(0)
    a("s_waitcnt lgkmcnt(0)\ns_barrier")
    a(f"ds_read_b32 v{U}, v{U+6} offset:{L_DEG}\nds_read_b32 v{U+1}, v{U+7} offset:{L_DEG}")
    twrite()
    a(f"v_lshlrev_b32 v{U+7}, 4, v{U+7}")
    for k in range(3):
        a(f"v_and_b32 v{RQ+4*k+2}, 0xfffc00, v{RQ+4*k+2}")
    a(f"s_waitcnt lgkmcnt(2)\nv_mad_u32_u24 v{U+9}, v{U+1}, s{sT2+1}, v{U+9}\nv_mad_u32_u24 v{U+8}, v{U}, s{sT2+1}, v{U+8}")
    for j in range(5):
        a(f"v_readlane_b32 s{sN+j}, v{U+9}, {j}")
    a(f"v_lshl_add_u32 v{U+7}, v{U+1}, 16, v{U+7}")
    for j in range(5):
        a(f"v_cmp_lt_u32 s[{S+2*j}:{S+2*j+1}], s{sN+j}, v{U+8}")
    for j in range(5):
        a(f"s_bcnt1_i32_b64 s{sN+j}, s[{S+2*j}:{S+2*j+1}]\nv_writelane_b32 v{U}, s{sN+j}, {j}")
    a(f"s_mov_b64 exec, 31\nv_lshlrev_b32 v{U}, 2, v{U}\nds_write_b32 v{U}, v{U+7} offset:{L_INV}\ns_mov_b64 exec, -1")
    efdma(EFS[2])
    a("s_waitcnt lgkmcnt(0)\ns_barrier")
    a(f"ds_read_b32 v{U}, v{U+3} offset:{L_INV}")
    tcomp(1)
    a(f"s_waitcnt lgkmcnt(0)\nv_add_u32_sdwa v{U+4}, v{U}, v{U+4} dst_sel:DWORD dst_unused:UNUSED_PAD src0_sel:WORD_0 src1_sel:DWORD")
    a(f"ds_read_b32 v{U+1}, v{U+4} offset:{L_CELL}")
    for j in range(5):
        a(f"v_readlane_b32 s{sN+j}, v{U}, {j}")
    a(f"s_add_u32 s3, s{sN}, s{sN+1}\ns_add_u32 s3, s3, s{sN+2}\ns_add_u32 s3, s3, s{sN+3}\ns_add_u32 s3, s3, s{sN+4}\ns_lshr_b32 s{sCNT}, s3, 16")
    a(f"s_add_u32 s3, s{sCNT}, {8*PADN}\nv_mov_b32 v{U+2}, s3\nv_mov_b32 v{U+6}, 0\ns_mov_b64 exec, 1\nds_add_rtn_u32 v{U+2}, v{U+6}, v{U+2} offset:{L_CNT}\ns_mov_b64 exec, -1")
    a("s_waitcnt lgkmcnt(1)")
    scan(a, U + 1, [[f"v_sub_u32 v{U+5}, v{U+5}, v{U+1}"], [], [f"v_mov_b32 v{U+8}, {0x7ffffc00 | 40}", f"v_mov_b32 v{U+9}, 0"], [],
                    ["s_waitcnt lgkmcnt(0)", f"v_readfirstlane_b32 s{sT2+3}, v{U+2}"], [f"s_add_u32 s3, s{sT2+3}, s{sCNT}", f"v_lshl_add_u32 v{U+6}, v{vL}, 3, s3"]])
    a(f"s_mov_b32 exec_hi, 0x0fffffff\nv_add3_u32 v{U+1}, v{U+1}, v{U+5}, s{sT2+3}\nds_write_b32 v{U+4}, v{U+1} offset:{L_CELL}")
    a(f"ds_write_b64 v{U+6}, v[{U+8}:{U+9}] offset:{L_LIST}\ns_mov_b64 exec, -1")
    twrite()
    efdma(EFS[3])
    a("s_waitcnt lgkmcnt(2)\ns_barrier")
    for k in range(3):
        a(f"ds_read_b32 v{U+k}, v{RQ+4*k+3} offset:{L_CELL}")
    a(f"v_add_u32 v{vPW}, s{sT2+3}, v{vPW}\nv_add_u32 v{vPA}, s{sT2+3}, v{vPA}\nv_add_u32 v{vPT}, s{sT2+3}, v{vPT}\ns_lshr_b32 s{sCNT}, s{sCNT}, 3")
    for k in range(3):
        a(f"s_mov_b64 exec, s[{sM[k]}:{sM[k]+1}]\ns_waitcnt lgkmcnt(2)")
        a(f"v_add_u32_sdwa v{RK+k}, v{U+k}, v{RK+k} dst_sel:DWORD dst_unused:UNUSED_PAD src0_sel:WORD_0 src1_sel:DWORD")
        a(f"v_or_b32_sdwa v{LW+2*k}, v{U+k}, v{RQ+4*k+2} dst_sel:DWORD dst_unused:UNUSED_PAD src0_sel:WORD_1 src1_sel:DWORD")
        a(f"ds_write_b64 v{RK+k}, v[{LW+2*k}:{LW+2*k+1}] offset:{L_LIST}")
    a("s_mov_b64 exec, -1")
    efdma(EFS[4])
    a("s_waitcnt lgkmcnt(0)\ns_barrier")
    stamp(a, o, 7, sST)
    a(f"ds_read_b32 v{U}, v{vPW}\nds_read_b32 v{vWD[0]}, v{vPW} offset:{8*D}\nds_read_b32 v{vIA}, v{vPA} offset:4\nds_read_b32 v{vIT}, v{vPT} offset:4")
    a(f"s_cmp_eq_u64 s[{sM[2]}:{sM[2]+1}], 0\ns_cbranch_scc1 L_not3")
    tcomp(2)
    twrite()
    a("s_waitcnt lgkmcnt(2)\ns_branch L_t3\nL_not3:\ns_waitcnt lgkmcnt(0)\nL_t3:")
    XS = [int(c) for c in o.xs]; assert sum(XS) == D and len(XS) == 4
    nx = [0]
    def xld(n):
        for _ in range(n):
            k = nx[0]; nx[0] += 1
            t = sT2 + 2 + (k & 1)
            a(f"s_and_b32 s{t}, s{sRING+k}, 0xfffffc00\nbuffer_load_dwordx4 v[{vX+4*k}:{vX+4*k+3}], v{vLANE16}, s[{rX}:{rX+3}], s{t} offen")
    for k in range(D):
        if k == XS[0]: xld(XS[0])
        a(f"v_readlane_b32 s{sRING+k}, v{U}, {k}")
    xld(XS[0] - nx[0])
    a(f"v_add_u32 v{vIA}, v{vIA}, v{vLA}\nv_add_u32 v{vIT}, v{vIT}, v{vLT}")
    a(f"v_readlane_b32 s{sRING+D}, v{vWD[0]}, 0")
    for s in range(5):
        a(f"s_and_b32 s{sN+s}, s{sN+s}, 0xffff\ns_mulk_i32 s{sN+s}, {4*AGS//64}")
    a(f"s_and_b32 s{sT2}, s{sRING+D}, 0xfffffc00")
    a(f"s_waitcnt vmcnt({XS[0]}) lgkmcnt(0)\ns_barrier")
    stamp(a, o, 8, sST)
    if o.cyc: a(f"s_memtime s[{sST+2}:{sST+3}]")
    if o.cyc == 2: a(f"s_mov_b32 s{rX+2}, 0")
    a(f"s_cmp_eq_u32 s{sCNT}, 0\ns_cbranch_scc1 L_exit\ns_sub_u32 s{sCNT}, s{sCNT}, 1")

    def rdA(buf):
        a(f"s_mov_b64 exec, s[{sMA}:{sMA+1}]\nds_read_b128 v[{vA1}:{vA1+3}], v{vIA} offset:{L_EF}")
        a(f"s_mov_b64 exec, s[{sMB}:{sMB+1}]\nds_read_b128 v[{vA2}:{vA2+3}], v{vIA} offset:{L_EF}\ns_mov_b64 exec, -1")
        a(f"ds_read_b64 v[{vT[buf]}:{vT[buf]+1}], v{vIT}")
    def zm(buf, q):
        par, h = q >> 1, q & 1
        z = vr(Z(buf, par), 16)
        return f"v_mfma_f32_32x32x16_bf16 {z}, {vr(vA2 if h else vA1, 4)}, {vr(vW + 4*q, 4)}, {z if h else '0'}"
    def unit(u):
        u %= 32
        return Z(u >> 4, u & 1, (u & 15) & ~1)
    def ta(u): return vTA + 2 * (u & 1)
    def EXP(u, j): return f"v_exp_f32 v{ta(u)+j}, v{unit(u)+j}"
    def RCP(u, j): return f"v_rcp_f32 v{ta(u)+j}, v{ta(u)+j}"
    def PADD(u): return f"v_pk_add_f32 {vr(ta(u),2)}, {vr(ta(u),2)}, 1.0 op_sel_hi:[1,0]"
    def PMUL(u): return f"v_pk_mul_f32 {vr(unit(u),2)}, {vr(unit(u),2)}, {vr(ta(u),2)}"
    rdA(0)
    xld(XS[1])
    a("s_waitcnt lgkmcnt(1)")
    for q in range(4):
        a(zm(0, q))
    xld(XS[2])
    a(f"s_waitcnt lgkmcnt(0)\ns_nop {max(0, 10 - 2 * XS[2])}")
    a(EXP(0, 0)); a(EXP(0, 1)); a(EXP(1, 0)); a(EXP(1, 1)); a(PADD(0)); a(PADD(1)); a(RCP(0, 0)); a(RCP(0, 1)); a("s_nop 0"); a(PMUL(0))
    xld(XS[3])
    zsteps = {5: 0, 7: 1, 9: 2, 11: 3}
    if o.align:
        a(f".p2align {o.align}")
    for _ in range(o.pad): a("s_nop 0")
    a("L_loop:")
    ORD = [x.split() for x in o.order.split("|")]
    for i in range(32):
        b, s = i >> 4, i & 15
        x = vX + 4 * (i % D)
        ring = sRING + (i + 1 + D) % 32
        sel = "op_sel_hi:[0,1,1]" if s % 2 == 0 else "op_sel:[1,0,0]"
        def extra():
            if o.prio and i % o.prio == 0:
                a(f"s_setprio {3 - (i // o.prio) % 4}")
            if s == 0:
                a(f"ds_read_b32 v{vIA}, v{vPA} offset:{4 + 128*(b+1)}\nds_read_b32 v{vIT}, v{vPT} offset:{4 + 128*(b+1)}")
                a(f"ds_read_b32 v{vWD[1-b]}, v{vPW} offset:{8*D + 128*(b+1)}")
            if s == 2:
                a(f"s_waitcnt lgkmcnt(0)\nv_add_u32 v{vIA}, v{vIA}, v{vLA}\nv_add_u32 v{vIT}, v{vIT}, v{vLT}")
                rdA(1 - b)
        T = dict(
            M0=f"v_mfma_f32_4x4x4_16b_bf16 {vr(vDD,4)}, {vr(vT[b],2)}, {vr(x,2)}, 0 cbsz:4 abid:{s}",
            M1=f"v_mfma_f32_4x4x4_16b_bf16 {vr(vDD+4,4)}, {vr(vT[b],2)}, {vr(x+2,2)}, 0 cbsz:4 abid:{s}",
            RL=f"v_readlane_b32 s{ring}, v{vWD[((i + 1) >> 4) & 1]}, {(i + 1) & 15}",
            AND=f"s_and_b32 s{sT2 + (i + 1) % 2}, s{ring}, 0xfffffc00",
            LD=f"buffer_load_dwordx4 {vr(x,4)}, v{vLANE16}, s[{rX}:{rX+3}], s{sT2 + i % 2} offen",
            WT=f"s_waitcnt vmcnt({D-1})" + (" lgkmcnt(0)" if s == min(zsteps) else ""),
            F="\n".join(f"v_pk_fma_f32 {vr(vACC+2*q,2)}, {vr(Z(b, q >> 1, s & ~1),2)}, {vr(vDD+2*q,2)}, {vr(vACC+2*q,2)} {sel}" for q in range(4)),
            ON=f"s_set_gpr_idx_on s{sRING + i}, gpr_idx(SRC2,DST)", OFF="s_set_gpr_idx_off",
            E0=EXP(i+2, 0), E1=EXP(i+2, 1), R0=RCP(i+1, 0), R1=RCP(i+1, 1), PA=PADD(i+2), PM=PMUL(i+1),
            Z=zm(1 - b, zsteps.get(s, 0)))
        for t in ORD[1 if s in zsteps else 0]:
            if t == "X": extra()
            else: a(T[t])
        if (i + 1) % G == 0:
            a(f"s_sub_u32 s{sCNT}, s{sCNT}, {G}\ns_cbranch_scc1 L_exit")
    a(f"v_add_u32 v{vPW}, 256, v{vPW}\nv_add_u32 v{vPA}, 256, v{vPA}\nv_add_u32 v{vPT}, 256, v{vPT}")
    a("s_branch L_loop")
    a("L_more:")
    a(f"s_waitcnt vmcnt(0) lgkmcnt(0)\ns_barrier\nv_lshlrev_b32 v{C}, 4, v0")
    for j in range(1, 6):
        a(f"v_add_u32 v{C+j}, {8192*j}, v{C}")
    init_lds()
    a("s_branch L_round")
    a("L_exit:")
    a(f"s_add_u32 s{sR0}, s{sR0}, {CAP}\ns_cmp_lt_u32 s{sR0}, s{sTOT}\ns_cbranch_scc1 L_more")
    stamp(a, o, 9, sST)
    if o.cyc: a(f"s_memtime s[{sST+4}:{sST+5}]")
    Q = vW
    for s in range(5):
        c = vACC + 8 * s
        a(f"s_mov_b32 m0, s{sN+s}")
        for oo in range(4):
            a(f"v_cvt_pk_bf16_f32 v{c+oo}, v{c+oo}, v{c+4+oo}")
        for oo in range(4):
            a(f"ds_write_addtid_b32 v{c+oo} offset:{L_AGG + oo*AGS}")
    a(f"s_mov_b32 s{sT2}, 0xbf317218")
    a("s_waitcnt lgkmcnt(0)\ns_barrier")
    stamp(a, o, 10, sST)
    AF = vACC
    DF = vACC + 32
    def rdtile(k):
        for ks in range(4):
            a(f"ds_read_b128 {vr(AF+16*(k&1)+4*ks,4)}, v{vEA} offset:{L_AGG + 16*k*AGS + 64*ks}")
    def fin(kk):
        dd = DF + 8 * (kk & 1)
        t = Q + 8 + 4 * (kk & 1)
        r = [f"v_mul_f32 v{dd+q}, s{sT2}, v{dd+q}" for q in range(8)]
        r += [f"v_cvt_pk_bf16_f32 v{t+q}, v{dd+2*q}, v{dd+2*q+1}" for q in range(4)]
        r += [f"s_mov_b32 s3, {kk << 20}\nbuffer_store_dwordx4 {vr(t,4)}, v{vEO}, s[{rOUT}:{rOUT+3}], s3 offen sc0 sc1"]
        return r
    rdtile(0)
    for k in range(5):
        if k < 4:
            rdtile(k + 1)
        else:
            a("s_nop 3")
        d = DF + 8 * (k & 1)
        f = fin(k - 1) if k else []
        for ks in range(4):
            a(f"s_waitcnt lgkmcnt({(4 if k < 4 else 0) + 3 - ks})")
            for par in range(2):
                a(f"v_mfma_f32_16x16x32_bf16 {vr(d+4*par,4)}, {vr(AF+16*(k&1)+4*ks,4)}, {vr(vB+8*ks+4*par,4)}, {'0' if ks == 0 else vr(d+4*par,4)}")
                if ks > 0:
                    for _ in range(2):
                        if f: a(f.pop(0))
        for x in f: a(x)
    a(f"s_or_b32 s{sTMP}, s2, s{sW}\ns_cbranch_scc1 L_noep\nv_lshlrev_b32 v{Q}, 2, v{vL}\nv_mov_b32 v{Q+1}, s{sTAG}\nglobal_store_dword v{Q}, v{Q+1}, s[{sWS}:{sWS+1}] offset:{WS_EPOCH} sc0 sc1\nL_noep:")
    a("s_nop 3")
    for x in fin(4): a(x)
    if o.stamps:
        a("s_waitcnt vmcnt(0)")
    stamp(a, o, 11, sST)
    stamp_out(a, o, 12, sST, sWS, sW, 0, Q)
    a("L_end:\ns_endpgm")
    return a.text(), NV, 102

def build(o):
    ref = open("cdna_kernels/" + NAME + ".s.ref").read().split("\n")
    head = [l for l in ref if l.startswith(";") and "@launch" not in l and "Override" not in l and "grid=ceil" not in l]
    out = "\n".join(head) + "\n"
    out += f"; @launch grid=(256,1,1) block=(512,1,1) lds={LDS}\n"
    out += "; generated by gen/gen5.py\n"
    out += '.amdgcn_target "amdgcn-amd-amdhsa--gfx950"\n.text\n'
    nm = NAME + "_kernel"
    t, v, s = kern(o)
    out += f".globl {nm}\n.p2align 8\n.type {nm},@function\n{nm}:\n" + t
    out += KD.format(name=nm, v=v, s=s, acc=(v + 3) // 4 * 4)
    return out

def parser():
    p = argparse.ArgumentParser()
    p.add_argument("-o", default="cdna_kernels/" + NAME + ".s")
    p.add_argument("--G", type=int, default=4)
    p.add_argument("--prio", type=int, default=4)
    p.add_argument("--pd", default="2350")
    p.add_argument("--late", type=int, default=0)
    p.add_argument("--efs", default="21111")
    p.add_argument("--xs", default="4220")
    p.add_argument("--pfa", type=int, default=832)
    p.add_argument("--pfb", type=int, default=0)
    p.add_argument("--pk", type=int, default=4)
    p.add_argument("--order", default="X WT R0 M0 E1 M1 E0 RL R1 PA PM AND ON LD F OFF | WT M1 M0 R1 X Z E0 E1 RL R0 PA PM AND ON LD F OFF")
    p.add_argument("--align", type=int, default=0)
    p.add_argument("--pad", type=int, default=0)
    p.add_argument("--cpf", type=int, default=2)
    p.add_argument("--cyc", type=int, default=0)
    p.add_argument("--stamps", type=int, default=0)
    return p

if __name__ == "__main__":
    o = parser().parse_args()
    open(o.o, "w").write(build(o))
```

```python
import sys, argparse
from gen import A, vr, srd, stamp, stamp_out, KD, NAME, N, WS_STAMP
from gen2 import scan

R39 = [[8, 14, 18, 23, 36], [3, 13, 19, 29, 37], [0, 4, 9, 17, 39], [1, 12, 21, 31, 38], [2, 16, 26, 30, 33], [6, 11, 22, 28, 34], [7, 15, 20, 25, 32], [5, 10, 24, 27, 35]]
R40 = [[1, 15, 26, 28, 34], [7, 12, 16, 29, 32], [5, 8, 21, 27, 35], [0, 13, 23, 30, 39], [4, 11, 17, 24, 37], [3, 9, 19, 25, 38], [2, 14, 20, 31, 33], [6, 10, 18, 22, 36]]

CH, CS = 1250, 1280
WS_EPOCH = 0
WS_TABLE = 0x1000
WS_FLAG  = 0x90000
WS_AUX   = 0x100000
WS_EF    = 0x800000
AUX_BYTES = 256 * CS * 12
EF_BYTES = 256 * CS * 32
AUX_W = (CH * 12 + 127) // 128 * 128
EF_W = (CH * 32 + 127) // 128 * 128

CAP = 1536
PADN = 60
NWIN = 12
L_LIST = 0
L_AGG = (CAP + 8 * PADN) * 8
L_CELL = L_AGG
L_DEG = L_CELL + 2560
L_INV = L_DEG + 512
L_CNT = L_INV + 256
L_REC = L_CELL + 4096
L_WB = L_REC + CAP * 4
L_EF = L_WB + 36864
L_T = L_EF + CAP * 32
L_TBL = L_T + CAP * 32
L_CG = L_TBL + 1024
LDS = L_CG + 1024
AGS = 288
assert L_AGG + 160 * AGS <= L_EF and L_EF < 65536 and LDS <= 163840
L_HIST, L_BASE, L_ID = 0, 1024, 2048
L_WF = 8192
L_AUX, L_RAW = L_EF, L_T

def kern(o):
    a = A()
    D, G = o.D, o.G
    sX, sSRC, sDST, sY, sEFI, sWR, sCG, sWM, sOUT, sWS = 4, 6, 8, 10, 12, 14, 16, 18, 20, 22
    rX, rAUX, rEF, rOUT = 4, 8, 12, 16
    sW, sTOT, sTAG, sPAR, sR0, sCNT, sBASE, sTMP = 24, 25, 26, 27, 28, 29, 30, 31
    sMA, sMB = 32, 34
    sRING = 36
    S = sRING
    sM = [S + 20, S + 22, S + 24]
    rPA, rPE = S + 12, S + 16
    sT2, sST, sN, sRK = 68, 72, 96, 101
    vLANE16, vLA, vLT, vPW, vPA, vPT = 1, 2, 3, 4, 5, 6
    vWD = [7, 8]
    vIA, vIT, vL = 9, 10, 11
    vTA, vDD, vA1, vA2 = 12, 16, 24, 28
    vT = [32, 34]
    vW, vB, vACC = 36, 52, 84
    vZ = vACC + 48
    vX = vZ + 64
    vCG = vX + 32
    vEA, vEO = vCG + 4, vCG + 5
    vFA = vEO + 1
    NV = vFA + 1
    P, U = vZ, vTA
    def Z(buf, par, s=0): return vZ + 32 * buf + 16 * par + s

    DS_, SR_, YY, QA, RKP, RC, HC, HB, T0 = P, P + 4, P + 8, P + 14, P + 17, P + 20, P + 32, P + 36, P + 40
    TR = vX
    C = P + 56
    vRA, vRB = P + 62, P + 63
    a("s_load_dwordx16 s[4:19], s[0:1], 0\ns_load_dwordx2 s[22:23], s[0:1], 80\ns_load_dwordx2 s[20:21], s[0:1], 64")
    stamp(a, o, 0, sST)
    a("s_cmp_ge_u32 s2, 256\ns_cbranch_scc1 L_end")
    a(f"v_mul_u32_u24 v{T0}, 3, v0\ns_mul_i32 s3, s2, {CH}\nv_min_u32 v{T0}, {CH-3}, v{T0}\nv_add_lshl_u32 v{T0+1}, v{T0}, s3, 2")
    a(f"v_lshrrev_b32 v{U}, 6, v0\nv_and_b32 v{U+1}, 255, v0\nv_lshlrev_b32 v{U+1}, 2, v{U+1}\nv_mov_b32 v{U+4}, 0")
    a(f"v_readfirstlane_b32 s{sW}, v{U}\nds_write_b32 v{U+1}, v{U+4} offset:{L_HIST}\nv_lshlrev_b32 v{T0+2}, 1, v{T0+1}")
    a("s_waitcnt lgkmcnt(0)")
    a(f"global_load_dwordx3 v[{DS_}:{DS_+2}], v{T0+1}, s[{sDST}:{sDST+1}] {o.kf}")
    a(f"s_load_dword s{sTAG}, s[{sWS}:{sWS+1}], {WS_EPOCH}")
    if o.b1: a("s_barrier")
    a(f"global_load_dwordx3 v[{SR_}:{SR_+2}], v{T0+1}, s[{sSRC}:{sSRC+1}] {o.kf}")
    a(f"global_load_dwordx4 v[{YY}:{YY+3}], v{T0+2}, s[{sY}:{sY+1}] {o.yf}\nglobal_load_dwordx2 v[{YY+4}:{YY+5}], v{T0+2}, s[{sY}:{sY+1}] offset:16 {o.yf}")
    def cpf():
        a(f"s_cmp_eq_u32 s{sW}, 7\ns_cbranch_scc0 L_nocpf\ns_cmp_lt_u32 s2, 8\ns_cbranch_scc0 L_nocpf")
        a(f"s_getpc_b64 s[{sT2}:{sT2+1}]\nL_pc:\nv_and_b32 v{U+6}, 63, v0\nv_lshlrev_b32 v{U+6}, 7, v{U+6}\nv_mov_b32 v{U+7}, 0\nv_lshl_add_u64 v[{U+8}:{U+9}], v[{U+6}:{U+7}], 0, s[{sT2}:{sT2+1}]")
        a(f"global_load_dword v{vX+8}, v[{U+8}:{U+9}], off\nv_min_u32 v{U+6}, L_end-L_pc-8192, v{U+6}\nv_add_u32 v{U+6}, 8192, v{U+6}")
        a(f"v_lshl_add_u64 v[{U+8}:{U+9}], v[{U+6}:{U+7}], 0, s[{sT2}:{sT2+1}]\nglobal_load_dword v{vX+9}, v[{U+8}:{U+9}], off")
        a("L_nocpf:")
    if o.cpf == 1: cpf()
    a(f"v_lshlrev_b32 v{C}, 4, v0\nv_and_b32 v{vL}, 63, v0\ns_lshl_b32 s{sBASE}, s{sW}, 10\ns_lshl_b32 s3, s3, 5\ns_add_u32 s{sEFI}, s{sEFI}, s3\ns_addc_u32 s{sEFI+1}, s{sEFI+1}, 0")
    for j in range(1, 6):
        a(f"v_add_u32 v{C+j}, {8192*j}, v{C}")
    a(f"v_min_u32 v{T0+3}, {CH*32-16}, v{C+4}\nv_lshlrev_b32 v{vLANE16}, 4, v{vL}")
    if o.b2: a("s_barrier")
    assert o.b1 or o.b2
    nd = [0]
    def dma(n):
        for _ in range(n):
            j = nd[0]; nd[0] += 1
            if j < 5:
                a(f"s_add_u32 m0, s{sBASE}, {L_RAW + 8192*j}\ns_nop 0\nglobal_load_lds_dwordx4 v{C+j if j < 4 else T0+3}, s[{sEFI}:{sEFI+1}] {o.ef}")
            elif j < 9:
                a(f"s_add_u32 m0, s{sBASE}, {L_WB + 8192*(j-5)}\ns_nop 0\nglobal_load_lds_dwordx4 v{C+j-5}, s[{sWM}:{sWM+1}]")
            else:
                a(f"s_add_u32 s{sT2+2}, s{sBASE}, {L_WB + 32768}\nv_min_u32 v{T0+13}, 112, v{vLANE16}\ns_cmp_lt_u32 s{sW}, 4\ns_cselect_b64 vcc, -1, 0")
                a(f"s_cselect_b32 m0, s{sT2+2}, {L_CG}\ns_cselect_b64 s[{sT2}:{sT2+1}], s[{sWR}:{sWR+1}], s[{sCG}:{sCG+1}]\nv_cndmask_b32 v{T0+13}, v{T0+13}, v{C}, vcc")
                a(f"global_load_lds_dwordx4 v{T0+13}, s[{sT2}:{sT2+1}]")
    PD = [int(c, 16) for c in o.pd.ljust(5, '0')]; assert sum(PD) == 10 and len(PD) == 5 and sum(PD[:3]) >= 5
    dma(PD[0])
    if o.cpf == 2: cpf()
    def init_lds():
        a(f"v_lshlrev_b32 v{vRA}, 2, v0\nv_lshlrev_b32 v{U+2}, 3, v0\nv_mov_b32 v{U+4}, 0\nv_mov_b32 v{U+5}, 0\nv_mov_b32 v{U+3}, 0x00300000")
        a(f"ds_write_b64 v{U+2}, v[{U+4}:{U+5}] offset:{L_CELL}")
        for k in range(3):
            a(f"ds_write_b32 v{vRA}, v{U+3} offset:{L_REC + 2048*k}")
        a(f"v_lshrrev_b32 v{vRB}, 1, v0\nv_lshlrev_b32 v{vRB}, 2, v{vRB}")
    if o.il == 0: init_lds()
    a(f"v_cmp_gt_u32 vcc, {CH//3}, v0\ns_mov_b64 s[{S}:{S+1}], vcc\nv_cmp_gt_u32 vcc, {CH//3+1}, v0\ns_mov_b64 s[{S+2}:{S+3}], vcc")
    a(f"v_mov_b32 v{U}, 1\ns_movk_i32 s{S+4}, {N // 8}\ns_mov_b32 s{S+5}, {L_AUX}\ns_lshr_b32 s{sPAR}, s{sW}, 2\ns_mov_b32 s{sR0}, 0")
    a(f"s_waitcnt vmcnt({3 + PD[0]})")
    stamp(a, o, 1, sST)
    a(f"s_mov_b64 exec, s[{S+2}:{S+3}]")
    for j in (1, 2, 0):
        if j == 0: a(f"s_mov_b64 exec, s[{S}:{S+1}]")
        a(f"v_and_b32 v{RC+j}, 7, v{DS_+j}\nv_bfe_u32 v{RC+8+j}, v{DS_+j}, 3, 5\nv_lshl_add_u32 v{QA+j}, v{RC+j}, 5, v{RC+8+j}\nv_lshlrev_b32 v{QA+j}, 2, v{QA+j}")
        a(f"ds_add_rtn_u32 v{RKP+j}, v{QA+j}, v{U} offset:{L_HIST}")
    a("s_mov_b64 exec, -1")
    dma(PD[1])
    if o.cpf == 3: cpf()
    a("s_waitcnt lgkmcnt(0)\ns_barrier")
    a(f"ds_read_b128 v[{HC}:{HC+3}], v{vLANE16} offset:{L_HIST}")
    fill = []
    for j in range(3):
        fill += [f"v_lshrrev_b32 v{DS_+j}, 8, v{DS_+j}", f"v_lshlrev_b32 v{RC+4+j}, 26, v{DS_+j}",
                 f"v_lshl_add_u32 v{DS_+j}, v{DS_+j}, 4, v{RC+4+j}", f"v_add_lshl_u32 v{T0+5+j}, v{T0}, {j}, 5"]
    a(f"s_mul_i32 s3, s2, {CS}\ns_add_u32 s{sTAG}, s{sTAG}, 1\ns_waitcnt lgkmcnt(0)")
    a(f"v_add_u32 v{T0+8}, v{HC}, v{HC+1}\nv_add3_u32 v{T0+8}, v{T0+8}, v{HC+2}, v{HC+3}\nv_mov_b32 v{T0+9}, v{T0+8}")
    scan(a, T0 + 9, [fill[2*i: 2*i + 2] for i in range(6)])
    a(f"v_sub_u32 v{HB}, v{T0+9}, v{T0+8}\nv_add_u32 v{HB+1}, v{HB}, v{HC}\nv_add_u32 v{HB+2}, v{HB+1}, v{HC+1}\nv_add_u32 v{HB+3}, v{HB+2}, v{HC+2}")
    a(f"ds_write_b128 v{vLANE16}, v[{HB}:{HB+3}] offset:{L_BASE}")
    a(f"s_mov_b64 exec, s[{S+2}:{S+3}]")
    for j in (1, 2, 0):
        if j == 0: a(f"s_mov_b64 exec, s[{S}:{S+1}]")
        a(f"ds_read_b32 v{QA+j}, v{QA+j} offset:{L_BASE}")
    a("s_mov_b64 exec, -1")
    a(f"s_waitcnt vmcnt({PD[0] + PD[1]})")
    for j in range(3):
        a(f"v_mad_u32_u24 v{RC+j}, v{RC+j}, s{S+4}, v{SR_+j}\nv_lshl_add_u32 v{DS_+j}, v{SR_+j}, 10, v{DS_+j}\nv_subrev_u32 v{RC+4+j}, {N}, v{RC+j}\nv_min_u32 v{RC+j}, v{RC+j}, v{RC+4+j}")
        if o.w0: a(f"v_add_u32 v{RC+j}, {o.w0}, v{RC+j}")
        if o.wst: a(f"v_mad_u32_u24 v{RC+j}, v{RC+8+j}, {o.wst}, v{RC+j}")
        a(f"v_mul_u32_u24 v{RC+j}, {(NWIN << 17) // (N + o.w0 + 31 * o.wst)}, v{RC+j}\nv_lshrrev_b32 v{RC+j}, 17, v{RC+j}\nv_add_u32 v{RC+j}, v{RC+j}, v{DS_+j}")
    a(f"s_mov_b64 exec, s[{S+2}:{S+3}]\ns_waitcnt lgkmcnt(0)")
    for j in (1, 2, 0):
        if j == 0: a(f"s_mov_b64 exec, s[{S}:{S+1}]")
        a(f"v_add_lshl_u32 v{QA+j}, v{QA+j}, v{RKP+j}, 1\nv_mad_u32_u24 v{T0+10+j}, v{QA+j}, 6, s{S+5}")
        a(f"ds_write_b16 v{QA+j}, v{T0+5+j} offset:{L_ID}\nds_write2_b32 v{T0+10+j}, v{YY+2*j}, v{YY+2*j+1} offset1:1\nds_write_b32 v{T0+10+j}, v{RC+j} offset:8")
    a("s_mov_b64 exec, -1")
    dma(PD[2])
    TA_, TP_ = T0 + 14, T0 + 15
    for j in range(4):
        a(f"v_add_u32 v{HB+j}, s3, v{HB+j}\nv_lshl_add_u32 v{TR+2*j}, v{HC+j}, 19, v{HB+j}\nv_mov_b32 v{TR+2*j+1}, s{sTAG}")
    a(f"s_lshl_b32 s{sTMP}, s2, 11\ns_add_u32 s{sTMP}, s{sTMP}, {WS_TABLE}\nv_add_u32 v{TA_}, s{sTMP}, v{vLANE16}")
    a(f"s_mul_i32 s{sTMP}, s3, 12\ns_add_u32 s{sTMP}, s{sTMP}, {WS_AUX}\ns_add_u32 s{rPA}, s{sWS}, s{sTMP}\ns_addc_u32 s{rPA+1}, s{sWS+1}, 0\ns_mov_b32 s{rPA+2}, {AUX_W}\ns_mov_b32 s{rPA+3}, 0x00020000")
    a(f"s_lshl_b32 s3, s3, 5\ns_add_u32 s{sTMP}, s3, {WS_EF}\ns_add_u32 s{rPE}, s{sWS}, s{sTMP}\ns_addc_u32 s{rPE+1}, s{sWS+1}, 0\ns_mov_b32 s{rPE+2}, {EF_W}\ns_mov_b32 s{rPE+3}, 0x00020000")
    a(f"v_and_b32 v{T0}, -2, v0\nv_and_b32 v{T0+1}, 16, v{C}\nv_add_u32 v{T0+1}, {L_RAW}, v{T0+1}")
    a("s_waitcnt lgkmcnt(0)\ns_barrier")
    if not o.cyc: stamp(a, o, 2, sST)
    for k in range(2):
        a(f"ds_read_b128 v[{P+4*k}:{P+4*k+3}], v{C+k} offset:{L_AUX}")
    for j in range(5):
        a(f"ds_read_u16 v{T0+2+j}, v{T0} offset:{L_ID + 512*j}")
    dma(PD[3])
    def pub():
        a(f"s_cmp_eq_u32 s{sW}, 7\ns_cbranch_scc0 L_nopub")
        a(f"global_store_dwordx4 v{TA_}, v[{TR}:{TR+3}], s[{sWS}:{sWS+1}] sc0 sc1\nglobal_store_dwordx4 v{TA_}, v[{TR+4}:{TR+7}], s[{sWS}:{sWS+1}] offset:1024 sc0 sc1")
        a("L_nopub:")
    if o.fs:
        pub()
        a(f"s_mul_i32 s3, s2, {o.fs}\ns_add_u32 s3, s3, {WS_FLAG}\nv_lshl_add_u32 v{TA_}, v{vL}, 2, s3")
    def auxst(k):
        a(f"buffer_store_dwordx4 v[{P+4*k}:{P+4*k+3}], v{C+k}, s[{rPA}:{rPA+3}], 0 offen sc0 sc1")
    for k in range(2):
        if not o.late:
            a(f"s_waitcnt lgkmcnt({6-k})")
            auxst(k)
    a("s_waitcnt lgkmcnt(0)")
    for j in range(5):
        if j == 4: a(f"v_min_u32 v{T0+2+j}, {CH*32-32}, v{T0+2+j}\nv_and_b32 v{T0+2+j}, -16, v{T0+2+j}")
        a(f"v_add_u32 v{T0+2+j}, v{T0+2+j}, v{T0+1}")
    if o.il == 1: init_lds()
    for r in range(0, 48, 2):
        a(f"v_mov_b64 v[{vACC+r}:{vACC+r+1}], 0")
    for r in range(0, 8, 2):
        a(f"v_mov_b64 v[{vA1+r}:{vA1+r+1}], 0")
    a(f"s_mov_b32 s{sMA}, 0x0f0f0f0f\ns_mov_b32 s{sMA+1}, s{sMA}\ns_not_b64 s[{sMB}:{sMB+1}], s[{sMA}:{sMA+1}]")
    a(f"v_lshrrev_b32 v{vLA}, 5, v{vL}\nv_lshlrev_b32 v{vLA}, 4, v{vLA}")
    a(f"v_and_b32 v{vLT}, 3, v{vL}\nv_lshlrev_b32 v{vLT}, 3, v{vLT}\nv_add_u32 v{vLT}, {L_T}, v{vLT}")
    XB = 512 if o.mark else 0
    XM = 0xfffffe00 if o.mark else 0xfffffc00
    if o.mark: a(f"s_sub_u32 s{rX}, s{rX}, {XB}\ns_subb_u32 s{rX+1}, s{rX+1}, 0")
    a(f"s_mov_b32 s{rX+2}, {N*1024 + XB}\ns_mov_b32 s{rX+3}, 0x00020000")
    srd(a, rAUX, sWS, AUX_BYTES, WS_AUX)
    a(f"s_mov_b32 s{sRK}, 0\ns_cmp_lt_u32 s2, 16\ns_cbranch_scc1 L_r40")
    for nm, R in (("39", R39), ("40", R40)):
        if nm == "40": a("s_branch L_rd\nL_r40:")
        for w, r in enumerate(R):
            a(f"s_cmp_eq_u32 s{sW}, {w}\ns_cselect_b32 s{sRK}, {hex(sum(x << (6*i) for i, x in enumerate(r)))}, s{sRK}")
    a("L_rd:")
    a(f"s_and_b32 s3, s2, 7\ns_lshl_b32 s3, s3, 7\ns_bfe_u32 s{sTMP}, s2, {(3 << 16) | 5}\ns_lshl_b32 s{sTMP}, s{sTMP}, 4\ns_add_u32 s3, s3, s{sTMP}")
    a(f"s_and_b32 s{sTMP}, s2, 8\ns_add_u32 s3, s3, s{sTMP}\ns_and_b32 s{sTMP}, s2, 16\ns_lshl_b32 s{sTMP}, s{sTMP}, 6\ns_add_u32 s3, s3, s{sTMP}\ns_add_u32 s3, s3, {WS_TABLE}")
    a(f"v_and_b32 v{vFA}, 255, v0\nv_lshl_add_u32 v{TP_}, v{vFA}, 11, s3")
    if o.fs: a(f"v_mul_u32_u24 v{vFA}, {o.fs}, v{vFA}\nv_add_u32 v{vFA}, {WS_FLAG}, v{vFA}")
    assert o.late or PD[4] == 0
    dma(PD[4])
    a(f"s_waitcnt vmcnt({(0 if o.late else 2) + 5})\ns_barrier")
    stamp(a, o, 3, sST)
    for j in range(5):
        a(f"ds_read_b128 v[{P+12+4*j}:{P+15+4*j}], v{T0+2+j}")
    if o.late:
        for k in range(2): auxst(k)
    for j in range(5):
        a(f"s_waitcnt lgkmcnt({4-j})\nbuffer_store_dwordx4 v[{P+12+4*j}:{P+15+4*j}], v{C+j}, s[{rPE}:{rPE+3}], 0 offen sc0 sc1")
    srd(a, rEF, sWS, EF_BYTES, WS_EF)
    srd(a, rOUT, sOUT, 0 if o.cyc == 3 else N * 1024)
    a("s_waitcnt vmcnt(0)\ns_barrier")
    stamp(a, o, 4, sST)
    PL = vX + 10
    POLL = f"global_load_dwordx2 v[{PL}:{PL+1}], v{TP_}, s[{sWS}:{sWS+1}] sc1"
    FPOLL = f"global_load_dword v{PL}, v{vFA}, s[{sWS}:{sWS+1}] sc1"
    if o.fs:
        a(f"s_cmp_eq_u32 s{sPAR}, 0\ns_cbranch_scc0 L_np0\n{POLL}\nL_np0:")
        a(f"s_cmp_eq_u32 s{sW}, 7\ns_cbranch_scc0 L_noflag\ns_mov_b64 exec, {hex((1 << (o.fs // 4)) - 1)}")
        a(f"global_store_dword v{TA_}, v{TR+1}, s[{sWS}:{sWS+1}] sc0 sc1\ns_mov_b64 exec, -1\nL_noflag:")
    else:
        pub()
    def xpf(r0, nrows, lab):
        per = nrows * 8 // 32
        assert per <= 256
        a(f"s_cmp_eq_u32 s{sPAR}, 0\ns_cbranch_scc1 {lab}")
        a(f"s_sub_u32 s3, 0, s2\ns_and_b32 s3, s3, 7\ns_mul_i32 s3, s3, {N // 8 * 1024}\ns_lshr_b32 s{sTMP}, s2, 3\ns_mul_i32 s{sTMP}, s{sTMP}, {per*128}\ns_add_u32 s3, s3, s{sTMP}\ns_add_u32 s3, s3, {r0*1024 + XB}")
        a(f"v_and_b32 v{vX+12}, 255, v0\nv_cmp_gt_u32 vcc, {per}, v{vX+12}\nv_lshlrev_b32 v{vX+12}, 7, v{vX+12}\nv_mov_b32 v{vX+13}, 0x7fffff00\nv_cndmask_b32 v{vX+12}, v{vX+13}, v{vX+12}, vcc")
        a(f"buffer_load_dword v{vX+14}, v{vX+12}, s[{rX}:{rX+3}], s3 offen\n{lab}:")
    if o.pfa: xpf(0, o.pfa, "L_pfa")
    F, V = P, U
    def fpoll():
        a(f"s_cmp_eq_u32 s{sPAR}, 0\ns_cbranch_scc1 L_npe\n{FPOLL}\nL_npe:")
    def bfrag(F, VA, hook=None):
        a(f"s_mov_b32 s{sT2+2}, 0x05040100\ns_mov_b32 s{sT2+3}, 0x07060302")
        a(f"s_and_b32 s3, s{sW}, 3\ns_lshl_b32 s3, s3, 6\nv_lshrrev_b32 v{VA}, 4, v{vL}\nv_and_b32 v{VA+1}, 15, v{vL}\nv_lshl_add_u32 v{VA+1}, v{VA+1}, 2, s3\nv_lshl_add_u32 v{VA}, v{VA}, 11, v{VA+1}")
        def brd(ks):
            for e in range(8):
                a(f"ds_read_b32 v{F+8*(ks&1)+e}, v{VA} offset:{L_WB + 8192*ks + 256*e}")
        brd(0)
        for ks in range(4):
            if hook: hook(ks)
            if ks < 3:
                a("s_waitcnt lgkmcnt(7)")
                brd(ks + 1)
            a(f"s_waitcnt lgkmcnt({8 if ks < 3 else 0})")
            for ep in range(4):
                x0 = F + 8 * (ks & 1) + 2 * ep
                a(f"v_perm_b32 v{vB+8*ks+ep}, v{x0+1}, v{x0}, s{sT2+2}\nv_perm_b32 v{vB+8*ks+4+ep}, v{x0+1}, v{x0}, s{sT2+3}")
    def wcvt(x0, d0, d1):
        a(f"v_lshlrev_b32 v{V+10}, 16, v{x0}\nv_lshlrev_b32 v{V+11}, 16, v{x0+1}\nv_and_b32 v{x0}, 0xffff0000, v{x0}\nv_and_b32 v{x0+1}, 0xffff0000, v{x0+1}")
        a(f"v_pk_mul_f32 v[{V+10}:{V+11}], v[{V+10}:{V+11}], s[{sT2}:{sT2+1}]\nv_pk_mul_f32 v[{x0}:{x0+1}], v[{x0}:{x0+1}], s[{sT2}:{sT2+1}]")
        a(f"v_cvt_pk_bf16_f32 v{d0}, v{V+10}, v{V+11}\nv_cvt_pk_bf16_f32 v{d1}, v{x0}, v{x0+1}")
    a(f"v_lshrrev_b32 v{V}, 5, v{vL}\nv_and_b32 v{V+1}, 31, v{vL}\nv_lshlrev_b32 v{V+1}, 2, v{V+1}\nv_lshl_add_u32 v{V}, v{V}, 11, v{V+1}")
    if o.wd:
        a(f"s_and_b32 s3, s{sW}, 3\ns_lshl_b32 s{sTMP}, s3, 9\ns_lshl_b32 s{sT2}, s{sPAR}, 7\ns_add_u32 s{sTMP}, s{sTMP}, s{sT2}\nv_add_u32 v{V}, s{sTMP}, v{V}")
        a(f"ds_read_b32 v{F}, v{V} offset:{L_WB + 32768}\nds_read_b32 v{F+1}, v{V} offset:{L_WB + 32768 + 256}")
        a(f"s_lshl_b32 s3, s3, 2\ns_lshl_b32 s{sTMP}, s{sPAR}, 10\ns_add_u32 s3, s3, s{sTMP}\nv_add_u32 v{V+4}, s3, v{vLANE16}")
    else:
        for h in range(2):
            if h: a("s_waitcnt lgkmcnt(7)")
            for e in range(8):
                a(f"ds_read_b32 v{F+8*h+e}, v{V} offset:{L_WB + 32768 + 256*e + 128*h}")
    a(f"v_and_b32 v{V+2}, 3, v{vL}\nv_bfe_u32 v{V+3}, v{vL}, 2, 2\nv_lshlrev_b32 v{V+3}, 1, v{V+3}\nv_lshl_add_u32 v{V+2}, v{V+2}, 5, v{V+3}\nv_add_u32 v{V+2}, {L_CG}, v{V+2}")
    a(f"s_mov_b32 s{sT2}, 0xbfb8aa3b\ns_mov_b32 s{sT2+1}, s{sT2}")
    if not o.wd: a("s_waitcnt lgkmcnt(0)")
    for f in range(4):
        a(f"ds_read_u16 v{V+6+f}, v{V+2} offset:{8*f}")
    if o.wd:
        a("s_waitcnt lgkmcnt(4)")
        wcvt(F, F + 2, F + 3)
        a(f"ds_write_b32 v{V+4}, v{F+2} offset:{L_WF}\nds_write_b32 v{V+4}, v{F+3} offset:{L_WF + 2048}")
    else:
        for h in range(2):
            for ep in range(4):
                wcvt(F + 8 * h + 2 * ep, vW + 4 * h + ep, vW + 8 + 4 * h + ep)
    a("s_waitcnt lgkmcnt(0)")
    if o.sc == 2:
        for f in range(4):
            a(f"v_lshlrev_b32 v{V+6+f}, 16, v{V+6+f}\nv_mul_f32 v{V+6+f}, 0xbf317218, v{V+6+f}")
        for h in range(2):
            a(f"v_cvt_pk_bf16_f32 v{vCG+h}, v{V+6+2*h}, v{V+7+2*h}\nv_lshlrev_b32 v{V+10}, 16, v{vCG+h}\nv_and_b32 v{V+11}, 0xffff0000, v{vCG+h}")
            a(f"v_sub_f32 v{V+10}, v{V+6+2*h}, v{V+10}\nv_sub_f32 v{V+11}, v{V+7+2*h}, v{V+11}\nv_cvt_pk_bf16_f32 v{vCG+2+h}, v{V+10}, v{V+11}")
    else:
        a(f"v_lshl_or_b32 v{vCG}, v{V+7}, 16, v{V+6}\nv_lshl_or_b32 v{vCG+1}, v{V+9}, 16, v{V+8}")
    def pkhook(ks):
        if ks == o.pk:
            if o.fs: fpoll()
            else: a(f"s_cmp_eq_u32 s{sPAR}, 0\ns_cbranch_scc0 L_npe\n{POLL}\nL_npe:")
    if o.bp == 0: bfrag(F + 16, V + 4, pkhook)
    else: assert o.pk >= 4
    if o.fs and o.pk == 4: fpoll()
    if o.pfb: xpf(o.pfa, o.pfb, "L_pfb")
    a(f"s_cmp_eq_u32 s{sPAR}, 0\ns_cbranch_scc0 L_round\ns_mov_b32 s3, 0")
    if o.pk < 4 or o.fs: a("s_branch L_poll1")
    a(f"L_poll:\n{POLL}\nL_poll1:\ns_add_u32 s3, s3, 1\ns_waitcnt vmcnt(0)")
    a(f"v_cmpx_ne_u32 vcc, s{sTAG}, v{PL+1}\ns_cbranch_execz L_pok\ns_cmp_lt_u32 s3, 400000\ns_cbranch_scc1 L_poll\nv_mov_b32 v{PL}, 0")
    a("L_pok:")
    a(f"s_mov_b64 exec, -1\nv_add_u32 v{U+2}, {L_TBL}, v{vRA}\nds_write_b32 v{U+2}, v{PL}")
    a("L_round:")
    TB = P + 8
    RQ = P + 8
    DL = P + 20
    RK = P + 0
    C12 = P + 3
    LW = P + 26
    TQ = P + 32
    a(f"v_add_u32 v{U+3}, {L_TBL}, v{vLANE16}\ns_and_b32 s{sTMP}, s{sW}, 3\nv_mov_b32 v{TB+8}, 0")
    a("s_waitcnt lgkmcnt(0)\ns_barrier")
    stamp(a, o, 5, sST)
    a(f"ds_read_b128 v[{TB}:{TB+3}], v{U+3}")
    if o.fs and o.pk == 5:
        a(f"s_cmp_lg_u32 s{sR0}, 0\ns_cbranch_scc1 L_npe")
        fpoll()
    a(f"v_mul_u32_u24 v{C12}, 12, v0\nv_add_u32 v{C12+1}, {512*12}, v{C12}\nv_add_u32 v{C12+2}, {1024*12}, v{C12}")
    a("s_waitcnt lgkmcnt(0)")
    for j in range(4):
        a(f"v_lshrrev_b32 v{TB+4+j}, 19, v{TB+j}")
    a(f"v_add_u32 v{TB+10}, v{TB+4}, v{TB+5}\nv_add3_u32 v{U}, v{TB+10}, v{TB+6}, v{TB+7}")
    scan(a, U, [[f"v_add_u32 v{U+1}, s{sR0}, v{U}", f"v_mov_b32 v{TB+9}, v{TB+4}"],
                [f"v_add_u32 v{TB+11}, v{TB+10}, v{TB+6}", f"s_set_gpr_idx_on s{sTMP}, gpr_idx(SRC0)", f"v_mov_b32 v{U+2}, v{TB}", f"v_mov_b32 v{U+3}, v{TB+4}", f"v_mov_b32 v{U+4}, v{TB+8}", "s_set_gpr_idx_off"],
                [f"v_and_b32 v{U+2}, 0x7ffff, v{U+2}", f"v_sub_u32 v{U+4}, v{U+4}, v{U+1}"],
                [f"v_subrev_u32 v{U+5}, s{sPAR}, v{U+3}", f"s_mov_b32 s{sTMP}, s{sPAR}"]])
    a(f"v_add_u32 v{U+4}, v{U+4}, v{U}\nv_readlane_b32 s{sTOT}, v{U}, 63\nv_sub_u32 v{U+2}, v{U+2}, v{U+4}\nv_add_lshl_u32 v{U+6}, v{U+4}, s{sPAR}, 2")
    a(f"s_cmp_gt_u32 s{sTOT}, {CAP}\ns_cbranch_scc1 L_exp")
    NX = 6
    for i in range(NX):
        a(f"v_cmpx_lt_i32 vcc, {2*i}, v{U+5}\nds_write_b32 v{U+6}, v{U+2} offset:{L_REC + 8*i}")
    a(f"v_cmpx_lt_i32 vcc, {2*NX}, v{U+5}\ns_cbranch_execz L_expd\ns_add_u32 s{sTMP}, s{sTMP}, {2*NX}")
    a("L_exp:")
    a(f"s_mov_b64 exec, -1\nv_cmp_lt_u32 vcc, s{sTMP}, v{U+3}\ns_cbranch_vccz L_expd")
    a(f"v_add_u32 v{U+7}, s{sTMP}, v{U+4}\ns_movk_i32 s3, {CAP}\nv_cmp_gt_u32 s[{sT2}:{sT2+1}], s3, v{U+7}\nv_lshlrev_b32 v{U+7}, 2, v{U+7}\ns_and_b64 exec, vcc, s[{sT2}:{sT2+1}]")
    a(f"ds_write_b32 v{U+7}, v{U+2} offset:{L_REC}\ns_add_u32 s{sTMP}, s{sTMP}, 2\ns_branch L_exp")
    def consts():
        a(f"s_sub_u32 s{sCNT}, s{sTOT}, s{sR0}\ns_min_u32 s{sCNT}, s{sCNT}, {CAP}\ns_lshl_b32 s3, s{sCNT}, 4")
        for k in range(3):
            a(f"v_cmp_gt_u32 s[{sM[k]}:{sM[k]+1}], s3, v{C+k}\nv_lshlrev_b32 v{LW+2*k+1}, 1, v{C+k}\nv_mov_b32 v{RQ+4*k+3}, 0")
        a(f"v_and_b32 v{vPW}, 15, v{vL}\nv_lshrrev_b32 v{U+1}, 4, v{vL}")
        a(f"s_mul_i32 s3, s{sPAR}, {80*AGS}\nv_mul_u32_u24 v{vEA}, {AGS}, v{vPW}\nv_lshl_add_u32 v{vEA}, v{U+1}, 4, v{vEA}\nv_add_u32 v{vEA}, s3, v{vEA}")
        a(f"s_mul_i32 s{sT2}, s{sPAR}, {20*256}\ns_add_u32 s{sT2}, s{sT2}, s2\ns_lshl_b32 s{sT2}, s{sT2}, 10\ns_and_b32 s3, s{sW}, 3\ns_lshl_b32 s3, s3, 8\ns_add_u32 s{sT2}, s{sT2}, s3")
        a(f"v_lshl_add_u32 v{vEO}, v{U+1}, 18, s{sT2}\nv_lshl_add_u32 v{vEO}, v{vPW}, 4, v{vEO}\nv_lshlrev_b32 v{vPW}, 3, v{vPW}")
        a(f"v_bfe_u32 v{vPA}, v{vL}, 3, 2\nv_and_b32 v{U}, 3, v{vL}\nv_lshl_add_u32 v{vPA}, v{vPA}, 2, v{U}\nv_lshlrev_b32 v{vPA}, 3, v{vPA}")
        a(f"v_lshrrev_b32 v{vPT}, 2, v{vL}\nv_lshlrev_b32 v{vPT}, 3, v{vPT}")
        a(f"v_mul_u32_u24 v{U+4}, 52, v{vL}\nv_lshrrev_b32 v{U+4}, 8, v{U+4}\nv_mul_u32_u24 v{U+5}, 5, v{U+4}\nv_sub_u32 v{U+5}, v{vL}, v{U+5}")
        a(f"v_mul_u32_u24 v{U+3}, 6, v{U+5}\nv_bfe_u32 v{U+3}, s{sRK}, v{U+3}, 6\nv_lshlrev_b32 v{U+3}, 2, v{U+3}\nv_lshlrev_b32 v{U+4}, 2, v{U+4}\nv_lshlrev_b32 v{U+5}, 19, v{U+5}")
        if o.mark: a(f"v_add_u32 v{U+5}, {XB << 16}, v{U+5}")
        a(f"s_mul_i32 s3, s{sW}, 5\nv_lshlrev_b32 v{U+6}, 2, v{vL}\nv_add_u32 v{U+9}, s3, v{vL}\nv_lshlrev_b32 v{U+7}, 2, v{U+9}")
        a(f"v_cmp_gt_u32 vcc, 40, v{vL}\nv_add_u32 v{U+8}, 1, v{vL}\nv_add_u32 v{U+9}, 1, v{U+9}\nv_cndmask_b32 v{U+8}, 0, v{U+8}, vcc")
        a(f"s_cmp_gt_u32 s{sTOT}, {CAP}\ns_cselect_b32 s{sT2+1}, 0, 8\nv_mov_b32 v{U+10}, 8")
    a("L_expd:")
    a("s_mov_b64 exec, -1")
    if o.ce: consts()
    if o.fs:
        a(f"s_cmp_eq_u32 s{sPAR}, 0\ns_cbranch_scc1 L_fok\ns_cmp_lg_u32 s{sR0}, 0\ns_cbranch_scc1 L_fok\ns_mov_b32 s3, 0\ns_waitcnt vmcnt({1 if o.pfb and o.pk < 5 else 0})\ns_branch L_fp1")
        a(f"L_fp:\n{FPOLL}\ns_add_u32 s3, s3, 1\ns_waitcnt vmcnt(0)\nL_fp1:")
        a(f"v_cmpx_ne_u32 vcc, s{sTAG}, v{PL}\ns_cbranch_execz L_fok\ns_cmp_lt_u32 s3, 400000\ns_cbranch_scc1 L_fp")
        a("L_fok:\ns_mov_b64 exec, -1")
    a("s_waitcnt lgkmcnt(0)\ns_barrier")
    for k in range(3):
        a(f"ds_read_b32 v{U+k}, v{vRA} offset:{L_REC + 2048*k}")
    for j in range(6):
        a(f"ds_read_b32 v{DL+j}, v{vRB} offset:{L_REC + 1024*j}")
    for k in range(3):
        a(f"s_waitcnt lgkmcnt({8-k})\nv_mad_i32_i24 v{U+k}, v{U+k}, 12, v{C12+k}")
        a(f"buffer_load_dwordx3 v[{RQ+4*k}:{RQ+4*k+2}], v{U+k}, s[{rAUX}:{rAUX+3}], 0 offen sc1")
    a("s_waitcnt lgkmcnt(0)")
    for j in range(6):
        a(f"v_lshl_add_u32 v{DL+j}, v{DL+j}, 5, v{C+j}")
    if o.efs[0] != "0" and o.b3: a("s_barrier")
    nef = [0]
    def efdma(n):
        for _ in range(n):
            j = nef[0]; nef[0] += 1
            a(f"s_add_u32 m0, s{sBASE}, {L_EF + 8192*j}\ns_nop 0\nbuffer_load_dwordx4 v{DL+j}, s[{rEF}:{rEF+3}], 0 offen sc1 lds")
    EFS = [int(c) for c in o.efs]; assert sum(EFS) == 6 and len(EFS) == 5
    efdma(EFS[0])
    if not o.ce: consts()
    if o.pfc:
        per = o.pfc * 8 // 256
        a(f"s_sub_u32 s3, 0, s2\ns_and_b32 s3, s3, 7\ns_mul_i32 s3, s3, {N // 8 * 1024}\ns_and_b32 s{sTMP}, s2, -8\ns_add_u32 s{sTMP}, s{sTMP}, s{sW}\ns_mul_i32 s{sTMP}, s{sTMP}, {per*128}\ns_add_u32 s3, s3, s{sTMP}\ns_add_u32 s3, s3, {(o.pfa + o.pfb)*1024 + XB}")
        a(f"v_cmp_gt_u32 vcc, {per}, v{vL}\nv_lshl_add_u32 v{vFA}, v{vL}, 7, s3\nv_mov_b32 v{U}, 0x7fffff00\nv_cndmask_b32 v{vFA}, v{U}, v{vFA}, vcc")
    if o.wd or o.bp == 1:
        a(f"s_cmp_lg_u32 s{sR0}, 0\ns_cbranch_scc1 L_nofr")
        if o.wd:
            for q in range(4):
                a(f"ds_read_b128 {vr(vW+4*q,4)}, v{vLANE16} offset:{L_WF + 1024*q}")
        if o.bp == 1: bfrag(vX + 16, TQ)
        a("L_nofr:")
    for k in range(3):
        a(f"s_waitcnt vmcnt({2 - k + EFS[0]})")
        if k == 0: stamp(a, o, 6, sST)
        a(f"s_mov_b64 exec, s[{sM[k]}:{sM[k]+1}]\nv_and_b32 v{RQ+4*k+3}, 0x3ff, v{RQ+4*k+2}\nv_lshrrev_b32 v{U+k}, 24, v{RQ+4*k+2}\nv_lshlrev_b32 v{RQ+4*k+3}, 2, v{RQ+4*k+3}")
        a(f"ds_add_u32 v{U+k}, v{U+10} offset:{L_DEG}\nds_add_rtn_u32 v{RK+k}, v{RQ+4*k+3}, v{U+10} offset:{L_CELL}")
    a("s_mov_b64 exec, -1")
    def tcomp(k):
        for oo in range(4):
            a(f"v_mfma_f32_4x4x4_16b_bf16 {vr(TQ+4*oo,4)}, {vr(vCG,2)}, {vr(RQ+4*k,2)}, 0 cbsz:4 abid:{oo}")
        if o.sc == 2:
            for oo in range(4):
                a(f"v_mfma_f32_4x4x4_16b_bf16 {vr(TQ+4*oo,4)}, {vr(vCG+2,2)}, {vr(RQ+4*k,2)}, {vr(TQ+4*oo,4)} cbsz:4 abid:{oo}")
        a(f"v_add_u32 v{U+11}, {L_T}, v{LW+2*k+1}\ns_nop 0")
        for q in range(8):
            a(f"v_cvt_pk_bf16_f32 v{TQ+16+q}, v{TQ+2*q}, v{TQ+2*q+1}")
    def twrite():
        a(f"ds_write_b128 v{U+11}, v[{TQ+16}:{TQ+19}]\nds_write_b128 v{U+11}, v[{TQ+20}:{TQ+23}] offset:16")
    efdma(EFS[1])
    if o.tl < 3: tcomp(0)
    a("s_waitcnt lgkmcnt(0)\ns_barrier")
    a(f"ds_read_b32 v{U}, v{U+6} offset:{L_DEG}\nds_read_b32 v{U+1}, v{U+7} offset:{L_DEG}")
    if o.tl < 3: twrite()
    a(f"v_lshlrev_b32 v{U+7}, 4, v{U+7}")
    for k in range(3):
        a(f"v_and_b32 v{RQ+4*k+2}, 0xfffc00, v{RQ+4*k+2}")
    a(f"s_waitcnt lgkmcnt({2 if o.tl < 3 else 0})\nv_mad_u32_u24 v{U+9}, v{U+1}, s{sT2+1}, v{U+9}\nv_mad_u32_u24 v{U+8}, v{U}, s{sT2+1}, v{U+8}")
    for j in range(5):
        a(f"v_readlane_b32 s{sN+j}, v{U+9}, {j}")
    a(f"v_lshl_add_u32 v{U+7}, v{U+1}, 16, v{U+7}")
    for j in range(5):
        a(f"v_cmp_lt_u32 s[{S+2*j}:{S+2*j+1}], s{sN+j}, v{U+8}")
    for j in range(5):
        a(f"s_bcnt1_i32_b64 s{sN+j}, s[{S+2*j}:{S+2*j+1}]\nv_writelane_b32 v{U}, s{sN+j}, {j}")
    a(f"s_mov_b64 exec, 31\nv_lshlrev_b32 v{U}, 2, v{U}\nds_write_b32 v{U}, v{U+7} offset:{L_INV}\ns_mov_b64 exec, -1")
    efdma(EFS[2])
    a("s_waitcnt lgkmcnt(0)\ns_barrier")
    a(f"ds_read_b32 v{U}, v{U+3} offset:{L_INV}")
    if o.tl < 2: tcomp(1)
    a(f"s_waitcnt lgkmcnt(0)\nv_add_u32_sdwa v{U+4}, v{U}, v{U+4} dst_sel:DWORD dst_unused:UNUSED_PAD src0_sel:WORD_0 src1_sel:DWORD")
    a(f"ds_read_b32 v{U+1}, v{U+4} offset:{L_CELL}")
    for j in range(5):
        a(f"v_readlane_b32 s{sN+j}, v{U}, {j}")
    a(f"s_add_u32 s3, s{sN}, s{sN+1}\ns_add_u32 s3, s3, s{sN+2}\ns_add_u32 s3, s3, s{sN+3}\ns_add_u32 s3, s3, s{sN+4}\ns_lshr_b32 s{sCNT}, s3, 16")
    a(f"s_add_u32 s3, s{sCNT}, {8*PADN}\nv_mov_b32 v{U+2}, s3\nv_mov_b32 v{U+6}, 0\ns_mov_b64 exec, 1\nds_add_rtn_u32 v{U+2}, v{U+6}, v{U+2} offset:{L_CNT}\ns_mov_b64 exec, -1")
    a("s_waitcnt lgkmcnt(1)")
    mk = [f"s_sub_u32 s3, 0, s{sCNT}", f"s_bfe_u32 s3, s3, {((G.bit_length() - 1) << 16) | 3}", f"s_add_u32 s3, s3, {D}", f"v_writelane_b32 v{U+8}, 40, s3"] if o.mark else []
    scan(a, U + 1, [[f"v_sub_u32 v{U+5}, v{U+5}, v{U+1}"], [], [f"v_mov_b32 v{U+8}, {0x7ffffc00 | 40}", f"v_mov_b32 v{U+9}, 0"], mk,
                    ["s_waitcnt lgkmcnt(0)", f"v_readfirstlane_b32 s{sT2+3}, v{U+2}"], [f"s_add_u32 s3, s{sT2+3}, s{sCNT}", f"v_lshl_add_u32 v{U+6}, v{vL}, 3, s3"]])
    a(f"s_mov_b32 exec_hi, 0x0fffffff\nv_add3_u32 v{U+1}, v{U+1}, v{U+5}, s{sT2+3}\nds_write_b32 v{U+4}, v{U+1} offset:{L_CELL}")
    a(f"ds_write_b64 v{U+6}, v[{U+8}:{U+9}] offset:{L_LIST}\ns_mov_b64 exec, -1")
    if o.tl < 2: twrite()
    efdma(EFS[3])
    a(f"s_waitcnt lgkmcnt({2 if o.tl < 2 else 0})\ns_barrier")
    for k in range(3):
        a(f"ds_read_b32 v{U+k}, v{RQ+4*k+3} offset:{L_CELL}")
    a(f"v_add_u32 v{vPW}, s{sT2+3}, v{vPW}\nv_add_u32 v{vPA}, s{sT2+3}, v{vPA}\nv_add_u32 v{vPT}, s{sT2+3}, v{vPT}\ns_lshr_b32 s{sCNT}, s{sCNT}, 3")
    for k in range(3):
        a(f"s_mov_b64 exec, s[{sM[k]}:{sM[k]+1}]\ns_waitcnt lgkmcnt(2)")
        a(f"v_add_u32_sdwa v{RK+k}, v{U+k}, v{RK+k} dst_sel:DWORD dst_unused:UNUSED_PAD src0_sel:WORD_0 src1_sel:DWORD")
        a(f"v_or_b32_sdwa v{LW+2*k}, v{U+k}, v{RQ+4*k+2} dst_sel:DWORD dst_unused:UNUSED_PAD src0_sel:WORD_1 src1_sel:DWORD")
        a(f"ds_write_b64 v{RK+k}, v[{LW+2*k}:{LW+2*k+1}] offset:{L_LIST}")
    a("s_mov_b64 exec, -1")
    efdma(EFS[4])
    a("s_waitcnt lgkmcnt(0)\ns_barrier")
    stamp(a, o, 7, sST)
    a(f"ds_read_b32 v{U}, v{vPW}\nds_read_b32 v{vWD[0]}, v{vPW} offset:{8*D}\nds_read_b32 v{vIA}, v{vPA} offset:4\nds_read_b32 v{vIT}, v{vPT} offset:4")
    if o.tl == 0:
        a(f"s_cmp_eq_u64 s[{sM[2]}:{sM[2]+1}], 0\ns_cbranch_scc1 L_not3")
        tcomp(2)
        twrite()
        a("s_waitcnt lgkmcnt(2)\ns_branch L_t3\nL_not3:\ns_waitcnt lgkmcnt(0)\nL_t3:")
    else:
        a("s_waitcnt lgkmcnt(3)")
    XS = [int(c) for c in o.xs]; assert sum(XS) == D and len(XS) == 4
    nx = [0]
    def xld(n):
        for _ in range(n):
            k = nx[0]; nx[0] += 1
            t = sT2 + 2 + (k & 1)
            a(f"s_and_b32 s{t}, s{sRING+k}, {XM}\nbuffer_load_dwordx4 v[{vX+4*k}:{vX+4*k+3}], v{vLANE16}, s[{rX}:{rX+3}], s{t} offen")
    for k in range(D):
        if k == XS[0]: xld(XS[0])
        a(f"v_readlane_b32 s{sRING+k}, v{U}, {k}")
    xld(XS[0] - nx[0])
    if o.tl:
        for k in range(3 - o.tl, 3):
            if k == 2: a(f"s_cmp_eq_u64 s[{sM[2]}:{sM[2]+1}], 0\ns_cbranch_scc1 L_not3")
            tcomp(k)
            twrite()
        a("L_not3:\ns_waitcnt lgkmcnt(0)")
    a(f"v_add_u32 v{vIA}, v{vIA}, v{vLA}\nv_add_u32 v{vIT}, v{vIT}, v{vLT}")
    a(f"v_readlane_b32 s{sRING+D}, v{vWD[0]}, 0")
    if o.m4: a(f"s_mov_b32 s0, {XM}")
    if o.a64: a(f"v_readlane_b32 s{sRING+D+1}, v{vWD[0]}, 1\ns_mov_b32 s0, 0xfffffc00\ns_mov_b32 s1, s0")
    for s in range(5):
        a(f"s_and_b32 s{sN+s}, s{sN+s}, 0xffff\ns_mulk_i32 s{sN+s}, {4*AGS//64}")
    if o.a64: a(f"s_and_b64 s[{sT2}:{sT2+1}], s[{sRING+D}:{sRING+D+1}], s[0:1]")
    else: a(f"s_and_b32 s{sT2}, s{sRING+D}, {XM}")
    if o.bp == 2:
        a(f"s_cmp_lg_u32 s{sR0}, 0\ns_cbranch_scc1 L_nofr2\ns_waitcnt lgkmcnt(0)")
        bfrag(P + 8, P)
        a("L_nofr2:")
    a(f"s_waitcnt vmcnt({XS[0]}) lgkmcnt(0)\ns_barrier")
    stamp(a, o, 8, sST)
    if o.cyc: a(f"s_memtime s[{sST+2}:{sST+3}]")
    if o.cyc == 2: a(f"s_mov_b32 s{rX+2}, 0")
    a(f"s_cmp_eq_u32 s{sCNT}, 0\ns_cbranch_scc1 L_exit\ns_sub_u32 s{sCNT}, s{sCNT}, 1")

    def rdA(buf):
        a(f"s_mov_b64 exec, s[{sMA}:{sMA+1}]\nds_read_b128 v[{vA1}:{vA1+3}], v{vIA} offset:{L_EF}")
        a(f"s_mov_b64 exec, s[{sMB}:{sMB+1}]\nds_read_b128 v[{vA2}:{vA2+3}], v{vIA} offset:{L_EF}\ns_mov_b64 exec, -1")
        a(f"ds_read_b64 v[{vT[buf]}:{vT[buf]+1}], v{vIT}")
    def zm(buf, q):
        par, h = q >> 1, q & 1
        z = vr(Z(buf, par), 16)
        return f"v_mfma_f32_32x32x16_bf16 {z}, {vr(vA2 if h else vA1, 4)}, {vr(vW + 4*q, 4)}, {z if h else '0'}"
    def unit(u):
        u %= 32
        return Z(u >> 4, u & 1, (u & 15) & ~1)
    def ta(u): return vTA + 2 * (u & 1)
    def EXP(u, j): return f"v_exp_f32 v{ta(u)+j}, v{unit(u)+j}"
    def RCP(u, j): return f"v_rcp_f32 v{ta(u)+j}, v{ta(u)+j}"
    def PADD(u): return f"v_pk_add_f32 {vr(ta(u),2)}, {vr(ta(u),2)}, 1.0 op_sel_hi:[1,0]"
    def PMUL(u): return f"v_pk_mul_f32 {vr(unit(u),2)}, {vr(unit(u),2)}, {vr(ta(u),2)}"
    rdA(0)
    xld(XS[1])
    a("s_waitcnt lgkmcnt(1)")
    for q in range(4):
        a(zm(0, q))
    xld(XS[2])
    a(f"s_waitcnt lgkmcnt(0)\ns_nop {max(0, 10 - 2 * XS[2])}")
    a(EXP(0, 0)); a(EXP(0, 1)); a(EXP(1, 0)); a(EXP(1, 1)); a(PADD(0)); a(PADD(1)); a(RCP(0, 0)); a(RCP(0, 1)); a("s_nop 0"); a(PMUL(0))
    xld(XS[3])
    if o.pfc:
        a(f"buffer_load_dword v{vFA}, v{vFA}, s[{rX}:{rX+3}], 0 offen")
    zsteps = {int(c, 16): q for q, c in enumerate(o.zs)}; assert len(zsteps) == 4 and min(zsteps) >= 4 and max(zsteps) <= 12
    if o.align:
        a(f".p2align {o.align}")
    for _ in range(o.pad): a("s_nop 0")
    a("L_loop:")
    ORD = [x.split() for x in o.order.split("|")]
    for i in range(32):
        b, s = i >> 4, i & 15
        x = vX + 4 * (i % 8)
        xl = vX + 4 * ((i + D) % 8)
        ring = sRING + (i + 1 + D) % 32
        sel = "op_sel_hi:[0,1,1]" if s % 2 == 0 else "op_sel:[1,0,0]"
        def extra():
            if o.prio and i % o.prio == 0:
                a(f"s_setprio {3 - (i // o.prio) % 4}")
            if s == 0:
                a(f"ds_read_b32 v{vIA}, v{vPA} offset:{4 + 128*(b+1)}\nds_read_b32 v{vIT}, v{vPT} offset:{4 + 128*(b+1)}")
                a(f"ds_read_b32 v{vWD[1-b]}, v{vPW} offset:{8*D + 128*(b+1)}")
            if s == 2:
                a(f"s_waitcnt lgkmcnt(0)\nv_add_u32 v{vIA}, v{vIA}, v{vLA}\nv_add_u32 v{vIT}, v{vIT}, v{vLT}")
                rdA(1 - b)
        T = dict(
            M0=f"v_mfma_f32_4x4x4_16b_bf16 {vr(vDD,4)}, {vr(vT[b],2)}, {vr(x,2)}, 0 cbsz:4 abid:{s}",
            M1=f"v_mfma_f32_4x4x4_16b_bf16 {vr(vDD+4,4)}, {vr(vT[b],2)}, {vr(x+2,2)}, 0 cbsz:4 abid:{s}",
            RL=f"v_readlane_b32 s{ring}, v{vWD[((i + 1) >> 4) & 1]}, {(i + 1) & 15}",
            AND=f"s_and_b32 s{sT2 + (i + 1) % 2}, s{ring}, {'s0' if o.m4 else XM}",
            LD=f"buffer_load_dwordx4 {vr(xl,4)}, v{vLANE16}, s[{rX}:{rX+3}], s{sT2 + i % 2} offen {o.xf}",
            WT=f"s_waitcnt vmcnt({D-1})" + (" lgkmcnt(0)" if s == min(zsteps) else ""),
            F="\n".join(f"v_pk_fma_f32 {vr(vACC+2*q,2)}, {vr(Z(b, q >> 1, s & ~1),2)}, {vr(vDD+2*q,2)}, {vr(vACC+2*q,2)} {sel}" for q in range(4)),
            ON=f"s_set_gpr_idx_on s{sRING + i}, gpr_idx(SRC2,DST)", OFF="s_set_gpr_idx_off",
            E0=EXP(i+2, 0), E1=EXP(i+2, 1), R0=RCP(i+1, 0), R1=RCP(i+1, 1), PA=PADD(i+2), PM=PMUL(i+1),
            Z=zm(1 - b, zsteps.get(s, 0)))
        if o.a64:
            ring = sRING + (i + 2 + D) % 32
            T["RL"] = f"v_readlane_b32 s{ring}, v{vWD[((i + 2) >> 4) & 1]}, {(i + 2) & 15}"
            t2 = sT2 + (i + 1) % 4
            T["AND"] = f"s_and_b64 s[{t2}:{t2+1}], s[{ring-1}:{ring}], s[0:1]" if i & 1 else ""
            T["LD"] = f"buffer_load_dwordx4 {vr(x,4)}, v{vLANE16}, s[{rX}:{rX+3}], s{sT2 + i % 4} offen"
        if o.w2:
            T["WT"] = (f"s_waitcnt vmcnt({D-2})" + (" lgkmcnt(0)" if s == 4 else "")) if i % 2 == 0 else ""
        for t in ORD[1 if s in zsteps else 0]:
            if t == "X": extra()
            else: a(T[t])
        if (i + 1) % G == 0:
            if o.mark: a("s_cbranch_scc0 L_exit")
            else: a(f"s_sub_u32 s{sCNT}, s{sCNT}, {G}\ns_cbranch_scc1 L_exit")
    a(f"v_add_u32 v{vPW}, 256, v{vPW}\nv_add_u32 v{vPA}, 256, v{vPA}\nv_add_u32 v{vPT}, 256, v{vPT}")
    a("s_branch L_loop")
    a("L_more:")
    a(f"s_waitcnt vmcnt(0) lgkmcnt(0)\ns_barrier\nv_lshlrev_b32 v{C}, 4, v0")
    for j in range(1, 6):
        a(f"v_add_u32 v{C+j}, {8192*j}, v{C}")
    init_lds()
    a("s_branch L_round")
    a("L_exit:")
    a(f"s_add_u32 s{sR0}, s{sR0}, {CAP}\ns_cmp_lt_u32 s{sR0}, s{sTOT}\ns_cbranch_scc1 L_more")
    stamp(a, o, 9, sST)
    if o.cyc: a(f"s_memtime s[{sST+4}:{sST+5}]")
    Q = vW
    for s in range(5):
        c = vACC + 8 * s
        a(f"s_mov_b32 m0, s{sN+s}")
        if o.sc == 1:
            if s == 0: a(f"s_mov_b32 s{sT2}, 0xbf317218\ns_mov_b32 s{sT2+1}, s{sT2}")
            for q in range(4):
                a(f"v_pk_mul_f32 {vr(c+2*q,2)}, {vr(c+2*q,2)}, s[{sT2}:{sT2+1}]")
        for oo in range(4):
            a(f"v_cvt_pk_bf16_f32 v{c+oo}, v{c+oo}, v{c+4+oo}")
        for oo in range(4):
            a(f"ds_write_addtid_b32 v{c+oo} offset:{L_AGG + oo*AGS}")
    a(f"s_mov_b32 s{sT2}, 0xbf317218")
    a("s_waitcnt lgkmcnt(0)\ns_barrier")
    stamp(a, o, 10, sST)
    AF = vACC
    DF = vACC + 32
    def rdtile(k):
        for ks in range(4):
            a(f"ds_read_b128 {vr(AF+16*(k&1)+4*ks,4)}, v{vEA} offset:{L_AGG + 16*k*AGS + 64*ks}")
    def fin(kk):
        dd = DF + 8 * (kk & 1)
        t = Q + 8 + 4 * (kk & 1)
        r = [f"v_mul_f32 v{dd+q}, s{sT2}, v{dd+q}" for q in range(8)] if o.sc == 0 else []
        r += [f"v_cvt_pk_bf16_f32 v{t+q}, v{dd+2*q}, v{dd+2*q+1}" for q in range(4)]
        r += [f"s_mov_b32 s3, {kk << 20}\nbuffer_store_dwordx4 {vr(t,4)}, v{vEO}, s[{rOUT}:{rOUT+3}], s3 offen {o.of}"]
        return r
    rdtile(0)
    for k in range(5):
        if k < 4:
            rdtile(k + 1)
        else:
            a("s_nop 3")
        d = DF + 8 * (k & 1)
        f = fin(k - 1) if k else []
        for ks in range(4):
            a(f"s_waitcnt lgkmcnt({(4 if k < 4 else 0) + 3 - ks})")
            for par in range(2):
                a(f"v_mfma_f32_16x16x32_bf16 {vr(d+4*par,4)}, {vr(AF+16*(k&1)+4*ks,4)}, {vr(vB+8*ks+4*par,4)}, {'0' if ks == 0 else vr(d+4*par,4)}")
                if ks > 0:
                    for _ in range(o.fi):
                        if f: a(f.pop(0))
        for x in f: a(x)
    a(f"s_or_b32 s{sTMP}, s2, s{sW}\ns_cbranch_scc1 L_noep\nv_lshlrev_b32 v{Q}, 2, v{vL}\nv_mov_b32 v{Q+1}, s{sTAG}\nglobal_store_dword v{Q}, v{Q+1}, s[{sWS}:{sWS+1}] offset:{WS_EPOCH} sc0 sc1\nL_noep:")
    a("s_nop 5")
    for x in fin(4): a(x)
    if o.stamps:
        a("s_waitcnt vmcnt(0)")
    stamp(a, o, 11, sST)
    stamp_out(a, o, 12, sST, sWS, sW, 0, Q)
    a("L_end:\ns_endpgm")
    return a.text(), NV, 102

def build(o):
    ref = open("cdna_kernels/" + NAME + ".s.ref").read().split("\n")
    head = [l for l in ref if l.startswith(";") and "@launch" not in l and "Override" not in l and "grid=ceil" not in l]
    out = "\n".join(head) + "\n"
    out += f"; @launch grid=(256,1,1) block=(512,1,1) lds={LDS}\n"
    out += "; generated by gen/gen5.py\n"
    out += '.amdgcn_target "amdgcn-amd-amdhsa--gfx950"\n.text\n'
    nm = NAME + "_kernel"
    t, v, s = kern(o)
    out += f".globl {nm}\n.p2align 8\n.type {nm},@function\n{nm}:\n" + t
    out += KD.format(name=nm, v=v, s=s, acc=(v + 3) // 4 * 4)
    return out

def parser():
    p = argparse.ArgumentParser()
    p.add_argument("-o", default="cdna_kernels/" + NAME + ".s")
    p.add_argument("--G", type=int, default=4)
    p.add_argument("--prio", type=int, default=4)
    p.add_argument("--pd", default="2350")
    p.add_argument("--late", type=int, default=0)
    p.add_argument("--efs", default="21111")
    p.add_argument("--xs", default="4220")
    p.add_argument("--pfa", type=int, default=520)
    p.add_argument("--pfb", type=int, default=0)
    p.add_argument("--pk", type=int, default=4)
    p.add_argument("--order", default="X WT R0 M0 E1 M1 E0 RL R1 PA PM AND ON LD F OFF | WT M1 M0 R1 X Z E0 E1 RL R0 PA PM AND ON LD F OFF")
    p.add_argument("--align", type=int, default=0)
    p.add_argument("--pad", type=int, default=0)
    p.add_argument("--cpf", type=int, default=2)
    p.add_argument("--kf", default="")
    p.add_argument("--yf", default="")
    p.add_argument("--ef", default="")
    p.add_argument("--of", default="sc0 sc1")
    p.add_argument("--a64", type=int, default=0)
    p.add_argument("--w2", type=int, default=0)
    p.add_argument("--mark", type=int, default=0)
    p.add_argument("--m4", type=int, default=0)
    p.add_argument("--b1", type=int, default=1)
    p.add_argument("--b2", type=int, default=1)
    p.add_argument("--il", type=int, default=0)
    p.add_argument("--xf", default="")
    p.add_argument("--zs", default="579b")
    p.add_argument("--fs", type=int, default=0)
    p.add_argument("--wd", type=int, default=0)
    p.add_argument("--bp", type=int, default=0)
    p.add_argument("--ce", type=int, default=0)
    p.add_argument("--tl", type=int, default=0)
    p.add_argument("--b3", type=int, default=1)
    p.add_argument("--w0", type=int, default=350)
    p.add_argument("--wst", type=int, default=0)
    p.add_argument("--pfc", type=int, default=0)
    p.add_argument("--D", type=int, default=8)
    p.add_argument("--sc", type=int, default=0)
    p.add_argument("--fi", type=int, default=2)
    p.add_argument("--cyc", type=int, default=0)
    p.add_argument("--stamps", type=int, default=0)
    return p

if __name__ == "__main__":
    o = parser().parse_args()
    open(o.o, "w").write(build(o))
```

```python
import sys, argparse
from gen import A, vr, srd, stamp, stamp_out, KD, NAME, N, WS_STAMP, k3
from gen2 import scan

R39 = [[8, 14, 18, 23, 36], [3, 13, 19, 29, 37], [0, 4, 9, 17, 39], [1, 12, 21, 31, 38], [2, 16, 26, 30, 33], [6, 11, 22, 28, 34], [7, 15, 20, 25, 32], [5, 10, 24, 27, 35]]
R40 = [[1, 15, 26, 28, 34], [7, 12, 16, 29, 32], [5, 8, 21, 27, 35], [0, 13, 23, 30, 39], [4, 11, 17, 24, 37], [3, 9, 19, 25, 38], [2, 14, 20, 31, 33], [6, 10, 18, 22, 36]]

CH, CS = 1250, 1280
WS_EPOCH = 0
WS_TABLE = 0x1000
WS_FLAG  = 0x90000
WS_AUX   = 0x100000
WS_EF    = 0x800000
AUX_BYTES = 256 * CS * 12
EF_BYTES = 256 * CS * 32
AUX_W = (CH * 12 + 127) // 128 * 128
EF_W = (CH * 32 + 127) // 128 * 128

CAP = 1536
PADN = 60
NWIN = 12
L_LIST = 0
L_AGG = (CAP + 8 * PADN) * 8
L_CELL = L_AGG
L_DEG = L_CELL + 2560
L_INV = L_DEG + 512
L_CNT = L_INV + 256
L_REC = L_CELL + 4096
L_WB = L_REC + CAP * 4
L_EF = L_WB + 36864
L_T = L_EF + CAP * 32
L_TBL = L_T + CAP * 32
L_CG = L_TBL + 1024
LDS = L_CG + 1024
AGS = 288
assert L_AGG + 160 * AGS <= L_EF and L_EF < 65536 and LDS <= 163840
L_HIST, L_BASE, L_ID = 0, 1024, 2048
L_WF = 8192
L_AUX, L_RAW = L_EF, L_T

def kern(o):
    a = A()
    D, G = o.D, o.G
    sX, sSRC, sDST, sY, sEFI, sWR, sCG, sWM, sOUT, sWS = 4, 6, 8, 10, 12, 14, 16, 18, 20, 22
    rX, rAUX, rEF, rOUT = 4, 8, 12, 16
    sW, sTOT, sTAG, sPAR, sR0, sCNT, sBASE, sTMP = 24, 25, 26, 27, 28, 29, 30, 31
    sMA, sMB = 32, 34
    sRING = 36
    S = sRING
    sM = [S + 20, S + 22, S + 24]
    rPA, rPE = S + 12, S + 16
    sT2, sST, sN, sRK = 68, 72, 96, 101
    vLANE16, vLA, vLT, vPW, vPA, vPT = 1, 2, 3, 4, 5, 6
    vWD = [7, 8]
    vIA, vIT, vL = 9, 10, 11
    vTA, vDD, vA1, vA2 = 12, 16, 24, 28
    vT = [32, 34]
    vW, vB, vACC = 36, 52, 84
    vZ = vACC + 48
    vX = vZ + 64
    vCG = vX + 32
    vEA, vEO = vCG + 4, vCG + 5
    vFA = vEO + 1
    NV = vFA + 1
    P, U = vZ, vTA
    def Z(buf, par, s=0): return vZ + 32 * buf + 16 * par + s

    DS_, SR_, YY, QA, RKP, RC, HC, HB, T0 = P, P + 4, P + 8, P + 14, P + 17, P + 20, P + 32, P + 36, P + 40
    TR = vX
    C = P + 56
    vRA, vRB = P + 62, P + 63
    a("s_load_dwordx16 s[4:19], s[0:1], 0\ns_load_dwordx2 s[22:23], s[0:1], 80\ns_load_dwordx2 s[20:21], s[0:1], 64")
    stamp(a, o, 0, sST)
    a("s_cmp_ge_u32 s2, 256\ns_cbranch_scc1 L_end")
    a(f"v_mul_u32_u24 v{T0}, 3, v0\ns_mul_i32 s3, s2, {CH}\nv_min_u32 v{T0}, {CH-3}, v{T0}\nv_add_lshl_u32 v{T0+1}, v{T0}, s3, 2")
    a(f"v_lshrrev_b32 v{U}, 6, v0\nv_and_b32 v{U+1}, 255, v0\nv_lshlrev_b32 v{U+1}, 2, v{U+1}\nv_mov_b32 v{U+4}, 0")
    a(f"v_readfirstlane_b32 s{sW}, v{U}\nds_write_b32 v{U+1}, v{U+4} offset:{L_HIST}\nv_lshlrev_b32 v{T0+2}, 1, v{T0+1}")
    a("s_waitcnt lgkmcnt(0)")
    a(f"global_load_dwordx3 v[{DS_}:{DS_+2}], v{T0+1}, s[{sDST}:{sDST+1}] {o.kf}")
    a(f"s_load_dword s{sTAG}, s[{sWS}:{sWS+1}], {WS_EPOCH}")
    if o.b1: a("s_barrier")
    a(f"global_load_dwordx3 v[{SR_}:{SR_+2}], v{T0+1}, s[{sSRC}:{sSRC+1}] {o.kf}")
    a(f"global_load_dwordx4 v[{YY}:{YY+3}], v{T0+2}, s[{sY}:{sY+1}] {o.yf}\nglobal_load_dwordx2 v[{YY+4}:{YY+5}], v{T0+2}, s[{sY}:{sY+1}] offset:16 {o.yf}")
    def cpf():
        a(f"s_cmp_eq_u32 s{sW}, 7\ns_cbranch_scc0 L_nocpf\ns_cmp_lt_u32 s2, 8\ns_cbranch_scc0 L_nocpf")
        a(f"s_getpc_b64 s[{sT2}:{sT2+1}]\nL_pc:\nv_and_b32 v{U+6}, 63, v0\nv_lshlrev_b32 v{U+6}, 7, v{U+6}\nv_mov_b32 v{U+7}, 0\nv_lshl_add_u64 v[{U+8}:{U+9}], v[{U+6}:{U+7}], 0, s[{sT2}:{sT2+1}]")
        a(f"global_load_dword v{vX+8}, v[{U+8}:{U+9}], off\nv_min_u32 v{U+6}, L_end-L_pc-8192, v{U+6}\nv_add_u32 v{U+6}, 8192, v{U+6}")
        a(f"v_lshl_add_u64 v[{U+8}:{U+9}], v[{U+6}:{U+7}], 0, s[{sT2}:{sT2+1}]\nglobal_load_dword v{vX+9}, v[{U+8}:{U+9}], off")
        a("L_nocpf:")
    if o.cpf == 1: cpf()
    a(f"v_lshlrev_b32 v{C}, 4, v0\nv_and_b32 v{vL}, 63, v0\ns_lshl_b32 s{sBASE}, s{sW}, 10\ns_lshl_b32 s3, s3, 5\ns_add_u32 s{sEFI}, s{sEFI}, s3\ns_addc_u32 s{sEFI+1}, s{sEFI+1}, 0")
    for j in range(1, 6):
        a(f"v_add_u32 v{C+j}, {8192*j}, v{C}")
    a(f"v_min_u32 v{T0+3}, {CH*32-16}, v{C+4}\nv_lshlrev_b32 v{vLANE16}, 4, v{vL}")
    if o.b2: a("s_barrier")
    assert o.b1 or o.b2
    nd = [0]
    def dma(n):
        for _ in range(n):
            j = nd[0]; nd[0] += 1
            if j < 5:
                a(f"s_add_u32 m0, s{sBASE}, {L_RAW + 8192*j}\ns_nop 0\nglobal_load_lds_dwordx4 v{C+j if j < 4 else T0+3}, s[{sEFI}:{sEFI+1}] {o.ef}")
            elif j < 9:
                a(f"s_add_u32 m0, s{sBASE}, {L_WB + 8192*(j-5)}\ns_nop 0\nglobal_load_lds_dwordx4 v{C+j-5}, s[{sWM}:{sWM+1}]")
            else:
                a(f"s_add_u32 s{sT2+2}, s{sBASE}, {L_WB + 32768}\nv_min_u32 v{T0+13}, 112, v{vLANE16}\ns_cmp_lt_u32 s{sW}, 4\ns_cselect_b64 vcc, -1, 0")
                a(f"s_cselect_b32 m0, s{sT2+2}, {L_CG}\ns_cselect_b64 s[{sT2}:{sT2+1}], s[{sWR}:{sWR+1}], s[{sCG}:{sCG+1}]\nv_cndmask_b32 v{T0+13}, v{T0+13}, v{C}, vcc")
                a(f"global_load_lds_dwordx4 v{T0+13}, s[{sT2}:{sT2+1}]")
    PD = [int(c, 16) for c in o.pd.ljust(5, '0')]; assert sum(PD) == 10 and len(PD) == 5 and sum(PD[:3]) >= 5
    dma(PD[0])
    if o.cpf == 2: cpf()
    def init_lds():
        a(f"v_lshlrev_b32 v{vRA}, 2, v0\nv_lshlrev_b32 v{U+2}, 3, v0\nv_mov_b32 v{U+4}, 0\nv_mov_b32 v{U+5}, 0\nv_mov_b32 v{U+3}, 0x00300000")
        a(f"ds_write_b64 v{U+2}, v[{U+4}:{U+5}] offset:{L_CELL}")
        for k in range(3):
            a(f"ds_write_b32 v{vRA}, v{U+3} offset:{L_REC + 2048*k}")
        a(f"v_lshrrev_b32 v{vRB}, 1, v0\nv_lshlrev_b32 v{vRB}, 2, v{vRB}")
    if o.il == 0: init_lds()
    a(f"v_cmp_gt_u32 vcc, {CH//3}, v0\ns_mov_b64 s[{S}:{S+1}], vcc\nv_cmp_gt_u32 vcc, {CH//3+1}, v0\ns_mov_b64 s[{S+2}:{S+3}], vcc")
    a(f"v_mov_b32 v{U}, 1\ns_movk_i32 s{S+4}, {N // 8}\ns_mov_b32 s{S+5}, {L_AUX}\ns_lshr_b32 s{sPAR}, s{sW}, 2\ns_mov_b32 s{sR0}, 0")
    a(f"s_waitcnt vmcnt({3 + PD[0]})")
    stamp(a, o, 1, sST)
    a(f"s_mov_b64 exec, s[{S+2}:{S+3}]")
    for j in (1, 2, 0):
        if j == 0: a(f"s_mov_b64 exec, s[{S}:{S+1}]")
        a(f"v_and_b32 v{RC+j}, 7, v{DS_+j}\nv_bfe_u32 v{RC+8+j}, v{DS_+j}, 3, 5\nv_lshl_add_u32 v{QA+j}, v{RC+j}, 5, v{RC+8+j}\nv_lshlrev_b32 v{QA+j}, 2, v{QA+j}")
        a(f"ds_add_rtn_u32 v{RKP+j}, v{QA+j}, v{U} offset:{L_HIST}")
    a("s_mov_b64 exec, -1")
    dma(PD[1])
    if o.cpf == 3: cpf()
    a("s_waitcnt lgkmcnt(0)\ns_barrier")
    a(f"ds_read_b128 v[{HC}:{HC+3}], v{vLANE16} offset:{L_HIST}")
    fill = []
    for j in range(3):
        fill += [f"v_lshrrev_b32 v{DS_+j}, 8, v{DS_+j}", f"v_lshlrev_b32 v{RC+4+j}, 26, v{DS_+j}",
                 f"v_lshl_add_u32 v{DS_+j}, v{DS_+j}, 4, v{RC+4+j}", f"v_add_lshl_u32 v{T0+5+j}, v{T0}, {j}, 5"]
    a(f"s_mul_i32 s3, s2, {CS}\ns_add_u32 s{sTAG}, s{sTAG}, 1\ns_waitcnt lgkmcnt(0)")
    a(f"v_add_u32 v{T0+8}, v{HC}, v{HC+1}\nv_add3_u32 v{T0+8}, v{T0+8}, v{HC+2}, v{HC+3}\nv_mov_b32 v{T0+9}, v{T0+8}")
    scan(a, T0 + 9, [fill[2*i: 2*i + 2] for i in range(6)])
    a(f"v_sub_u32 v{HB}, v{T0+9}, v{T0+8}\nv_add_u32 v{HB+1}, v{HB}, v{HC}\nv_add_u32 v{HB+2}, v{HB+1}, v{HC+1}\nv_add_u32 v{HB+3}, v{HB+2}, v{HC+2}")
    a(f"ds_write_b128 v{vLANE16}, v[{HB}:{HB+3}] offset:{L_BASE}")
    a(f"s_mov_b64 exec, s[{S+2}:{S+3}]")
    for j in (1, 2, 0):
        if j == 0: a(f"s_mov_b64 exec, s[{S}:{S+1}]")
        a(f"ds_read_b32 v{QA+j}, v{QA+j} offset:{L_BASE}")
    a("s_mov_b64 exec, -1")
    a(f"s_waitcnt vmcnt({PD[0] + PD[1]})")
    for j in range(3):
        a(f"v_mad_u32_u24 v{RC+j}, v{RC+j}, s{S+4}, v{SR_+j}\nv_lshl_add_u32 v{DS_+j}, v{SR_+j}, 10, v{DS_+j}\nv_subrev_u32 v{RC+4+j}, {N}, v{RC+j}\nv_min_u32 v{RC+j}, v{RC+j}, v{RC+4+j}")
        if o.w0: a(f"v_add_u32 v{RC+j}, {o.w0}, v{RC+j}")
        if o.wst: a(f"v_mad_u32_u24 v{RC+j}, v{RC+8+j}, {o.wst}, v{RC+j}")
        a(f"v_mul_u32_u24 v{RC+j}, {(NWIN << 17) // (N + o.w0 + 31 * o.wst)}, v{RC+j}\nv_lshrrev_b32 v{RC+j}, 17, v{RC+j}\nv_add_u32 v{RC+j}, v{RC+j}, v{DS_+j}")
    a(f"s_mov_b64 exec, s[{S+2}:{S+3}]\ns_waitcnt lgkmcnt(0)")
    for j in (1, 2, 0):
        if j == 0: a(f"s_mov_b64 exec, s[{S}:{S+1}]")
        a(f"v_add_lshl_u32 v{QA+j}, v{QA+j}, v{RKP+j}, 1\nv_mad_u32_u24 v{T0+10+j}, v{QA+j}, 6, s{S+5}")
        a(f"ds_write_b16 v{QA+j}, v{T0+5+j} offset:{L_ID}\nds_write2_b32 v{T0+10+j}, v{YY+2*j}, v{YY+2*j+1} offset1:1\nds_write_b32 v{T0+10+j}, v{RC+j} offset:8")
    a("s_mov_b64 exec, -1")
    dma(PD[2])
    TA_, TP_ = T0 + 14, T0 + 15
    for j in range(4):
        a(f"v_add_u32 v{HB+j}, s3, v{HB+j}\nv_lshl_add_u32 v{TR+2*j}, v{HC+j}, 19, v{HB+j}\nv_mov_b32 v{TR+2*j+1}, s{sTAG}")
    a(f"s_lshl_b32 s{sTMP}, s2, 11\ns_add_u32 s{sTMP}, s{sTMP}, {WS_TABLE}\nv_add_u32 v{TA_}, s{sTMP}, v{vLANE16}")
    a(f"s_mul_i32 s{sTMP}, s3, 12\ns_add_u32 s{sTMP}, s{sTMP}, {WS_AUX}\ns_add_u32 s{rPA}, s{sWS}, s{sTMP}\ns_addc_u32 s{rPA+1}, s{sWS+1}, 0\ns_mov_b32 s{rPA+2}, {AUX_W}\ns_mov_b32 s{rPA+3}, 0x00020000")
    a(f"s_lshl_b32 s3, s3, 5\ns_add_u32 s{sTMP}, s3, {WS_EF}\ns_add_u32 s{rPE}, s{sWS}, s{sTMP}\ns_addc_u32 s{rPE+1}, s{sWS+1}, 0\ns_mov_b32 s{rPE+2}, {EF_W}\ns_mov_b32 s{rPE+3}, 0x00020000")
    a(f"v_and_b32 v{T0}, -2, v0\nv_and_b32 v{T0+1}, 16, v{C}\nv_add_u32 v{T0+1}, {L_RAW}, v{T0+1}")
    a("s_waitcnt lgkmcnt(0)\ns_barrier")
    if not o.cyc: stamp(a, o, 2, sST)
    for k in range(2):
        a(f"ds_read_b128 v[{P+4*k}:{P+4*k+3}], v{C+k} offset:{L_AUX}")
    for j in range(5):
        a(f"ds_read_u16 v{T0+2+j}, v{T0} offset:{L_ID + 512*j}")
    dma(PD[3])
    def pub():
        a(f"s_cmp_eq_u32 s{sW}, 7\ns_cbranch_scc0 L_nopub")
        a(f"global_store_dwordx4 v{TA_}, v[{TR}:{TR+3}], s[{sWS}:{sWS+1}] sc0 sc1\nglobal_store_dwordx4 v{TA_}, v[{TR+4}:{TR+7}], s[{sWS}:{sWS+1}] offset:1024 sc0 sc1")
        a("L_nopub:")
    if o.fs:
        pub()
        a(f"s_mul_i32 s3, s2, {o.fs}\ns_add_u32 s3, s3, {WS_FLAG}\nv_lshl_add_u32 v{TA_}, v{vL}, 2, s3")
    def auxst(k):
        a(f"buffer_store_dwordx4 v[{P+4*k}:{P+4*k+3}], v{C+k}, s[{rPA}:{rPA+3}], 0 offen sc0 sc1")
    for k in range(2):
        if not o.late:
            a(f"s_waitcnt lgkmcnt({6-k})")
            auxst(k)
    a("s_waitcnt lgkmcnt(0)")
    for j in range(5):
        if j == 4: a(f"v_min_u32 v{T0+2+j}, {CH*32-32}, v{T0+2+j}\nv_and_b32 v{T0+2+j}, -16, v{T0+2+j}")
        a(f"v_add_u32 v{T0+2+j}, v{T0+2+j}, v{T0+1}")
    if o.il == 1: init_lds()
    for r in range(0, 48, 2):
        a(f"v_mov_b64 v[{vACC+r}:{vACC+r+1}], 0")
    for r in range(0, 8, 2):
        a(f"v_mov_b64 v[{vA1+r}:{vA1+r+1}], 0")
    a(f"s_mov_b32 s{sMA}, 0x0f0f0f0f\ns_mov_b32 s{sMA+1}, s{sMA}\ns_not_b64 s[{sMB}:{sMB+1}], s[{sMA}:{sMA+1}]")
    a(f"v_lshrrev_b32 v{vLA}, 5, v{vL}\nv_lshlrev_b32 v{vLA}, 4, v{vLA}")
    a(f"v_and_b32 v{vLT}, 3, v{vL}\nv_lshlrev_b32 v{vLT}, 3, v{vLT}\nv_add_u32 v{vLT}, {L_T}, v{vLT}")
    XB = 512 if o.mark else 0
    XM = 0xfffffe00 if o.mark else 0xfffffc00
    if o.mark: a(f"s_sub_u32 s{rX}, s{rX}, {XB}\ns_subb_u32 s{rX+1}, s{rX+1}, 0")
    a(f"s_mov_b32 s{rX+2}, {N*1024 + XB}\ns_mov_b32 s{rX+3}, 0x00020000")
    srd(a, rAUX, sWS, AUX_BYTES, WS_AUX)
    a(f"s_mov_b32 s{sRK}, 0\ns_cmp_lt_u32 s2, 16\ns_cbranch_scc1 L_r40")
    for nm, R in (("39", R39), ("40", R40)):
        if nm == "40": a("s_branch L_rd\nL_r40:")
        for w, r in enumerate(R):
            a(f"s_cmp_eq_u32 s{sW}, {w}\ns_cselect_b32 s{sRK}, {hex(sum(x << (6*i) for i, x in enumerate(r)))}, s{sRK}")
    a("L_rd:")
    a(f"s_and_b32 s3, s2, 7\ns_lshl_b32 s3, s3, 7\ns_bfe_u32 s{sTMP}, s2, {(3 << 16) | 5}\ns_lshl_b32 s{sTMP}, s{sTMP}, 4\ns_add_u32 s3, s3, s{sTMP}")
    a(f"s_and_b32 s{sTMP}, s2, 8\ns_add_u32 s3, s3, s{sTMP}\ns_and_b32 s{sTMP}, s2, 16\ns_lshl_b32 s{sTMP}, s{sTMP}, 6\ns_add_u32 s3, s3, s{sTMP}\ns_add_u32 s3, s3, {WS_TABLE}")
    a(f"v_and_b32 v{vFA}, 255, v0\nv_lshl_add_u32 v{TP_}, v{vFA}, 11, s3")
    if o.fs: a(f"v_mul_u32_u24 v{vFA}, {o.fs}, v{vFA}\nv_add_u32 v{vFA}, {WS_FLAG}, v{vFA}")
    assert o.late or PD[4] == 0
    dma(PD[4])
    a(f"s_waitcnt vmcnt({(0 if o.late else 2) + 5})\ns_barrier")
    stamp(a, o, 3, sST)
    for j in range(5):
        a(f"ds_read_b128 v[{P+12+4*j}:{P+15+4*j}], v{T0+2+j}")
    if o.late:
        for k in range(2): auxst(k)
    PL = vX + 10
    POLL = f"global_load_dwordx2 v[{PL}:{PL+1}], v{TP_}, s[{sWS}:{sWS+1}] sc1"
    for j in range(6):
        if j == o.pp: a(f"s_cmp_eq_u32 s{sPAR}, 0\ns_cbranch_scc0 L_np0\n{POLL}\nL_np0:")
        if j < 5: a(f"s_waitcnt lgkmcnt({4-j})\nbuffer_store_dwordx4 v[{P+12+4*j}:{P+15+4*j}], v{C+j}, s[{rPE}:{rPE+3}], 0 offen sc0 sc1")
    srd(a, rEF, sWS, EF_BYTES, WS_EF)
    srd(a, rOUT, sOUT, 0 if o.cyc == 3 else N * 1024)
    a("s_waitcnt vmcnt(0)\ns_barrier")
    stamp(a, o, 4, sST)
    PL = vX + 10
    POLL = f"global_load_dwordx2 v[{PL}:{PL+1}], v{TP_}, s[{sWS}:{sWS+1}] sc1"
    FPOLL = f"global_load_dword v{PL}, v{vFA}, s[{sWS}:{sWS+1}] sc1"
    if o.fs:
        if not o.ff: a(f"s_cmp_eq_u32 s{sPAR}, 0\ns_cbranch_scc0 L_np0\n{POLL}\nL_np0:")
        a(f"s_cmp_eq_u32 s{sW}, {0 if o.ff and o.pp > 5 else 7}\ns_cbranch_scc0 L_noflag\ns_mov_b64 exec, {hex((1 << (o.fs // 4)) - 1)}")
        a(f"global_store_dword v{TA_}, v{TR+1}, s[{sWS}:{sWS+1}] sc0 sc1\ns_mov_b64 exec, -1\nL_noflag:")
        if o.ff == 1: a("s_barrier")
        if o.ff and o.pp > 5: a(f"s_cmp_eq_u32 s{sPAR}, 0\ns_cbranch_scc0 L_np0\n{POLL}\nL_np0:")
    else:
        pub()
    def xpf(r0, nrows, lab):
        per = nrows * 8 // 32
        assert per <= 256
        a(f"s_cmp_eq_u32 s{sPAR}, 0\ns_cbranch_scc1 {lab}")
        a(f"s_sub_u32 s3, 0, s2\ns_and_b32 s3, s3, 7\ns_mul_i32 s3, s3, {N // 8 * 1024}\ns_lshr_b32 s{sTMP}, s2, 3\ns_mul_i32 s{sTMP}, s{sTMP}, {per*128}\ns_add_u32 s3, s3, s{sTMP}\ns_add_u32 s3, s3, {r0*1024 + XB}")
        a(f"v_and_b32 v{vX+12}, 255, v0\nv_cmp_gt_u32 vcc, {per}, v{vX+12}\nv_lshlrev_b32 v{vX+12}, 7, v{vX+12}\nv_mov_b32 v{vX+13}, 0x7fffff00\nv_cndmask_b32 v{vX+12}, v{vX+13}, v{vX+12}, vcc")
        a(f"buffer_load_dword v{vX+14}, v{vX+12}, s[{rX}:{rX+3}], s3 offen\n{lab}:")
    if o.pfa: xpf(0, o.pfa, "L_pfa")
    F, V = P, U
    def fpoll():
        a(f"s_cmp_eq_u32 s{sPAR}, 0\ns_cbranch_scc1 L_npe\n{FPOLL}\nL_npe:")
    def bfrag(F, VA, hook=None):
        a(f"s_mov_b32 s{sT2+2}, 0x05040100\ns_mov_b32 s{sT2+3}, 0x07060302")
        a(f"s_and_b32 s3, s{sW}, 3\ns_lshl_b32 s3, s3, 6\nv_lshrrev_b32 v{VA}, 4, v{vL}\nv_and_b32 v{VA+1}, 15, v{vL}\nv_lshl_add_u32 v{VA+1}, v{VA+1}, 2, s3\nv_lshl_add_u32 v{VA}, v{VA}, 11, v{VA+1}")
        def brd(ks):
            for e in range(8):
                a(f"ds_read_b32 v{F+8*(ks&1)+e}, v{VA} offset:{L_WB + 8192*ks + 256*e}")
        brd(0)
        for ks in range(4):
            if hook: hook(ks)
            if ks < 3:
                a("s_waitcnt lgkmcnt(7)")
                brd(ks + 1)
            a(f"s_waitcnt lgkmcnt({8 if ks < 3 else 0})")
            for ep in range(4):
                x0 = F + 8 * (ks & 1) + 2 * ep
                a(f"v_perm_b32 v{vB+8*ks+ep}, v{x0+1}, v{x0}, s{sT2+2}\nv_perm_b32 v{vB+8*ks+4+ep}, v{x0+1}, v{x0}, s{sT2+3}")
    def wcvt(x0, d0, d1):
        a(f"v_lshlrev_b32 v{V+10}, 16, v{x0}\nv_lshlrev_b32 v{V+11}, 16, v{x0+1}\nv_and_b32 v{x0}, 0xffff0000, v{x0}\nv_and_b32 v{x0+1}, 0xffff0000, v{x0+1}")
        a(f"v_pk_mul_f32 v[{V+10}:{V+11}], v[{V+10}:{V+11}], s[{sT2}:{sT2+1}]\nv_pk_mul_f32 v[{x0}:{x0+1}], v[{x0}:{x0+1}], s[{sT2}:{sT2+1}]")
        a(f"v_cvt_pk_bf16_f32 v{d0}, v{V+10}, v{V+11}\nv_cvt_pk_bf16_f32 v{d1}, v{x0}, v{x0+1}")
    a(f"v_lshrrev_b32 v{V}, 5, v{vL}\nv_and_b32 v{V+1}, 31, v{vL}\nv_lshlrev_b32 v{V+1}, 2, v{V+1}\nv_lshl_add_u32 v{V}, v{V}, 11, v{V+1}")
    if o.wd:
        a(f"s_and_b32 s3, s{sW}, 3\ns_lshl_b32 s{sTMP}, s3, 9\ns_lshl_b32 s{sT2}, s{sPAR}, 7\ns_add_u32 s{sTMP}, s{sTMP}, s{sT2}\nv_add_u32 v{V}, s{sTMP}, v{V}")
        a(f"ds_read_b32 v{F}, v{V} offset:{L_WB + 32768}\nds_read_b32 v{F+1}, v{V} offset:{L_WB + 32768 + 256}")
        a(f"s_lshl_b32 s3, s3, 2\ns_lshl_b32 s{sTMP}, s{sPAR}, 10\ns_add_u32 s3, s3, s{sTMP}\nv_add_u32 v{V+4}, s3, v{vLANE16}")
    else:
        for h in range(2):
            if h: a("s_waitcnt lgkmcnt(7)")
            for e in range(8):
                a(f"ds_read_b32 v{F+8*h+e}, v{V} offset:{L_WB + 32768 + 256*e + 128*h}")
    a(f"v_and_b32 v{V+2}, 3, v{vL}\nv_bfe_u32 v{V+3}, v{vL}, 2, 2\nv_lshlrev_b32 v{V+3}, 1, v{V+3}\nv_lshl_add_u32 v{V+2}, v{V+2}, 5, v{V+3}\nv_add_u32 v{V+2}, {L_CG}, v{V+2}")
    a(f"s_mov_b32 s{sT2}, 0xbfb8aa3b\ns_mov_b32 s{sT2+1}, s{sT2}")
    if not o.wd: a("s_waitcnt lgkmcnt(0)")
    for f in range(4):
        a(f"ds_read_u16 v{V+6+f}, v{V+2} offset:{8*f}")
    if o.wd:
        a("s_waitcnt lgkmcnt(4)")
        wcvt(F, F + 2, F + 3)
        a(f"ds_write_b32 v{V+4}, v{F+2} offset:{L_WF}\nds_write_b32 v{V+4}, v{F+3} offset:{L_WF + 2048}")
    else:
        for h in range(2):
            for ep in range(4):
                wcvt(F + 8 * h + 2 * ep, vW + 4 * h + ep, vW + 8 + 4 * h + ep)
    a("s_waitcnt lgkmcnt(0)")
    if o.sc == 2:
        for f in range(4):
            a(f"v_lshlrev_b32 v{V+6+f}, 16, v{V+6+f}\nv_mul_f32 v{V+6+f}, 0xbf317218, v{V+6+f}")
        for h in range(2):
            a(f"v_cvt_pk_bf16_f32 v{vCG+h}, v{V+6+2*h}, v{V+7+2*h}\nv_lshlrev_b32 v{V+10}, 16, v{vCG+h}\nv_and_b32 v{V+11}, 0xffff0000, v{vCG+h}")
            a(f"v_sub_f32 v{V+10}, v{V+6+2*h}, v{V+10}\nv_sub_f32 v{V+11}, v{V+7+2*h}, v{V+11}\nv_cvt_pk_bf16_f32 v{vCG+2+h}, v{V+10}, v{V+11}")
    else:
        a(f"v_lshl_or_b32 v{vCG}, v{V+7}, 16, v{V+6}\nv_lshl_or_b32 v{vCG+1}, v{V+9}, 16, v{V+8}")
    def pkhook(ks):
        if ks == o.pk:
            if o.fs: fpoll()
            else: a(f"s_cmp_eq_u32 s{sPAR}, 0\ns_cbranch_scc0 L_npe\n{POLL}\nL_npe:")
    if o.bp == 0: bfrag(F + 16, V + 4, pkhook)
    else: assert o.pk >= 4
    if o.fs and o.pk == 4: fpoll()
    if o.pfb: xpf(o.pfa, o.pfb, "L_pfb")
    a(f"s_cmp_eq_u32 s{sPAR}, 0\ns_cbranch_scc0 L_round\ns_mov_b32 s3, 0")
    if o.pk < 4 or o.fs: a("s_branch L_poll1")
    a(f"L_poll:\n{POLL}\nL_poll1:\ns_add_u32 s3, s3, 1\ns_waitcnt vmcnt(0)")
    a(f"v_cmpx_ne_u32 vcc, s{sTAG}, v{PL+1}\ns_cbranch_execz L_pok\ns_cmp_lt_u32 s3, 400000\ns_cbranch_scc1 L_poll\nv_mov_b32 v{PL}, 0")
    a("L_pok:")
    a(f"s_mov_b64 exec, -1\nv_add_u32 v{U+2}, {L_TBL}, v{vRA}\nds_write_b32 v{U+2}, v{PL}")
    a("L_round:")
    TB = P + 8
    RQ = P + 8
    DL = P + 20
    RK = P + 0
    C12 = P + 3
    LW = P + 26
    TQ = P + 32
    a(f"v_add_u32 v{U+3}, {L_TBL}, v{vLANE16}\ns_and_b32 s{sTMP}, s{sW}, 3\nv_mov_b32 v{TB+8}, 0")
    a("s_waitcnt lgkmcnt(0)\ns_barrier")
    stamp(a, o, 5, sST)
    a(f"ds_read_b128 v[{TB}:{TB+3}], v{U+3}")
    if o.fs and o.pk == 5:
        a(f"s_cmp_lg_u32 s{sR0}, 0\ns_cbranch_scc1 L_npe")
        fpoll()
    a(f"v_mul_u32_u24 v{C12}, 12, v0\nv_add_u32 v{C12+1}, {512*12}, v{C12}\nv_add_u32 v{C12+2}, {1024*12}, v{C12}")
    a("s_waitcnt lgkmcnt(0)")
    for j in range(4):
        a(f"v_lshrrev_b32 v{TB+4+j}, 19, v{TB+j}")
    a(f"v_add_u32 v{TB+10}, v{TB+4}, v{TB+5}\nv_add3_u32 v{U}, v{TB+10}, v{TB+6}, v{TB+7}")
    scan(a, U, [[f"v_add_u32 v{U+1}, s{sR0}, v{U}", f"v_mov_b32 v{TB+9}, v{TB+4}"],
                [f"v_add_u32 v{TB+11}, v{TB+10}, v{TB+6}", f"s_set_gpr_idx_on s{sTMP}, gpr_idx(SRC0)", f"v_mov_b32 v{U+2}, v{TB}", f"v_mov_b32 v{U+3}, v{TB+4}", f"v_mov_b32 v{U+4}, v{TB+8}", "s_set_gpr_idx_off"],
                [f"v_and_b32 v{U+2}, 0x7ffff, v{U+2}", f"v_sub_u32 v{U+4}, v{U+4}, v{U+1}"],
                [f"v_subrev_u32 v{U+5}, s{sPAR}, v{U+3}", f"s_mov_b32 s{sTMP}, s{sPAR}"]])
    a(f"v_add_u32 v{U+4}, v{U+4}, v{U}\nv_readlane_b32 s{sTOT}, v{U}, 63\nv_sub_u32 v{U+2}, v{U+2}, v{U+4}\nv_add_lshl_u32 v{U+6}, v{U+4}, s{sPAR}, 2")
    a(f"s_cmp_gt_u32 s{sTOT}, {CAP}\ns_cbranch_scc1 L_exp")
    NX = 6
    for i in range(NX):
        a(f"v_cmpx_lt_i32 vcc, {2*i}, v{U+5}\nds_write_b32 v{U+6}, v{U+2} offset:{L_REC + 8*i}")
    a(f"v_cmpx_lt_i32 vcc, {2*NX}, v{U+5}\ns_cbranch_execz L_expd\ns_add_u32 s{sTMP}, s{sTMP}, {2*NX}")
    a("L_exp:")
    a(f"s_mov_b64 exec, -1\nv_cmp_lt_u32 vcc, s{sTMP}, v{U+3}\ns_cbranch_vccz L_expd")
    a(f"v_add_u32 v{U+7}, s{sTMP}, v{U+4}\ns_movk_i32 s3, {CAP}\nv_cmp_gt_u32 s[{sT2}:{sT2+1}], s3, v{U+7}\nv_lshlrev_b32 v{U+7}, 2, v{U+7}\ns_and_b64 exec, vcc, s[{sT2}:{sT2+1}]")
    a(f"ds_write_b32 v{U+7}, v{U+2} offset:{L_REC}\ns_add_u32 s{sTMP}, s{sTMP}, 2\ns_branch L_exp")
    def consts():
        a(f"s_sub_u32 s{sCNT}, s{sTOT}, s{sR0}\ns_min_u32 s{sCNT}, s{sCNT}, {CAP}\ns_lshl_b32 s3, s{sCNT}, 4")
        for k in range(3):
            a(f"v_cmp_gt_u32 s[{sM[k]}:{sM[k]+1}], s3, v{C+k}\nv_lshlrev_b32 v{LW+2*k+1}, 1, v{C+k}\nv_mov_b32 v{RQ+4*k+3}, 0")
        a(f"v_and_b32 v{vPW}, 15, v{vL}\nv_lshrrev_b32 v{U+1}, 4, v{vL}")
        a(f"s_mul_i32 s3, s{sPAR}, {80*AGS}\nv_mul_u32_u24 v{vEA}, {AGS}, v{vPW}\nv_lshl_add_u32 v{vEA}, v{U+1}, 4, v{vEA}\nv_add_u32 v{vEA}, s3, v{vEA}")
        a(f"s_mul_i32 s{sT2}, s{sPAR}, {20*256}\ns_add_u32 s{sT2}, s{sT2}, s2\ns_lshl_b32 s{sT2}, s{sT2}, 10\ns_and_b32 s3, s{sW}, 3\ns_lshl_b32 s3, s3, 8\ns_add_u32 s{sT2}, s{sT2}, s3")
        a(f"v_lshl_add_u32 v{vEO}, v{U+1}, 18, s{sT2}\nv_lshl_add_u32 v{vEO}, v{vPW}, 4, v{vEO}\nv_lshlrev_b32 v{vPW}, 3, v{vPW}")
        a(f"v_bfe_u32 v{vPA}, v{vL}, 3, 2\nv_and_b32 v{U}, 3, v{vL}\nv_lshl_add_u32 v{vPA}, v{vPA}, 2, v{U}\nv_lshlrev_b32 v{vPA}, 3, v{vPA}")
        a(f"v_lshrrev_b32 v{vPT}, 2, v{vL}\nv_lshlrev_b32 v{vPT}, 3, v{vPT}")
        a(f"v_mul_u32_u24 v{U+4}, 52, v{vL}\nv_lshrrev_b32 v{U+4}, 8, v{U+4}\nv_mul_u32_u24 v{U+5}, 5, v{U+4}\nv_sub_u32 v{U+5}, v{vL}, v{U+5}")
        a(f"v_mul_u32_u24 v{U+3}, 6, v{U+5}\nv_bfe_u32 v{U+3}, s{sRK}, v{U+3}, 6\nv_lshlrev_b32 v{U+3}, 2, v{U+3}\nv_lshlrev_b32 v{U+4}, 2, v{U+4}\nv_lshlrev_b32 v{U+5}, 19, v{U+5}")
        if o.mark: a(f"v_add_u32 v{U+5}, {XB << 16}, v{U+5}")
        a(f"s_mul_i32 s3, s{sW}, 5\nv_lshlrev_b32 v{U+6}, 2, v{vL}\nv_add_u32 v{U+9}, s3, v{vL}\nv_lshlrev_b32 v{U+7}, 2, v{U+9}")
        a(f"v_cmp_gt_u32 vcc, 40, v{vL}\nv_add_u32 v{U+8}, 1, v{vL}\nv_add_u32 v{U+9}, 1, v{U+9}\nv_cndmask_b32 v{U+8}, 0, v{U+8}, vcc")
        a(f"s_cmp_gt_u32 s{sTOT}, {CAP}\ns_cselect_b32 s{sT2+1}, 0, 8\nv_mov_b32 v{U+10}, 8")
    a("L_expd:")
    a("s_mov_b64 exec, -1")
    def gate():
        a(f"s_cmp_eq_u32 s{sPAR}, 0\ns_cbranch_scc1 L_fok\ns_cmp_lg_u32 s{sR0}, 0\ns_cbranch_scc1 L_fok\ns_mov_b32 s3, 0\ns_waitcnt vmcnt({1 if o.pfb and o.pk < 5 else 0})\ns_branch L_fp1")
        a(f"L_fp:\n{FPOLL}\ns_add_u32 s3, s3, 1\ns_waitcnt vmcnt(0)\nL_fp1:")
        a(f"v_cmpx_ne_u32 vcc, s{sTAG}, v{PL}\ns_cbranch_execz L_fok\ns_cmp_lt_u32 s3, 400000\ns_cbranch_scc1 L_fp")
        a("L_fok:\ns_mov_b64 exec, -1")
        if o.fine: a(f"s_waitcnt lgkmcnt(0)\ns_mul_i32 s{sST+4}, s3, 100\ns_add_u32 s{sST+4}, s{sST+4}, s{sST}")
    if o.bp == 3:
        a(f"s_cmp_lg_u32 s{sR0}, 0\ns_cbranch_scc1 L_nofr3\ns_waitcnt lgkmcnt(0)")
        def h3(ks):
            if ks == o.pk - 6: fpoll()
        bfrag(vX + 16, TQ, h3)
        if o.pk == 10: fpoll()
        a("L_nofr3:")
    if o.gl:
        a("s_waitcnt lgkmcnt(0)\ns_barrier")
    else:
        if o.ce: consts()
        if o.fs: gate()
        a("s_waitcnt lgkmcnt(0)\ns_barrier")
        if o.fine: stamp(a, o, 1, sST)
    for k in range(3):
        a(f"ds_read_b32 v{RK+k}, v{vRA} offset:{L_REC + 2048*k}")
    for j in range(6):
        a(f"ds_read_b32 v{DL+j}, v{vRB} offset:{L_REC + 1024*j}")
    def auxld(k):
        a(f"buffer_load_dwordx3 v[{RQ+4*k}:{RQ+4*k+2}], v{RK+k}, s[{rAUX}:{rAUX+3}], 0 offen sc1")
    if o.gl and o.ce: consts()
    for k in range(3):
        a(f"s_waitcnt lgkmcnt({8-k})\nv_mad_i32_i24 v{RK+k}, v{RK+k}, 12, v{C12+k}")
        if not o.gl: auxld(k)
    a("s_waitcnt lgkmcnt(0)")
    for j in range(6):
        a(f"v_lshl_add_u32 v{DL+j}, v{DL+j}, 5, v{C+j}")
    if o.gl:
        gate()
        a("s_barrier")
        if o.fine: stamp(a, o, 1, sST)
        for k in range(3): auxld(k)
    if o.efs[0] != "0" and o.b3: a("s_barrier")
    nef = [0]
    def efdma(n):
        for _ in range(n):
            j = nef[0]; nef[0] += 1
            a(f"s_add_u32 m0, s{sBASE}, {L_EF + 8192*j}\ns_nop 0\nbuffer_load_dwordx4 v{DL+j}, s[{rEF}:{rEF+3}], 0 offen sc1 lds")
    EFS = [int(c) for c in o.efs]; assert sum(EFS) == 6 and len(EFS) == 5
    efdma(EFS[0])
    if not o.ce: consts()
    if o.pfc:
        per = o.pfc * 8 // 256
        a(f"s_sub_u32 s3, 0, s2\ns_and_b32 s3, s3, 7\ns_mul_i32 s3, s3, {N // 8 * 1024}\ns_and_b32 s{sTMP}, s2, -8\ns_add_u32 s{sTMP}, s{sTMP}, s{sW}\ns_mul_i32 s{sTMP}, s{sTMP}, {per*128}\ns_add_u32 s3, s3, s{sTMP}\ns_add_u32 s3, s3, {(o.pfa + o.pfb)*1024 + XB}")
        a(f"v_cmp_gt_u32 vcc, {per}, v{vL}\nv_lshl_add_u32 v{vFA}, v{vL}, 7, s3\nv_mov_b32 v{U}, 0x7fffff00\nv_cndmask_b32 v{vFA}, v{U}, v{vFA}, vcc")
    if o.wd or o.bp == 1:
        a(f"s_cmp_lg_u32 s{sR0}, 0\ns_cbranch_scc1 L_nofr")
        if o.wd:
            for q in range(4):
                a(f"ds_read_b128 {vr(vW+4*q,4)}, v{vLANE16} offset:{L_WF + 1024*q}")
        if o.bp == 1: bfrag(vX + 16, TQ)
        a("L_nofr:")
    for k in range(3):
        a(f"s_waitcnt vmcnt({2 - k + EFS[0]})")
        if k == 0: stamp(a, o, 6, sST)
        a(f"s_mov_b64 exec, s[{sM[k]}:{sM[k]+1}]\nv_and_b32 v{RQ+4*k+3}, 0x3ff, v{RQ+4*k+2}\nv_lshrrev_b32 v{U+k}, 24, v{RQ+4*k+2}\nv_lshlrev_b32 v{RQ+4*k+3}, 2, v{RQ+4*k+3}")
        a(f"ds_add_u32 v{U+k}, v{U+10} offset:{L_DEG}\nds_add_rtn_u32 v{RK+k}, v{RQ+4*k+3}, v{U+10} offset:{L_CELL}")
    a("s_mov_b64 exec, -1")
    def tcomp(k):
        for oo in range(4):
            a(f"v_mfma_f32_4x4x4_16b_bf16 {vr(TQ+4*oo,4)}, {vr(vCG,2)}, {vr(RQ+4*k,2)}, 0 cbsz:4 abid:{oo}")
        if o.sc == 2:
            for oo in range(4):
                a(f"v_mfma_f32_4x4x4_16b_bf16 {vr(TQ+4*oo,4)}, {vr(vCG+2,2)}, {vr(RQ+4*k,2)}, {vr(TQ+4*oo,4)} cbsz:4 abid:{oo}")
        a(f"v_add_u32 v{U+11}, {L_T}, v{LW+2*k+1}\ns_nop 0")
        for q in range(8):
            a(f"v_cvt_pk_bf16_f32 v{TQ+16+q}, v{TQ+2*q}, v{TQ+2*q+1}")
    def twrite():
        a(f"ds_write_b128 v{U+11}, v[{TQ+16}:{TQ+19}]\nds_write_b128 v{U+11}, v[{TQ+20}:{TQ+23}] offset:16")
    efdma(EFS[1])
    if o.tl < 3: tcomp(0)
    a("s_waitcnt lgkmcnt(0)\ns_barrier")
    a(f"ds_read_b32 v{U}, v{U+6} offset:{L_DEG}\nds_read_b32 v{U+1}, v{U+7} offset:{L_DEG}")
    if o.tl < 3: twrite()
    a(f"v_lshlrev_b32 v{U+7}, 4, v{U+7}")
    for k in range(3):
        a(f"v_and_b32 v{RQ+4*k+2}, 0xfffc00, v{RQ+4*k+2}")
    a(f"s_waitcnt lgkmcnt({2 if o.tl < 3 else 0})\nv_mad_u32_u24 v{U+9}, v{U+1}, s{sT2+1}, v{U+9}\nv_mad_u32_u24 v{U+8}, v{U}, s{sT2+1}, v{U+8}")
    for j in range(5):
        a(f"v_readlane_b32 s{sN+j}, v{U+9}, {j}")
    a(f"v_lshl_add_u32 v{U+7}, v{U+1}, 16, v{U+7}")
    for j in range(5):
        a(f"v_cmp_lt_u32 s[{S+2*j}:{S+2*j+1}], s{sN+j}, v{U+8}")
    for j in range(5):
        a(f"s_bcnt1_i32_b64 s{sN+j}, s[{S+2*j}:{S+2*j+1}]\nv_writelane_b32 v{U}, s{sN+j}, {j}")
    a(f"s_mov_b64 exec, 31\nv_lshlrev_b32 v{U}, 2, v{U}\nds_write_b32 v{U}, v{U+7} offset:{L_INV}\ns_mov_b64 exec, -1")
    efdma(EFS[2])
    a("s_waitcnt lgkmcnt(0)\ns_barrier")
    a(f"ds_read_b32 v{U}, v{U+3} offset:{L_INV}")
    if o.tl < 2: tcomp(1)
    a(f"s_waitcnt lgkmcnt(0)\nv_add_u32_sdwa v{U+4}, v{U}, v{U+4} dst_sel:DWORD dst_unused:UNUSED_PAD src0_sel:WORD_0 src1_sel:DWORD")
    a(f"ds_read_b32 v{U+1}, v{U+4} offset:{L_CELL}")
    for j in range(5):
        a(f"v_readlane_b32 s{sN+j}, v{U}, {j}")
    a(f"s_add_u32 s3, s{sN}, s{sN+1}\ns_add_u32 s3, s3, s{sN+2}\ns_add_u32 s3, s3, s{sN+3}\ns_add_u32 s3, s3, s{sN+4}\ns_lshr_b32 s{sCNT}, s3, 16")
    a(f"s_add_u32 s3, s{sCNT}, {8*PADN}\nv_mov_b32 v{U+2}, s3\nv_mov_b32 v{U+6}, 0\ns_mov_b64 exec, 1\nds_add_rtn_u32 v{U+2}, v{U+6}, v{U+2} offset:{L_CNT}\ns_mov_b64 exec, -1")
    a("s_waitcnt lgkmcnt(1)")
    mk = [f"s_sub_u32 s3, 0, s{sCNT}", f"s_bfe_u32 s3, s3, {((G.bit_length() - 1) << 16) | 3}", f"s_add_u32 s3, s3, {D}", f"v_writelane_b32 v{U+8}, 40, s3"] if o.mark else []
    scan(a, U + 1, [[f"v_sub_u32 v{U+5}, v{U+5}, v{U+1}"], [], [f"v_mov_b32 v{U+8}, {0x7ffffc00 | 40}", f"v_mov_b32 v{U+9}, 0"], mk,
                    ["s_waitcnt lgkmcnt(0)", f"v_readfirstlane_b32 s{sT2+3}, v{U+2}"], [f"s_add_u32 s3, s{sT2+3}, s{sCNT}", f"v_lshl_add_u32 v{U+6}, v{vL}, 3, s3"]])
    a(f"s_mov_b32 exec_hi, 0x0fffffff\nv_add3_u32 v{U+1}, v{U+1}, v{U+5}, s{sT2+3}\nds_write_b32 v{U+4}, v{U+1} offset:{L_CELL}")
    a(f"ds_write_b64 v{U+6}, v[{U+8}:{U+9}] offset:{L_LIST}\ns_mov_b64 exec, -1")
    if o.tl < 2: twrite()
    efdma(EFS[3])
    a(f"s_waitcnt lgkmcnt({2 if o.tl < 2 else 0})\ns_barrier")
    for k in range(3):
        a(f"ds_read_b32 v{U+k}, v{RQ+4*k+3} offset:{L_CELL}")
    a(f"v_add_u32 v{vPW}, s{sT2+3}, v{vPW}\nv_add_u32 v{vPA}, s{sT2+3}, v{vPA}\nv_add_u32 v{vPT}, s{sT2+3}, v{vPT}\ns_lshr_b32 s{sCNT}, s{sCNT}, 3")
    for k in range(3):
        a(f"s_mov_b64 exec, s[{sM[k]}:{sM[k]+1}]\ns_waitcnt lgkmcnt(2)")
        a(f"v_add_u32_sdwa v{RK+k}, v{U+k}, v{RK+k} dst_sel:DWORD dst_unused:UNUSED_PAD src0_sel:WORD_0 src1_sel:DWORD")
        a(f"v_or_b32_sdwa v{LW+2*k}, v{U+k}, v{RQ+4*k+2} dst_sel:DWORD dst_unused:UNUSED_PAD src0_sel:WORD_1 src1_sel:DWORD")
        a(f"ds_write_b64 v{RK+k}, v[{LW+2*k}:{LW+2*k+1}] offset:{L_LIST}")
    a("s_mov_b64 exec, -1")
    efdma(EFS[4])
    a("s_waitcnt lgkmcnt(0)\ns_barrier")
    stamp(a, o, 7, sST)
    a(f"ds_read_b32 v{U}, v{vPW}\nds_read_b32 v{vWD[0]}, v{vPW} offset:{8*D}\nds_read_b32 v{vIA}, v{vPA} offset:4\nds_read_b32 v{vIT}, v{vPT} offset:4")
    if o.tl == 0:
        a(f"s_cmp_eq_u64 s[{sM[2]}:{sM[2]+1}], 0\ns_cbranch_scc1 L_not3")
        tcomp(2)
        twrite()
        a("s_waitcnt lgkmcnt(2)\ns_branch L_t3\nL_not3:\ns_waitcnt lgkmcnt(0)\nL_t3:")
    else:
        a("s_waitcnt lgkmcnt(3)")
    XS = [int(c) for c in o.xs]; assert sum(XS) == D and len(XS) == 4
    nx = [0]
    def xld(n):
        for _ in range(n):
            k = nx[0]; nx[0] += 1
            t = sT2 + 2 + (k & 1)
            a(f"s_and_b32 s{t}, s{sRING+k}, {XM}\nbuffer_load_dwordx4 v[{vX+4*k}:{vX+4*k+3}], v{vLANE16}, s[{rX}:{rX+3}], s{t} offen")
    for k in range(D):
        if k == XS[0]: xld(XS[0])
        a(f"v_readlane_b32 s{sRING+k}, v{U}, {k}")
    xld(XS[0] - nx[0])
    if o.tl:
        for k in range(3 - o.tl, 3):
            if k == 2: a(f"s_cmp_eq_u64 s[{sM[2]}:{sM[2]+1}], 0\ns_cbranch_scc1 L_not3")
            tcomp(k)
            twrite()
        a("L_not3:\ns_waitcnt lgkmcnt(0)")
    a(f"v_add_u32 v{vIA}, v{vIA}, v{vLA}\nv_add_u32 v{vIT}, v{vIT}, v{vLT}")
    a(f"v_readlane_b32 s{sRING+D}, v{vWD[0]}, 0")
    if o.m4: a(f"s_mov_b32 s0, {XM}")
    if o.a64: a(f"v_readlane_b32 s{sRING+D+1}, v{vWD[0]}, 1\ns_mov_b32 s0, 0xfffffc00\ns_mov_b32 s1, s0")
    for s in range(5):
        a(f"s_and_b32 s{sN+s}, s{sN+s}, 0xffff\ns_mulk_i32 s{sN+s}, {4*AGS//64}")
    if o.a64: a(f"s_and_b64 s[{sT2}:{sT2+1}], s[{sRING+D}:{sRING+D+1}], s[0:1]")
    else: a(f"s_and_b32 s{sT2}, s{sRING+D}, {XM}")
    if o.bp == 2:
        a(f"s_cmp_lg_u32 s{sR0}, 0\ns_cbranch_scc1 L_nofr2\ns_waitcnt lgkmcnt(0)")
        bfrag(P + 8, P)
        a("L_nofr2:")
    a(f"s_waitcnt vmcnt({XS[0]}) lgkmcnt(0)\ns_barrier")
    stamp(a, o, 8, sST)
    if o.cyc: a(f"s_memtime s[{sST+2}:{sST+3}]")
    if o.cyc == 2: a(f"s_mov_b32 s{rX+2}, 0")
    a(f"s_cmp_eq_u32 s{sCNT}, 0\ns_cbranch_scc1 L_exit\ns_sub_u32 s{sCNT}, s{sCNT}, 1")

    def rdA(buf):
        a(f"s_mov_b64 exec, s[{sMA}:{sMA+1}]\nds_read_b128 v[{vA1}:{vA1+3}], v{vIA} offset:{L_EF}")
        a(f"s_mov_b64 exec, s[{sMB}:{sMB+1}]\nds_read_b128 v[{vA2}:{vA2+3}], v{vIA} offset:{L_EF}\ns_mov_b64 exec, -1")
        a(f"ds_read_b64 v[{vT[buf]}:{vT[buf]+1}], v{vIT}")
    def zm(buf, q):
        par, h = q >> 1, q & 1
        z = vr(Z(buf, par), 16)
        return f"v_mfma_f32_32x32x16_bf16 {z}, {vr(vA2 if h else vA1, 4)}, {vr(vW + 4*q, 4)}, {z if h else '0'}"
    def unit(u):
        u %= 32
        return Z(u >> 4, u & 1, (u & 15) & ~1)
    def ta(u): return vTA + 2 * (u & 1)
    def EXP(u, j): return f"v_exp_f32 v{ta(u)+j}, v{unit(u)+j}"
    def RCP(u, j): return f"v_rcp_f32 v{ta(u)+j}, v{ta(u)+j}"
    def PADD(u): return f"v_pk_add_f32 {vr(ta(u),2)}, {vr(ta(u),2)}, 1.0 op_sel_hi:[1,0]"
    def PMUL(u): return f"v_pk_mul_f32 {vr(unit(u),2)}, {vr(unit(u),2)}, {vr(ta(u),2)}"
    rdA(0)
    xld(XS[1])
    a("s_waitcnt lgkmcnt(1)")
    for q in range(4):
        a(zm(0, q))
    xld(XS[2])
    a(f"s_waitcnt lgkmcnt(0)\ns_nop {max(0, 10 - 2 * XS[2])}")
    a(EXP(0, 0)); a(EXP(0, 1)); a(EXP(1, 0)); a(EXP(1, 1)); a(PADD(0)); a(PADD(1)); a(RCP(0, 0)); a(RCP(0, 1)); a("s_nop 0"); a(PMUL(0))
    xld(XS[3])
    if o.pfc:
        a(f"buffer_load_dword v{vFA}, v{vFA}, s[{rX}:{rX+3}], 0 offen")
    zsteps = {int(c, 16): q for q, c in enumerate(o.zs)}; assert len(zsteps) == 4 and min(zsteps) >= 4 and max(zsteps) <= 12
    if o.align:
        a(f".p2align {o.align}")
    for _ in range(o.pad): a("s_nop 0")
    a("L_loop:")
    ORD = [x.split() for x in o.order.split("|")]
    for i in range(32):
        b, s = i >> 4, i & 15
        x = vX + 4 * (i % 8)
        xl = vX + 4 * ((i + D) % 8)
        ring = sRING + (i + 1 + D) % 32
        sel = "op_sel_hi:[0,1,1]" if s % 2 == 0 else "op_sel:[1,0,0]"
        def extra():
            if o.prio and i % o.prio == 0:
                a(f"s_setprio {3 - (i // o.prio) % 4}")
            if s == 0:
                a(f"ds_read_b32 v{vIA}, v{vPA} offset:{4 + 128*(b+1)}\nds_read_b32 v{vIT}, v{vPT} offset:{4 + 128*(b+1)}")
                a(f"ds_read_b32 v{vWD[1-b]}, v{vPW} offset:{8*D + 128*(b+1)}")
            if s == 2:
                a(f"s_waitcnt lgkmcnt(0)\nv_add_u32 v{vIA}, v{vIA}, v{vLA}\nv_add_u32 v{vIT}, v{vIT}, v{vLT}")
                rdA(1 - b)
        T = dict(
            M0=f"v_mfma_f32_4x4x4_16b_bf16 {vr(vDD,4)}, {vr(vT[b],2)}, {vr(x,2)}, 0 cbsz:4 abid:{s}",
            M1=f"v_mfma_f32_4x4x4_16b_bf16 {vr(vDD+4,4)}, {vr(vT[b],2)}, {vr(x+2,2)}, 0 cbsz:4 abid:{s}",
            RL=f"v_readlane_b32 s{ring}, v{vWD[((i + 1) >> 4) & 1]}, {(i + 1) & 15}",
            AND=f"s_and_b32 s{sT2 + (i + 1) % 2}, s{ring}, {'s0' if o.m4 else XM}",
            LD=f"buffer_load_dwordx4 {vr(xl,4)}, v{vLANE16}, s[{rX}:{rX+3}], s{sT2 + i % 2} offen {o.xf}",
            WT=f"s_waitcnt vmcnt({D-1})" + (" lgkmcnt(0)" if s == min(zsteps) else ""),
            F="\n".join(f"v_pk_fma_f32 {vr(vACC+2*q,2)}, {vr(Z(b, q >> 1, s & ~1),2)}, {vr(vDD+2*q,2)}, {vr(vACC+2*q,2)} {sel}" for q in range(4)),
            ON=f"s_set_gpr_idx_on s{sRING + i}, gpr_idx(SRC2,DST)", OFF="s_set_gpr_idx_off",
            E0=EXP(i+2, 0), E1=EXP(i+2, 1), R0=RCP(i+1, 0), R1=RCP(i+1, 1), PA=PADD(i+2), PM=PMUL(i+1),
            Z=zm(1 - b, zsteps.get(s, 0)))
        if o.a64:
            ring = sRING + (i + 2 + D) % 32
            T["RL"] = f"v_readlane_b32 s{ring}, v{vWD[((i + 2) >> 4) & 1]}, {(i + 2) & 15}"
            t2 = sT2 + (i + 1) % 4
            T["AND"] = f"s_and_b64 s[{t2}:{t2+1}], s[{ring-1}:{ring}], s[0:1]" if i & 1 else ""
            T["LD"] = f"buffer_load_dwordx4 {vr(x,4)}, v{vLANE16}, s[{rX}:{rX+3}], s{sT2 + i % 4} offen"
        if o.w2:
            T["WT"] = (f"s_waitcnt vmcnt({D-2})" + (" lgkmcnt(0)" if s == 4 else "")) if i % 2 == 0 else ""
        for t in ORD[1 if s in zsteps else 0]:
            if t == "X": extra()
            else: a(T[t])
        if (i + 1) % G == 0:
            if o.mark: a("s_cbranch_scc0 L_exit")
            else: a(f"s_sub_u32 s{sCNT}, s{sCNT}, {G}\ns_cbranch_scc1 L_exit")
    a(f"v_add_u32 v{vPW}, 256, v{vPW}\nv_add_u32 v{vPA}, 256, v{vPA}\nv_add_u32 v{vPT}, 256, v{vPT}")
    a("s_branch L_loop")
    a("L_more:")
    a(f"s_waitcnt vmcnt(0) lgkmcnt(0)\ns_barrier\nv_lshlrev_b32 v{C}, 4, v0")
    for j in range(1, 6):
        a(f"v_add_u32 v{C+j}, {8192*j}, v{C}")
    init_lds()
    a("s_branch L_round")
    a("L_exit:")
    a(f"s_add_u32 s{sR0}, s{sR0}, {CAP}\ns_cmp_lt_u32 s{sR0}, s{sTOT}\ns_cbranch_scc1 L_more")
    stamp(a, o, 9, sST)
    if o.cyc: a(f"s_memtime s[{sST+4}:{sST+5}]")
    Q = vW
    for s in range(5):
        c = vACC + 8 * s
        a(f"s_mov_b32 m0, s{sN+s}")
        if o.sc == 1:
            if s == 0: a(f"s_mov_b32 s{sT2}, 0xbf317218\ns_mov_b32 s{sT2+1}, s{sT2}")
            for q in range(4):
                a(f"v_pk_mul_f32 {vr(c+2*q,2)}, {vr(c+2*q,2)}, s[{sT2}:{sT2+1}]")
        for oo in range(4):
            a(f"v_cvt_pk_bf16_f32 v{c+oo}, v{c+oo}, v{c+4+oo}")
        for oo in range(4):
            a(f"ds_write_addtid_b32 v{c+oo} offset:{L_AGG + oo*AGS}")
    a(f"s_mov_b32 s{sT2}, 0xbf317218")
    a("s_waitcnt lgkmcnt(0)\ns_barrier")
    stamp(a, o, 10, sST)
    AF = vACC
    DF = vACC + 32
    def rdtile(k):
        for ks in range(4):
            a(f"ds_read_b128 {vr(AF+16*(k&1)+4*ks,4)}, v{vEA} offset:{L_AGG + 16*k*AGS + 64*ks}")
    def fin(kk):
        dd = DF + 8 * (kk & 1)
        t = Q + 8 + 4 * (kk & 1)
        r = [f"v_mul_f32 v{dd+q}, s{sT2}, v{dd+q}" for q in range(8)] if o.sc == 0 else []
        r += [f"v_cvt_pk_bf16_f32 v{t+q}, v{dd+2*q}, v{dd+2*q+1}" for q in range(4)]
        r += [f"s_mov_b32 s3, {kk << 20}\nbuffer_store_dwordx4 {vr(t,4)}, v{vEO}, s[{rOUT}:{rOUT+3}], s3 offen {o.of}"]
        return r
    rdtile(0)
    for k in range(5):
        if k < 4:
            rdtile(k + 1)
        else:
            a("s_nop 3")
        d = DF + 8 * (k & 1)
        f = fin(k - 1) if k else []
        for ks in range(4):
            a(f"s_waitcnt lgkmcnt({(4 if k < 4 else 0) + 3 - ks})")
            for par in range(2):
                a(f"v_mfma_f32_16x16x32_bf16 {vr(d+4*par,4)}, {vr(AF+16*(k&1)+4*ks,4)}, {vr(vB+8*ks+4*par,4)}, {'0' if ks == 0 else vr(d+4*par,4)}")
                if ks > 0:
                    for _ in range(o.fi):
                        if f: a(f.pop(0))
        for x in f: a(x)
    a(f"s_or_b32 s{sTMP}, s2, s{sW}\ns_cbranch_scc1 L_noep\nv_lshlrev_b32 v{Q}, 2, v{vL}\nv_mov_b32 v{Q+1}, s{sTAG}\nglobal_store_dword v{Q}, v{Q+1}, s[{sWS}:{sWS+1}] offset:{WS_EPOCH} sc0 sc1\nL_noep:")
    a("s_nop 5")
    for x in fin(4): a(x)
    if o.stamps:
        a("s_waitcnt vmcnt(0)")
    stamp(a, o, 11, sST)
    stamp_out(a, o, 12, sST, sWS, sW, 0, Q)
    a("L_end:\ns_endpgm")
    return a.text(), NV, 102

def build(o):
    ref = open("cdna_kernels/" + NAME + ".s.ref").read().split("\n")
    head = [l for l in ref if l.startswith(";") and "@launch" not in l and "Override" not in l and "grid=ceil" not in l]
    out = "\n".join(head) + "\n"
    if o.probe:
        out += f"; @launch kernel={NAME}_kernel grid=(256,1,1) block=(512,1,1) lds={LDS}\n; @launch kernel=tfn_probe_kernel grid=(1,1,1) block=(64,1,1) lds=0\n"
    else:
        out += f"; @launch grid=(256,1,1) block=(512,1,1) lds={LDS}\n"
    out += "; generated by gen/gen5.py\n"
    out += '.amdgcn_target "amdgcn-amd-amdhsa--gfx950"\n.text\n'
    nm = NAME + "_kernel"
    t, v, s = kern(o)
    out += f".globl {nm}\n.p2align 8\n.type {nm},@function\n{nm}:\n" + t
    if o.probe:
        o.nw0 = 8
        t3, v3, s3 = k3(o)
        out += ".globl tfn_probe_kernel\n.p2align 8\n.type tfn_probe_kernel,@function\ntfn_probe_kernel:\n" + t3
        out += KD.format(name="tfn_probe_kernel", v=v3, s=s3, acc=(v3 + 3) // 4 * 4)
    out += KD.format(name=nm, v=v, s=s, acc=(v + 3) // 4 * 4)
    return out

def parser():
    p = argparse.ArgumentParser()
    p.add_argument("-o", default="cdna_kernels/" + NAME + ".s")
    p.add_argument("--G", type=int, default=2)
    p.add_argument("--prio", type=int, default=4)
    p.add_argument("--pd", default="2350")
    p.add_argument("--late", type=int, default=0)
    p.add_argument("--efs", default="11211")
    p.add_argument("--xs", default="4210")
    p.add_argument("--pfa", type=int, default=520)
    p.add_argument("--pfb", type=int, default=0)
    p.add_argument("--pk", type=int, default=5)
    p.add_argument("--order", default="X WT R0 M0 E1 M1 E0 RL R1 PA PM AND ON LD F OFF | WT M1 M0 R1 X Z E0 E1 RL R0 PA PM AND ON LD F OFF")
    p.add_argument("--align", type=int, default=0)
    p.add_argument("--pad", type=int, default=0)
    p.add_argument("--cpf", type=int, default=2)
    p.add_argument("--kf", default="")
    p.add_argument("--yf", default="")
    p.add_argument("--ef", default="")
    p.add_argument("--of", default="sc0 sc1")
    p.add_argument("--a64", type=int, default=0)
    p.add_argument("--w2", type=int, default=0)
    p.add_argument("--mark", type=int, default=1)
    p.add_argument("--m4", type=int, default=0)
    p.add_argument("--b1", type=int, default=1)
    p.add_argument("--b2", type=int, default=1)
    p.add_argument("--il", type=int, default=0)
    p.add_argument("--xf", default="")
    p.add_argument("--zs", default="579b")
    p.add_argument("--fs", type=int, default=32)
    p.add_argument("--wd", type=int, default=1)
    p.add_argument("--bp", type=int, default=0)
    p.add_argument("--ce", type=int, default=0)
    p.add_argument("--tl", type=int, default=0)
    p.add_argument("--b3", type=int, default=1)
    p.add_argument("--w0", type=int, default=350)
    p.add_argument("--wst", type=int, default=0)
    p.add_argument("--pfc", type=int, default=0)
    p.add_argument("--D", type=int, default=7)
    p.add_argument("--sc", type=int, default=1)
    p.add_argument("--fi", type=int, default=2)
    p.add_argument("--probe", default="")
    p.add_argument("--gl", type=int, default=0)
    p.add_argument("--fine", type=int, default=0)
    p.add_argument("--ff", type=int, default=1)
    p.add_argument("--pp", type=int, default=9)
    p.add_argument("--cyc", type=int, default=0)
    p.add_argument("--stamps", type=int, default=0)
    return p

if __name__ == "__main__":
    o = parser().parse_args()
    open(o.o, "w").write(build(o))
```

```python
import sys, argparse
from gen import A, vr, srd, stamp, stamp_out, KD, NAME, N, WS_STAMP, k3
from gen2 import scan

R39 = [[8, 14, 18, 23, 36], [3, 13, 19, 29, 37], [0, 4, 9, 17, 39], [1, 12, 21, 31, 38], [2, 16, 26, 30, 33], [6, 11, 22, 28, 34], [7, 15, 20, 25, 32], [5, 10, 24, 27, 35]]
R40 = [[1, 15, 26, 28, 34], [7, 12, 16, 29, 32], [5, 8, 21, 27, 35], [0, 13, 23, 30, 39], [4, 11, 17, 24, 37], [3, 9, 19, 25, 38], [2, 14, 20, 31, 33], [6, 10, 18, 22, 36]]

CH, CS = 1250, 1280
WS_EPOCH = 0
WS_TABLE = 0x1000
WS_FLAG  = 0xf0000
WS_AUX   = 0x100000
WS_EF    = 0x800000
AUX_BYTES = 256 * CS * 12
EF_BYTES = 256 * CS * 32
AUX_W = (CH * 12 + 127) // 128 * 128
EF_W = (CH * 32 + 127) // 128 * 128

CAP = 1536
PADN = 60
NWIN = 12
L_LIST = 0
L_AGG = (CAP + 8 * PADN) * 8
L_CELL = L_AGG
L_DEG = L_CELL + 2560
L_INV = L_DEG + 512
L_CNT = L_INV + 256
L_REC = L_CELL + 4096
L_WB = L_REC + CAP * 4
L_EF = L_WB + 36864
L_T = L_EF + CAP * 32
L_TBL = L_T + CAP * 32
L_CG = L_TBL + 1024
L_ZERO = L_CG + 1024
LDS = L_ZERO + 16
AGS = 288
assert L_AGG + 160 * AGS <= L_EF and L_EF < 65536 and LDS <= 163840
L_HIST, L_BASE, L_ID = 0, 1024, 2048
L_WF = 8192
L_AUX, L_RAW = L_EF, L_T

def kern(o):
    global CS, AUX_BYTES, EF_BYTES
    CS = o.cs; assert CS % 32 == 0 and CS >= 1280 and 256 * CS < (1 << 19)
    AUX_BYTES, EF_BYTES = 256 * CS * 12, 256 * CS * 32
    assert WS_AUX + AUX_BYTES <= WS_EF
    NWIN = o.nwin
    W2 = NWIN > 12
    CW = 24 if W2 else 16
    global L_DEG, L_INV, L_CNT
    if W2: L_DEG = L_CELL + 3840; L_CNT = L_DEG + 252; L_INV = L_REC
    else: L_DEG = L_CELL + 2560; L_INV = L_DEG + 512; L_CNT = L_INV + 256
    RS = o.rs
    a = A()
    D, G = o.D, o.G
    sX, sSRC, sDST, sY, sEFI, sWR, sCG, sWM, sOUT, sWS = 4, 6, 8, 10, 12, 14, 16, 18, 20, 22
    rX, rAUX, rEF, rOUT = 4, 8, 12, 16
    sW, sTOT, sTAG, sPAR, sR0, sCNT, sBASE, sTMP = 24, 25, 26, 27, 28, 29, 30, 31
    sMA, sMB = 32, 34
    sRING = 36
    S = sRING
    sM = [S + 20, S + 22, S + 24]
    rPA, rPE = S + 12, S + 16
    sT2, sST, sN, sRK = 68, 72, 96, 101
    vLANE16, vLA, vLT, vPW, vPA, vPT = 1, 2, 3, 4, 5, 6
    vWD = [7, 8]
    vIA, vIT, vL = 9, 10, 11
    vTA, vDD, vA1, vA2 = 12, 16, 24, 28
    vT = [32, 34]
    vW, vB, vACC = 36, 52, 84
    vZ = vACC + 48
    vX = vZ + 64
    vCG = vX + 32
    vEA, vEO = vCG + 4, vCG + 5
    vFA = vEO + 1
    NV = vFA + 1
    P, U = vZ, vTA
    def Z(buf, par, s=0): return vZ + 32 * buf + 16 * par + s

    DS_, SR_, YY, QA, RKP, RC, HC, HB, T0 = P, P + 4, P + 8, P + 14, P + 17, P + 20, P + 32, P + 36, P + 40
    TR = vX
    C = P + 56
    vRA, vRB = P + 62, P + 63
    a("s_load_dwordx16 s[4:19], s[0:1], 0\ns_load_dwordx2 s[22:23], s[0:1], 80\ns_load_dwordx2 s[20:21], s[0:1], 64")
    stamp(a, o, 0, sST)
    a("s_cmp_ge_u32 s2, 256\ns_cbranch_scc1 L_end")
    a(f"v_mul_u32_u24 v{T0}, 3, v0\ns_mul_i32 s3, s2, {CH}\nv_min_u32 v{T0}, {CH-3}, v{T0}\nv_add_lshl_u32 v{T0+1}, v{T0}, s3, 2")
    a(f"v_lshrrev_b32 v{U}, 6, v0\nv_and_b32 v{U+1}, 255, v0\nv_lshlrev_b32 v{U+1}, 2, v{U+1}\nv_mov_b32 v{U+4}, 0")
    a(f"v_readfirstlane_b32 s{sW}, v{U}\nds_write_b32 v{U+1}, v{U+4} offset:{L_HIST}\nv_lshlrev_b32 v{T0+2}, 1, v{T0+1}")
    a("s_waitcnt lgkmcnt(0)")
    a(f"global_load_dwordx3 v[{DS_}:{DS_+2}], v{T0+1}, s[{sDST}:{sDST+1}] {o.kf}")
    a(f"s_load_dword s{sTAG}, s[{sWS}:{sWS+1}], {WS_EPOCH}")
    if o.b1: a("s_barrier")
    a(f"global_load_dwordx3 v[{SR_}:{SR_+2}], v{T0+1}, s[{sSRC}:{sSRC+1}] {o.kf}")
    a(f"global_load_dwordx4 v[{YY}:{YY+3}], v{T0+2}, s[{sY}:{sY+1}] {o.yf}\nglobal_load_dwordx2 v[{YY+4}:{YY+5}], v{T0+2}, s[{sY}:{sY+1}] offset:16 {o.yf}")
    def cpf():
        a(f"s_cmp_eq_u32 s{sW}, 7\ns_cbranch_scc0 L_nocpf\ns_cmp_lt_u32 s2, 8\ns_cbranch_scc0 L_nocpf")
        a(f"s_getpc_b64 s[{sT2}:{sT2+1}]\nL_pc:\nv_and_b32 v{U+6}, 63, v0\nv_lshlrev_b32 v{U+6}, 7, v{U+6}\nv_mov_b32 v{U+7}, 0\nv_lshl_add_u64 v[{U+8}:{U+9}], v[{U+6}:{U+7}], 0, s[{sT2}:{sT2+1}]")
        a(f"global_load_dword v{vX+8}, v[{U+8}:{U+9}], off\nv_min_u32 v{U+6}, L_end-L_pc-8192, v{U+6}\nv_add_u32 v{U+6}, 8192, v{U+6}")
        a(f"v_lshl_add_u64 v[{U+8}:{U+9}], v[{U+6}:{U+7}], 0, s[{sT2}:{sT2+1}]\nglobal_load_dword v{vX+9}, v[{U+8}:{U+9}], off")
        a("L_nocpf:")
    if o.cpf == 1: cpf()
    a(f"v_lshlrev_b32 v{C}, 4, v0\nv_and_b32 v{vL}, 63, v0\ns_lshl_b32 s{sBASE}, s{sW}, 10\ns_lshl_b32 s3, s3, 5\ns_add_u32 s{sEFI}, s{sEFI}, s3\ns_addc_u32 s{sEFI+1}, s{sEFI+1}, 0")
    for j in range(1, 6):
        a(f"v_add_u32 v{C+j}, {8192*j}, v{C}")
    a(f"v_min_u32 v{T0+3}, {CH*32-16}, v{C+4}\nv_lshlrev_b32 v{vLANE16}, 4, v{vL}")
    if o.b2: a("s_barrier")
    assert o.b1 or o.b2
    nd = [0]
    def dma(n):
        for _ in range(n):
            j = nd[0]; nd[0] += 1
            if j < 5:
                a(f"s_add_u32 m0, s{sBASE}, {L_RAW + 8192*j}\ns_nop 0\nglobal_load_lds_dwordx4 v{C+j if j < 4 else T0+3}, s[{sEFI}:{sEFI+1}] {o.ef}")
            elif j < 9:
                a(f"s_add_u32 m0, s{sBASE}, {L_WB + 8192*(j-5)}\ns_nop 0\nglobal_load_lds_dwordx4 v{C+j-5}, s[{sWM}:{sWM+1}]")
            else:
                a(f"s_add_u32 s{sT2+2}, s{sBASE}, {L_WB + 32768}\nv_min_u32 v{T0+13}, 112, v{vLANE16}\ns_cmp_lt_u32 s{sW}, 4\ns_cselect_b64 vcc, -1, 0")
                a(f"s_cselect_b32 m0, s{sT2+2}, {L_CG}\ns_cselect_b64 s[{sT2}:{sT2+1}], s[{sWR}:{sWR+1}], s[{sCG}:{sCG+1}]\nv_cndmask_b32 v{T0+13}, v{T0+13}, v{C}, vcc")
                a(f"global_load_lds_dwordx4 v{T0+13}, s[{sT2}:{sT2+1}]")
    PD = [int(c, 16) for c in o.pd.ljust(5, '0')]; assert sum(PD) == 10 and len(PD) == 5 and sum(PD[:3]) >= 5
    dma(PD[0])
    if o.cpf == 2: cpf()
    def init_lds():
        a(f"v_lshlrev_b32 v{vRA}, 2, v0\nv_lshlrev_b32 v{U+2}, 3, v0\nv_mov_b32 v{U+4}, 0\nv_mov_b32 v{U+5}, 0\nv_mov_b32 v{U+3}, 0x00300000")
        a(f"ds_write_b64 v{U+2}, v[{U+4}:{U+5}] offset:{L_CELL}")
        for k in range(3):
            a(f"ds_write_b32 v{vRA}, v{U+3} offset:{L_REC + 2048*k}")
        a(f"v_lshrrev_b32 v{vRB}, 1, v0\nv_lshlrev_b32 v{vRB}, 2, v{vRB}")
    if o.il == 0: init_lds()
    a(f"v_cmp_gt_u32 vcc, {CH//3}, v0\ns_mov_b64 s[{S}:{S+1}], vcc\nv_cmp_gt_u32 vcc, {CH//3+1}, v0\ns_mov_b64 s[{S+2}:{S+3}], vcc")
    a(f"v_mov_b32 v{U}, 1\ns_movk_i32 s{S+4}, {N // 8}\ns_mov_b32 s{S+5}, {L_AUX}\ns_lshr_b32 s{sPAR}, s{sW}, 2\ns_mov_b32 s{sR0}, 0")
    a(f"s_waitcnt vmcnt({3 + PD[0]})")
    stamp(a, o, 1, sST)
    a(f"s_mov_b64 exec, s[{S+2}:{S+3}]")
    for j in (1, 2, 0):
        if j == 0: a(f"s_mov_b64 exec, s[{S}:{S+1}]")
        a(f"v_and_b32 v{RC+j}, 7, v{DS_+j}\nv_bfe_u32 v{RC+8+j}, v{DS_+j}, 3, 5\nv_lshl_add_u32 v{QA+j}, v{RC+j}, 5, v{RC+8+j}\nv_lshlrev_b32 v{QA+j}, 2, v{QA+j}")
        a(f"ds_add_rtn_u32 v{RKP+j}, v{QA+j}, v{U} offset:{L_HIST}")
    a("s_mov_b64 exec, -1")
    dma(PD[1])
    if o.cpf == 3: cpf()
    a("s_waitcnt lgkmcnt(0)\ns_barrier")
    a(f"ds_read_b128 v[{HC}:{HC+3}], v{vLANE16} offset:{L_HIST}")
    fill = []
    for j in range(3):
        fill += [f"v_lshrrev_b32 v{DS_+j}, 8, v{DS_+j}", f"v_lshlrev_b32 v{RC+4+j}, 26, v{DS_+j}",
                 f"v_mad_u32_u24 v{DS_+j}, v{DS_+j}, {CW}, v{RC+4+j}", f"v_add_lshl_u32 v{T0+5+j}, v{T0}, {j}, 5"]
    a(f"s_mul_i32 s3, s2, {CS}\ns_add_u32 s{sTAG}, s{sTAG}, 1\ns_waitcnt lgkmcnt(0)")
    a(f"v_add_u32 v{T0+8}, v{HC}, v{HC+1}\nv_add3_u32 v{T0+8}, v{T0+8}, v{HC+2}, v{HC+3}\nv_mov_b32 v{T0+9}, v{T0+8}")
    scan(a, T0 + 9, [fill[2*i: 2*i + 2] for i in range(6)])
    a(f"v_sub_u32 v{HB}, v{T0+9}, v{T0+8}\nv_add_u32 v{HB+1}, v{HB}, v{HC}\nv_add_u32 v{HB+2}, v{HB+1}, v{HC+1}\nv_add_u32 v{HB+3}, v{HB+2}, v{HC+2}")
    a(f"ds_write_b128 v{vLANE16}, v[{HB}:{HB+3}] offset:{L_BASE}")
    a(f"s_mov_b64 exec, s[{S+2}:{S+3}]")
    for j in (1, 2, 0):
        if j == 0: a(f"s_mov_b64 exec, s[{S}:{S+1}]")
        a(f"ds_read_b32 v{QA+j}, v{QA+j} offset:{L_BASE}")
    a("s_mov_b64 exec, -1")
    a(f"s_waitcnt vmcnt({PD[0] + PD[1]})")
    for j in range(3):
        a(f"v_mad_u32_u24 v{RC+j}, v{RC+j}, s{S+4}, v{SR_+j}\nv_lshl_add_u32 v{DS_+j}, v{SR_+j}, 10, v{DS_+j}\nv_subrev_u32 v{RC+4+j}, {N}, v{RC+j}\nv_min_u32 v{RC+j}, v{RC+j}, v{RC+4+j}")
        if o.n1:
            k1 = (1 << 17) // o.w1; k2 = ((NWIN - o.n1) << 17) // (N - o.n1 * o.w1); c2 = (o.n1 << 17) - k2 * o.n1 * o.w1
            assert (k2 * (N - 1) + c2) >> 17 < NWIN and k1 > k2
            a(f"v_mul_u32_u24 v{RC+4+j}, {k1}, v{RC+j}\nv_mul_u32_u24 v{RC+j}, {k2}, v{RC+j}\nv_add_u32 v{RC+j}, {c2}, v{RC+j}\nv_min_u32 v{RC+j}, v{RC+j}, v{RC+4+j}")
        else:
            if o.w0: a(f"v_add_u32 v{RC+j}, {o.w0}, v{RC+j}")
            a(f"v_mul_u32_u24 v{RC+j}, {(NWIN << 17) // (N + o.w0)}, v{RC+j}")
        a(f"v_lshrrev_b32 v{RC+j}, 17, v{RC+j}\nv_add_u32 v{RC+j}, v{RC+j}, v{DS_+j}")
    a(f"s_mov_b64 exec, s[{S+2}:{S+3}]\ns_waitcnt lgkmcnt(0)")
    for j in (1, 2, 0):
        if j == 0: a(f"s_mov_b64 exec, s[{S}:{S+1}]")
        a(f"v_add_lshl_u32 v{QA+j}, v{QA+j}, v{RKP+j}, 1\nv_mad_u32_u24 v{T0+10+j}, v{QA+j}, 6, s{S+5}")
        a(f"ds_write_b16 v{QA+j}, v{T0+5+j} offset:{L_ID}\nds_write2_b32 v{T0+10+j}, v{YY+2*j}, v{YY+2*j+1} offset1:1\nds_write_b32 v{T0+10+j}, v{RC+j} offset:8")
    a("s_mov_b64 exec, -1")
    dma(PD[2])
    TA_, TP_ = T0 + 14, T0 + 15
    for j in range(4):
        a(f"v_add_u32 v{HB+j}, s3, v{HB+j}\nv_lshl_add_u32 v{TR+2*j}, v{HC+j}, 19, v{HB+j}\nv_mov_b32 v{TR+2*j+1}, s{sTAG}")
    a(f"s_mul_i32 s{sTMP}, s2, {RS}\ns_add_u32 s{sTMP}, s{sTMP}, {WS_TABLE}\nv_add_u32 v{TA_}, s{sTMP}, v{vLANE16}")
    a(f"s_mul_i32 s{sTMP}, s3, 12\ns_add_u32 s{sTMP}, s{sTMP}, {WS_AUX}\ns_add_u32 s{rPA}, s{sWS}, s{sTMP}\ns_addc_u32 s{rPA+1}, s{sWS+1}, 0\ns_mov_b32 s{rPA+2}, {AUX_W}\ns_mov_b32 s{rPA+3}, 0x00020000")
    a(f"s_lshl_b32 s3, s3, 5\ns_add_u32 s{sTMP}, s3, {WS_EF}\ns_add_u32 s{rPE}, s{sWS}, s{sTMP}\ns_addc_u32 s{rPE+1}, s{sWS+1}, 0\ns_mov_b32 s{rPE+2}, {EF_W}\ns_mov_b32 s{rPE+3}, 0x00020000")
    a(f"v_and_b32 v{T0}, -2, v0\nv_and_b32 v{T0+1}, 16, v{C}\nv_add_u32 v{T0+1}, {L_RAW}, v{T0+1}")
    a("s_waitcnt lgkmcnt(0)\ns_barrier")
    if not o.cyc: stamp(a, o, 2, sST)
    for k in range(2):
        a(f"ds_read_b128 v[{P+4*k}:{P+4*k+3}], v{C+k} offset:{L_AUX}")
    for j in range(5):
        a(f"ds_read_u16 v{T0+2+j}, v{T0} offset:{L_ID + 512*j}")
    dma(PD[3])
    def pub():
        a(f"s_cmp_eq_u32 s{sW}, 7\ns_cbranch_scc0 L_nopub")
        a(f"global_store_dwordx4 v{TA_}, v[{TR}:{TR+3}], s[{sWS}:{sWS+1}] sc0 sc1\nglobal_store_dwordx4 v{TA_}, v[{TR+4}:{TR+7}], s[{sWS}:{sWS+1}] offset:1024 sc0 sc1")
        a("L_nopub:")
    if o.fs:
        pub()
        a(f"s_mul_i32 s3, s2, {o.fs}\ns_add_u32 s3, s3, {WS_FLAG}\nv_lshl_add_u32 v{TA_}, v{vL}, 2, s3")
    def auxst(k):
        a(f"buffer_store_dwordx4 v[{P+4*k}:{P+4*k+3}], v{C+k}, s[{rPA}:{rPA+3}], 0 offen sc0 sc1")
    for k in range(2):
        if not o.late:
            a(f"s_waitcnt lgkmcnt({6-k})")
            auxst(k)
    a("s_waitcnt lgkmcnt(0)")
    for j in range(5):
        if j == 4: a(f"v_min_u32 v{T0+2+j}, {CH*32-32}, v{T0+2+j}\nv_and_b32 v{T0+2+j}, -16, v{T0+2+j}")
        a(f"v_add_u32 v{T0+2+j}, v{T0+2+j}, v{T0+1}")
    if o.il == 1: init_lds()
    for r in range(0, 48, 2):
        a(f"v_mov_b64 v[{vACC+r}:{vACC+r+1}], 0")
    vSI, vZA = vA2, vA2 + 1
    if o.sm:
        assert o.wd
        a(f"v_bfe_u32 v{vSI}, v{vL}, 2, 1\nv_mul_u32_u24 v{vSI}, 0xaaaa, v{vSI}\nv_add_u32 v{vSI}, 0x4444, v{vSI}\nv_mov_b32 v{vZA}, {L_ZERO}")
        a(f"ds_write_b128 v{vZA}, v[{vACC}:{vACC+3}]")
    else:
        for r in range(0, 8, 2):
            a(f"v_mov_b64 v[{vA1+r}:{vA1+r+1}], 0")
        a(f"s_mov_b32 s{sMA}, 0x0f0f0f0f\ns_mov_b32 s{sMA+1}, s{sMA}\ns_not_b64 s[{sMB}:{sMB+1}], s[{sMA}:{sMA+1}]")
    a(f"v_lshrrev_b32 v{vLA}, 5, v{vL}\nv_lshlrev_b32 v{vLA}, 4, v{vLA}")
    a(f"v_and_b32 v{vLT}, 3, v{vL}\nv_lshlrev_b32 v{vLT}, 3, v{vLT}\nv_add_u32 v{vLT}, {L_T}, v{vLT}")
    XB = 512 if o.mark else 0
    XM = 0xfffffe00 if o.mark else 0xfffffc00
    if o.mark: a(f"s_sub_u32 s{rX}, s{rX}, {XB}\ns_subb_u32 s{rX+1}, s{rX+1}, 0")
    a(f"s_mov_b32 s{rX+2}, {N*1024 + XB}\ns_mov_b32 s{rX+3}, 0x00020000")
    srd(a, rAUX, sWS, AUX_BYTES, WS_AUX)
    a(f"s_mov_b32 s{sRK}, 0\ns_cmp_lt_u32 s2, 16\ns_cbranch_scc1 L_r40")
    for nm, R in (("39", R39), ("40", R40)):
        if nm == "40": a("s_branch L_rd\nL_r40:")
        for w, r in enumerate(R):
            a(f"s_cmp_eq_u32 s{sW}, {w}\ns_cselect_b32 s{sRK}, {hex(sum(x << (6*i) for i, x in enumerate(r)))}, s{sRK}")
    a("L_rd:")
    a(f"s_and_b32 s3, s2, 7\ns_lshl_b32 s3, s3, 7\ns_bfe_u32 s{sTMP}, s2, {(3 << 16) | 5}\ns_lshl_b32 s{sTMP}, s{sTMP}, 4\ns_add_u32 s3, s3, s{sTMP}")
    a(f"s_and_b32 s{sTMP}, s2, 8\ns_add_u32 s3, s3, s{sTMP}\ns_and_b32 s{sTMP}, s2, 16\ns_lshl_b32 s{sTMP}, s{sTMP}, 6\ns_add_u32 s3, s3, s{sTMP}\ns_add_u32 s3, s3, {WS_TABLE}")
    a(f"v_and_b32 v{vFA}, 255, v0\nv_mul_u32_u24 v{TP_}, {RS}, v{vFA}\nv_add_u32 v{TP_}, s3, v{TP_}")
    if o.fs: a(f"v_mul_u32_u24 v{vFA}, {o.fs}, v{vFA}\nv_add_u32 v{vFA}, {WS_FLAG}, v{vFA}")
    assert o.late or PD[4] == 0
    dma(PD[4])
    a(f"s_waitcnt vmcnt({(0 if o.late else 2) + 5})\ns_barrier")
    stamp(a, o, 3, sST)
    for j in range(5):
        a(f"ds_read_b128 v[{P+12+4*j}:{P+15+4*j}], v{T0+2+j}")
    if o.late:
        for k in range(2): auxst(k)
    PL = vX + 10
    POLL = f"global_load_dwordx2 v[{PL}:{PL+1}], v{TP_}, s[{sWS}:{sWS+1}] sc1"
    for j in range(6):
        if j == o.pp: a(f"s_cmp_eq_u32 s{sPAR}, 0\ns_cbranch_scc0 L_np0\n{POLL}\nL_np0:")
        if j < 5 and o.pace >= 0: a(f"s_waitcnt vmcnt({o.pace})")
        if j < 5: a(f"s_waitcnt lgkmcnt({4-j})\nbuffer_store_dwordx4 v[{P+12+4*j}:{P+15+4*j}], v{C+j}, s[{rPE}:{rPE+3}], 0 offen sc0 sc1")
    srd(a, rEF, sWS, EF_BYTES, WS_EF)
    srd(a, rOUT, sOUT, 0 if o.cyc == 3 else N * 1024)
    a("s_waitcnt vmcnt(0)\ns_barrier")
    stamp(a, o, 4, sST)
    PL = vX + 10
    POLL = f"global_load_dwordx2 v[{PL}:{PL+1}], v{TP_}, s[{sWS}:{sWS+1}] sc1"
    FPOLL = f"global_load_dword v{PL}, v{vFA}, s[{sWS}:{sWS+1}] sc1"
    if o.fs:
        if not o.ff: a(f"s_cmp_eq_u32 s{sPAR}, 0\ns_cbranch_scc0 L_np0\n{POLL}\nL_np0:")
        a(f"s_cmp_eq_u32 s{sW}, {0 if o.ff and o.pp > 5 else 7}\ns_cbranch_scc0 L_noflag")
        if o.noflag >= 0: a(f"s_cmp_eq_u32 s2, {o.noflag}\ns_cbranch_scc1 L_noflag")
        a(f"s_mov_b64 exec, {hex((1 << (o.fs // 4)) - 1)}")
        a(f"global_store_dword v{TA_}, v{TR+1}, s[{sWS}:{sWS+1}] sc0 sc1\ns_mov_b64 exec, -1\nL_noflag:")
        if o.ff == 1: a("s_barrier")
        if o.ff and o.pp > 5: a(f"s_cmp_eq_u32 s{sPAR}, 0\ns_cbranch_scc0 L_np0\n{POLL}\nL_np0:")
    else:
        pub()
    def xpf(r0, nrows, lab):
        per = nrows * 8 // 32
        assert per <= 256
        a(f"s_cmp_eq_u32 s{sPAR}, 0\ns_cbranch_scc1 {lab}")
        a(f"s_sub_u32 s3, 0, s2\ns_and_b32 s3, s3, 7\ns_mul_i32 s3, s3, {N // 8 * 1024}\ns_lshr_b32 s{sTMP}, s2, 3\ns_mul_i32 s{sTMP}, s{sTMP}, {per*128}\ns_add_u32 s3, s3, s{sTMP}\ns_add_u32 s3, s3, {r0*1024 + XB}")
        a(f"v_and_b32 v{vX+12}, 255, v0\nv_cmp_gt_u32 vcc, {per}, v{vX+12}\nv_lshlrev_b32 v{vX+12}, 7, v{vX+12}\nv_mov_b32 v{vX+13}, 0x7fffff00\nv_cndmask_b32 v{vX+12}, v{vX+13}, v{vX+12}, vcc")
        a(f"buffer_load_dword v{vX+14}, v{vX+12}, s[{rX}:{rX+3}], s3 offen\n{lab}:")
    if o.pfa: xpf(0, o.pfa, "L_pfa")
    if o.tl2:
        a(f"s_cmp_eq_u32 s{sW}, 7\ns_cbranch_scc0 L_tl2\nv_lshlrev_b32 v{vX+12}, 20, v{vL}")
        if o.tl2 & 1: a(f"buffer_load_dword v{vX+15}, v{vX+12}, s[{rOUT}:{rOUT+3}], 0 offen")
        if o.tl2 & 2: a(f"buffer_load_dword v{vX+15}, v{vX+12}, s[{rX}:{rX+3}], 0 offen offset:{XB}")
        if o.tl2 & 4: a(f"buffer_load_dword v{vX+15}, v{vX+12}, s[{rEF}:{rEF+3}], 0 offen sc1\nbuffer_load_dword v{vX+15}, v{vX+12}, s[{rAUX}:{rAUX+3}], 0 offen sc1")
        a("L_tl2:")
    F, V = P, U
    def fpoll():
        a(f"s_cmp_eq_u32 s{sPAR}, 0\ns_cbranch_scc1 L_npe\n{FPOLL}\nL_npe:")
    def bfrag(F, VA, hook=None):
        a(f"s_mov_b32 s{sT2+2}, 0x05040100\ns_mov_b32 s{sT2+3}, 0x07060302")
        a(f"s_and_b32 s3, s{sW}, 3\ns_lshl_b32 s3, s3, 6\nv_lshrrev_b32 v{VA}, 4, v{vL}\nv_and_b32 v{VA+1}, 15, v{vL}\nv_lshl_add_u32 v{VA+1}, v{VA+1}, 2, s3\nv_lshl_add_u32 v{VA}, v{VA}, 11, v{VA+1}")
        def brd(ks):
            for e in range(8):
                a(f"ds_read_b32 v{F+8*(ks&1)+e}, v{VA} offset:{L_WB + 8192*ks + 256*e}")
        brd(0)
        for ks in range(4):
            if hook: hook(ks)
            if ks < 3:
                a("s_waitcnt lgkmcnt(7)")
                brd(ks + 1)
            a(f"s_waitcnt lgkmcnt({8 if ks < 3 else 0})")
            for ep in range(4):
                x0 = F + 8 * (ks & 1) + 2 * ep
                a(f"v_perm_b32 v{vB+8*ks+ep}, v{x0+1}, v{x0}, s{sT2+2}\nv_perm_b32 v{vB+8*ks+4+ep}, v{x0+1}, v{x0}, s{sT2+3}")
    def wcvt(x0, d0, d1):
        a(f"v_lshlrev_b32 v{V+10}, 16, v{x0}\nv_lshlrev_b32 v{V+11}, 16, v{x0+1}\nv_and_b32 v{x0}, 0xffff0000, v{x0}\nv_and_b32 v{x0+1}, 0xffff0000, v{x0+1}")
        a(f"v_pk_mul_f32 v[{V+10}:{V+11}], v[{V+10}:{V+11}], s[{sT2}:{sT2+1}]\nv_pk_mul_f32 v[{x0}:{x0+1}], v[{x0}:{x0+1}], s[{sT2}:{sT2+1}]")
        a(f"v_cvt_pk_bf16_f32 v{d0}, v{V+10}, v{V+11}\nv_cvt_pk_bf16_f32 v{d1}, v{x0}, v{x0+1}")
    a(f"v_lshrrev_b32 v{V}, 5, v{vL}\nv_and_b32 v{V+1}, 31, v{vL}\nv_lshlrev_b32 v{V+1}, 2, v{V+1}\nv_lshl_add_u32 v{V}, v{V}, {10 if o.sm else 11}, v{V+1}")
    if o.wd:
        if o.sm:
            a(f"s_and_b32 s3, s{sW}, 2\ns_lshl_b32 s{sTMP}, s3, 8\ns_lshl_b32 s{sT2}, s{sPAR}, 11\ns_add_u32 s{sTMP}, s{sTMP}, s{sT2}\ns_and_b32 s3, s{sW}, 1\ns_lshl_b32 s3, s3, 7\ns_add_u32 s{sTMP}, s{sTMP}, s3")
            a(f"s_and_b32 s3, s{sW}, 3\nv_add_u32 v{V}, s{sTMP}, v{V}")
        else:
            a(f"s_and_b32 s3, s{sW}, 3\ns_lshl_b32 s{sTMP}, s3, 9\ns_lshl_b32 s{sT2}, s{sPAR}, 7\ns_add_u32 s{sTMP}, s{sTMP}, s{sT2}\nv_add_u32 v{V}, s{sTMP}, v{V}")
        a(f"ds_read_b32 v{F}, v{V} offset:{L_WB + 32768}\nds_read_b32 v{F+1}, v{V} offset:{L_WB + 32768 + 256}")
        a(f"s_lshl_b32 s3, s3, 2\ns_lshl_b32 s{sTMP}, s{sPAR}, 10\ns_add_u32 s3, s3, s{sTMP}\nv_add_u32 v{V+4}, s3, v{vLANE16}")
    else:
        for h in range(2):
            if h: a("s_waitcnt lgkmcnt(7)")
            for e in range(8):
                a(f"ds_read_b32 v{F+8*h+e}, v{V} offset:{L_WB + 32768 + 256*e + 128*h}")
    a(f"v_and_b32 v{V+2}, 3, v{vL}\nv_bfe_u32 v{V+3}, v{vL}, 2, 2\nv_lshlrev_b32 v{V+3}, 1, v{V+3}\nv_lshl_add_u32 v{V+2}, v{V+2}, 5, v{V+3}\nv_add_u32 v{V+2}, {L_CG}, v{V+2}")
    a(f"s_mov_b32 s{sT2}, 0xbfb8aa3b\ns_mov_b32 s{sT2+1}, s{sT2}")
    if not o.wd: a("s_waitcnt lgkmcnt(0)")
    for f in range(4):
        a(f"ds_read_u16 v{V+6+f}, v{V+2} offset:{8*f}")
    if o.wd:
        a("s_waitcnt lgkmcnt(4)")
        wcvt(F, F + 2, F + 3)
        a(f"ds_write_b32 v{V+4}, v{F+2} offset:{L_WF}\nds_write_b32 v{V+4}, v{F+3} offset:{L_WF + 2048}")
    else:
        for h in range(2):
            for ep in range(4):
                wcvt(F + 8 * h + 2 * ep, vW + 4 * h + ep, vW + 8 + 4 * h + ep)
    a("s_waitcnt lgkmcnt(0)")
    if o.sc == 2:
        for f in range(4):
            a(f"v_lshlrev_b32 v{V+6+f}, 16, v{V+6+f}\nv_mul_f32 v{V+6+f}, 0xbf317218, v{V+6+f}")
        for h in range(2):
            a(f"v_cvt_pk_bf16_f32 v{vCG+h}, v{V+6+2*h}, v{V+7+2*h}\nv_lshlrev_b32 v{V+10}, 16, v{vCG+h}\nv_and_b32 v{V+11}, 0xffff0000, v{vCG+h}")
            a(f"v_sub_f32 v{V+10}, v{V+6+2*h}, v{V+10}\nv_sub_f32 v{V+11}, v{V+7+2*h}, v{V+11}\nv_cvt_pk_bf16_f32 v{vCG+2+h}, v{V+10}, v{V+11}")
    else:
        a(f"v_lshl_or_b32 v{vCG}, v{V+7}, 16, v{V+6}\nv_lshl_or_b32 v{vCG+1}, v{V+9}, 16, v{V+8}")
    def pkhook(ks):
        if ks == o.pk:
            if o.fs: fpoll()
            else: a(f"s_cmp_eq_u32 s{sPAR}, 0\ns_cbranch_scc0 L_npe\n{POLL}\nL_npe:")
    if o.bp == 0: bfrag(F + 16, V + 4, pkhook)
    else: assert o.pk >= 4
    if o.fs and o.pk == 4: fpoll()
    if o.pfb: xpf(o.pfa, o.pfb, "L_pfb")
    a(f"s_cmp_eq_u32 s{sPAR}, 0\ns_cbranch_scc0 L_round\ns_mov_b32 s3, 0")
    if o.pk < 4 or o.fs: a("s_branch L_poll1")
    a(f"L_poll:\n{POLL}\nL_poll1:\ns_add_u32 s3, s3, 1\ns_waitcnt vmcnt(0)")
    a(f"v_cmpx_ne_u32 vcc, s{sTAG}, v{PL+1}\ns_cbranch_execz L_pok\ns_cmp_lt_u32 s3, {o.spin}\ns_cbranch_scc1 L_poll\nv_mov_b32 v{PL}, 0")
    a("L_pok:")
    a(f"s_mov_b64 exec, -1\nv_add_u32 v{U+2}, {L_TBL}, v{vRA}\nds_write_b32 v{U+2}, v{PL}")
    a("L_round:")
    TB = P + 8
    RQ = P + 8
    DL = P + 20
    RK = P + 0
    C12 = P + 3
    LW = P + 26
    TQ = P + 32
    a(f"v_add_u32 v{U+3}, {L_TBL}, v{vLANE16}\ns_and_b32 s{sTMP}, s{sW}, 3\nv_mov_b32 v{TB+8}, 0")
    a("s_waitcnt lgkmcnt(0)\ns_barrier")
    stamp(a, o, 5, sST)
    a(f"ds_read_b128 v[{TB}:{TB+3}], v{U+3}")
    if o.fs and o.pk == 5:
        a(f"s_cmp_lg_u32 s{sR0}, 0\ns_cbranch_scc1 L_npe")
        fpoll()
    a(f"v_mul_u32_u24 v{C12}, 12, v0\nv_add_u32 v{C12+1}, {512*12}, v{C12}\nv_add_u32 v{C12+2}, {1024*12}, v{C12}")
    a("s_waitcnt lgkmcnt(0)")
    for j in range(4):
        a(f"v_lshrrev_b32 v{TB+4+j}, 19, v{TB+j}")
    a(f"v_add_u32 v{TB+10}, v{TB+4}, v{TB+5}\nv_add3_u32 v{U}, v{TB+10}, v{TB+6}, v{TB+7}")
    scan(a, U, [[f"v_add_u32 v{U+1}, s{sR0}, v{U}", f"v_mov_b32 v{TB+9}, v{TB+4}"],
                [f"v_add_u32 v{TB+11}, v{TB+10}, v{TB+6}", f"s_set_gpr_idx_on s{sTMP}, gpr_idx(SRC0)", f"v_mov_b32 v{U+2}, v{TB}", f"v_mov_b32 v{U+3}, v{TB+4}", f"v_mov_b32 v{U+4}, v{TB+8}", "s_set_gpr_idx_off"],
                [f"v_and_b32 v{U+2}, 0x7ffff, v{U+2}", f"v_sub_u32 v{U+4}, v{U+4}, v{U+1}"],
                [f"v_subrev_u32 v{U+5}, s{sPAR}, v{U+3}", f"s_mov_b32 s{sTMP}, s{sPAR}"]])
    a(f"v_add_u32 v{U+4}, v{U+4}, v{U}\nv_readlane_b32 s{sTOT}, v{U}, 63\nv_sub_u32 v{U+2}, v{U+2}, v{U+4}\nv_add_lshl_u32 v{U+6}, v{U+4}, s{sPAR}, 2")
    a(f"s_cmp_gt_u32 s{sTOT}, {CAP}\ns_cbranch_scc1 L_exp")
    NX = 6
    for i in range(NX):
        a(f"v_cmpx_lt_i32 vcc, {2*i}, v{U+5}\nds_write_b32 v{U+6}, v{U+2} offset:{L_REC + 8*i}")
    a(f"v_cmpx_lt_i32 vcc, {2*NX}, v{U+5}\ns_cbranch_execz L_expd\ns_add_u32 s{sTMP}, s{sTMP}, {2*NX}")
    a("L_exp:")
    a(f"s_mov_b64 exec, -1\nv_cmp_lt_u32 vcc, s{sTMP}, v{U+3}\ns_cbranch_vccz L_expd")
    a(f"v_add_u32 v{U+7}, s{sTMP}, v{U+4}\ns_movk_i32 s3, {CAP}\nv_cmp_gt_u32 s[{sT2}:{sT2+1}], s3, v{U+7}\nv_lshlrev_b32 v{U+7}, 2, v{U+7}\ns_and_b64 exec, vcc, s[{sT2}:{sT2+1}]")
    a(f"ds_write_b32 v{U+7}, v{U+2} offset:{L_REC}\ns_add_u32 s{sTMP}, s{sTMP}, 2\ns_branch L_exp")
    def consts():
        a(f"s_sub_u32 s{sCNT}, s{sTOT}, s{sR0}\ns_min_u32 s{sCNT}, s{sCNT}, {CAP}\ns_lshl_b32 s3, s{sCNT}, 4")
        for k in range(3):
            a(f"v_cmp_gt_u32 s[{sM[k]}:{sM[k]+1}], s3, v{C+k}\nv_lshlrev_b32 v{LW+2*k+1}, 1, v{C+k}\nv_mov_b32 v{RQ+4*k+3}, 0")
        a(f"v_and_b32 v{vPW}, 15, v{vL}\nv_lshrrev_b32 v{U+1}, 4, v{vL}")
        a(f"s_mul_i32 s3, s{sPAR}, {80*AGS}\nv_mul_u32_u24 v{vEA}, {AGS}, v{vPW}\nv_lshl_add_u32 v{vEA}, v{U+1}, 4, v{vEA}\nv_add_u32 v{vEA}, s3, v{vEA}")
        a(f"s_mul_i32 s{sT2}, s{sPAR}, {20*256}\ns_add_u32 s{sT2}, s{sT2}, s2\ns_lshl_b32 s{sT2}, s{sT2}, 10\ns_and_b32 s3, s{sW}, 3\ns_lshl_b32 s3, s3, 8\ns_add_u32 s{sT2}, s{sT2}, s3")
        a(f"v_lshl_add_u32 v{vEO}, v{U+1}, 18, s{sT2}\nv_lshl_add_u32 v{vEO}, v{vPW}, 4, v{vEO}\nv_lshlrev_b32 v{vPW}, 3, v{vPW}")
        a(f"v_bfe_u32 v{vPA}, v{vL}, 3, 2\nv_and_b32 v{U}, 3, v{vL}\nv_lshl_add_u32 v{vPA}, v{vPA}, 2, v{U}\nv_lshlrev_b32 v{vPA}, 3, v{vPA}")
        a(f"v_lshrrev_b32 v{vPT}, 2, v{vL}\nv_lshlrev_b32 v{vPT}, 3, v{vPT}")
        a(f"v_mul_u32_u24 v{U+4}, 52, v{vL}\nv_lshrrev_b32 v{U+4}, 8, v{U+4}\nv_mul_u32_u24 v{U+5}, 5, v{U+4}\nv_sub_u32 v{U+5}, v{vL}, v{U+5}")
        a(f"v_mul_u32_u24 v{U+3}, 6, v{U+5}\nv_bfe_u32 v{U+3}, s{sRK}, v{U+3}, 6\nv_lshlrev_b32 v{U+3}, 2, v{U+3}\nv_lshlrev_b32 v{U+4}, 2, v{U+4}\nv_lshlrev_b32 v{U+5}, 19, v{U+5}")
        if o.mark: a(f"v_add_u32 v{U+5}, {XB << 16}, v{U+5}")
        if W2: a(f"v_add_u32 v{U+4}, {L_CELL}, v{U+4}")
        a(f"s_mul_i32 s3, s{sW}, 5\nv_lshlrev_b32 v{U+6}, 2, v{vL}\nv_add_u32 v{U+9}, s3, v{vL}\nv_lshlrev_b32 v{U+7}, 2, v{U+9}")
        a(f"v_cmp_gt_u32 vcc, 40, v{vL}\nv_add_u32 v{U+8}, 1, v{vL}\nv_add_u32 v{U+9}, 1, v{U+9}\nv_cndmask_b32 v{U+8}, 0, v{U+8}, vcc")
        a(f"s_cmp_gt_u32 s{sTOT}, {CAP}\ns_cselect_b32 s{sT2+1}, 0, 8\nv_mov_b32 v{U+10}, 8")
    a("L_expd:")
    a("s_mov_b64 exec, -1")
    def gate():
        a(f"s_cmp_eq_u32 s{sPAR}, 0\ns_cbranch_scc1 L_fok\ns_cmp_lg_u32 s{sR0}, 0\ns_cbranch_scc1 L_fok\ns_mov_b32 s3, 0\ns_waitcnt vmcnt({1 if o.pfb and o.pk < 5 else 0})\ns_branch L_fp1")
        a(f"L_fp:\n{FPOLL}\ns_add_u32 s3, s3, 1\ns_waitcnt vmcnt(0)\nL_fp1:")
        a(f"v_cmpx_ne_u32 vcc, s{sTAG}, v{PL}\ns_cbranch_execz L_fok\ns_cmp_lt_u32 s3, {o.spin}\ns_cbranch_scc1 L_fp\ns_branch L_giveup")
        a("L_fok:\ns_mov_b64 exec, -1")
        if o.fine: a(f"s_waitcnt lgkmcnt(0)\ns_mul_i32 s{sST+4}, s3, 100\ns_add_u32 s{sST+4}, s{sST+4}, s{sST}")
    if o.bp == 3:
        a(f"s_cmp_lg_u32 s{sR0}, 0\ns_cbranch_scc1 L_nofr3\ns_waitcnt lgkmcnt(0)")
        def h3(ks):
            if ks == o.pk - 6: fpoll()
        bfrag(vX + 16, TQ, h3)
        if o.pk == 10: fpoll()
        a("L_nofr3:")
    if o.gl:
        a("s_waitcnt lgkmcnt(0)\ns_barrier")
    else:
        if o.ce: consts()
        if o.fs: gate()
        a("s_waitcnt lgkmcnt(0)\ns_barrier")
        if o.fine: stamp(a, o, 1, sST)
    for k in range(3):
        a(f"ds_read_b32 v{RK+k}, v{vRA} offset:{L_REC + 2048*k}")
    for j in range(6):
        a(f"ds_read_b32 v{DL+j}, v{vRB} offset:{L_REC + 1024*j}")
    def auxld(k):
        a(f"buffer_load_dwordx3 v[{RQ+4*k}:{RQ+4*k+2}], v{RK+k}, s[{rAUX}:{rAUX+3}], 0 offen sc1")
    if o.gl and o.ce: consts()
    for k in range(3):
        a(f"s_waitcnt lgkmcnt({8-k})\nv_mad_i32_i24 v{RK+k}, v{RK+k}, 12, v{C12+k}")
        if not o.gl: auxld(k)
    a("s_waitcnt lgkmcnt(0)")
    for j in range(6):
        a(f"v_lshl_add_u32 v{DL+j}, v{DL+j}, 5, v{C+j}")
    if o.gl:
        gate()
        a("s_barrier")
        if o.fine: stamp(a, o, 1, sST)
        for k in range(3): auxld(k)
    if o.efs[0] != "0" and o.b3: a("s_barrier")
    nef = [0]
    def efdma(n):
        for _ in range(n):
            j = nef[0]; nef[0] += 1
            a(f"s_add_u32 m0, s{sBASE}, {L_EF + 8192*j}\ns_nop 0\nbuffer_load_dwordx4 v{DL+j}, s[{rEF}:{rEF+3}], 0 offen sc1 lds")
    EFS = [int(c) for c in o.efs]; assert sum(EFS) == 6 and len(EFS) == 5
    efdma(EFS[0])
    if not o.ce: consts()
    if o.pfc:
        per = o.pfc * 8 // 256
        a(f"s_sub_u32 s3, 0, s2\ns_and_b32 s3, s3, 7\ns_mul_i32 s3, s3, {N // 8 * 1024}\ns_and_b32 s{sTMP}, s2, -8\ns_add_u32 s{sTMP}, s{sTMP}, s{sW}\ns_mul_i32 s{sTMP}, s{sTMP}, {per*128}\ns_add_u32 s3, s3, s{sTMP}\ns_add_u32 s3, s3, {(o.pfa + o.pfb)*1024 + XB}")
        a(f"v_cmp_gt_u32 vcc, {per}, v{vL}\nv_lshl_add_u32 v{vFA}, v{vL}, 7, s3\nv_mov_b32 v{U}, 0x7fffff00\nv_cndmask_b32 v{vFA}, v{U}, v{vFA}, vcc")
    if o.wd or o.bp == 1:
        a(f"s_cmp_lg_u32 s{sR0}, 0\ns_cbranch_scc1 L_nofr")
        if o.wd:
            for q in range(4):
                a(f"ds_read_b128 {vr(vW+4*q,4)}, v{vLANE16} offset:{L_WF + 1024*q}")
        if o.bp == 1: bfrag(vX + 16, TQ)
        a("L_nofr:")
    for k in range(3):
        a(f"s_waitcnt vmcnt({2 - k + EFS[0]})")
        if k == 0: stamp(a, o, 6, sST)
        a(f"s_mov_b64 exec, s[{sM[k]}:{sM[k]+1}]\nv_and_b32 v{RQ+4*k+3}, 0x3ff, v{RQ+4*k+2}\nv_lshrrev_b32 v{U+k}, 24, v{RQ+4*k+2}\nv_lshlrev_b32 v{RQ+4*k+3}, 2, v{RQ+4*k+3}")
        a(f"ds_add_u32 v{U+k}, v{U+10} offset:{L_DEG}\nds_add_rtn_u32 v{RK+k}, v{RQ+4*k+3}, v{U+10} offset:{L_CELL}")
    a("s_mov_b64 exec, -1")
    def tcomp(k):
        for oo in range(4):
            a(f"v_mfma_f32_4x4x4_16b_bf16 {vr(TQ+4*oo,4)}, {vr(vCG,2)}, {vr(RQ+4*k,2)}, 0 cbsz:4 abid:{oo}")
        if o.sc == 2:
            for oo in range(4):
                a(f"v_mfma_f32_4x4x4_16b_bf16 {vr(TQ+4*oo,4)}, {vr(vCG+2,2)}, {vr(RQ+4*k,2)}, {vr(TQ+4*oo,4)} cbsz:4 abid:{oo}")
        a(f"v_add_u32 v{U+11}, {L_T}, v{LW+2*k+1}\ns_nop 0")
        for q in range(8):
            a(f"v_cvt_pk_bf16_f32 v{TQ+16+q}, v{TQ+2*q}, v{TQ+2*q+1}")
    def twrite():
        a(f"ds_write_b128 v{U+11}, v[{TQ+16}:{TQ+19}]\nds_write_b128 v{U+11}, v[{TQ+20}:{TQ+23}] offset:16")
    efdma(EFS[1])
    if o.tl < 3: tcomp(0)
    a("s_waitcnt lgkmcnt(0)\ns_barrier")
    a(f"ds_read_b32 v{U}, v{U+6} offset:{L_DEG}\nds_read_b32 v{U+1}, v{U+7} offset:{L_DEG}")
    if o.tl < 3: twrite()
    a(f"v_mul_u32_u24 v{U+7}, {CW}, v{U+7}")
    for k in range(3):
        a(f"v_and_b32 v{RQ+4*k+2}, 0xfffc00, v{RQ+4*k+2}")
    a(f"s_waitcnt lgkmcnt({2 if o.tl < 3 else 0})\nv_mad_u32_u24 v{U+9}, v{U+1}, s{sT2+1}, v{U+9}\nv_mad_u32_u24 v{U+8}, v{U}, s{sT2+1}, v{U+8}")
    for j in range(5):
        a(f"v_readlane_b32 s{sN+j}, v{U+9}, {j}")
    a(f"v_lshl_add_u32 v{U+7}, v{U+1}, 16, v{U+7}")
    for j in range(5):
        a(f"v_cmp_lt_u32 s[{S+2*j}:{S+2*j+1}], s{sN+j}, v{U+8}")
    for j in range(5):
        a(f"s_bcnt1_i32_b64 s{sN+j}, s[{S+2*j}:{S+2*j+1}]\nv_writelane_b32 v{U}, s{sN+j}, {j}")
    a(f"s_mov_b64 exec, 31\nv_lshlrev_b32 v{U}, 2, v{U}\nds_write_b32 v{U}, v{U+7} offset:{L_INV}\ns_mov_b64 exec, -1")
    efdma(EFS[2])
    a("s_waitcnt lgkmcnt(0)\ns_barrier")
    a(f"ds_read_b32 v{U}, v{U+3} offset:{L_INV}")
    if o.tl < 2: tcomp(1)
    a(f"s_waitcnt lgkmcnt(0)\nv_add_u32_sdwa v{U+4}, v{U}, v{U+4} dst_sel:DWORD dst_unused:UNUSED_PAD src0_sel:WORD_0 src1_sel:DWORD")
    CC = C12 + 1
    if W2: a(f"ds_read2_b32 v[{CC}:{CC+1}], v{U+4} offset1:12")
    else: a(f"ds_read_b32 v{U+1}, v{U+4} offset:{L_CELL}")
    for j in range(5):
        a(f"v_readlane_b32 s{sN+j}, v{U}, {j}")
    a(f"s_add_u32 s3, s{sN}, s{sN+1}\ns_add_u32 s3, s3, s{sN+2}\ns_add_u32 s3, s3, s{sN+3}\ns_add_u32 s3, s3, s{sN+4}\ns_lshr_b32 s{sCNT}, s3, 16")
    a(f"s_add_u32 s3, s{sCNT}, {8*PADN}\nv_mov_b32 v{U+2}, s3\nv_mov_b32 v{U+6}, 0\ns_mov_b64 exec, 1\nds_add_rtn_u32 v{U+2}, v{U+6}, v{U+2} offset:{L_CNT}\ns_mov_b64 exec, -1")
    a("s_waitcnt lgkmcnt(1)")
    mk = [f"s_sub_u32 s3, 0, s{sCNT}", f"s_bfe_u32 s3, s3, {((G.bit_length() - 1) << 16) | 3}", f"s_add_u32 s3, s3, {D}", f"v_writelane_b32 v{U+8}, 40, s3"] if o.mark else []
    if W2:
        a(f"v_lshl_add_u32 v{U+1}, v{CC+1}, 16, v{CC}")
        f1 = [f"v_sub_u32 v{CC}, v{U+5}, v{CC}", f"v_sub_u32 v{CC+1}, v{U+5}, v{CC+1}"]
    else:
        f1 = [f"v_sub_u32 v{U+5}, v{U+5}, v{U+1}"]
    scan(a, U + 1, [f1, [], [f"v_mov_b32 v{U+8}, {0x7ffffc00 | 40}", f"v_mov_b32 v{U+9}, 0"], mk,
                    ["s_waitcnt lgkmcnt(0)", f"v_readfirstlane_b32 s{sT2+3}, v{U+2}"], [f"s_add_u32 s3, s{sT2+3}, s{sCNT}", f"v_lshl_add_u32 v{U+6}, v{vL}, 3, s3"]])
    if W2:
        a(f"s_mov_b32 exec_hi, 0x0fffffff\nv_readlane_b32 s3, v{U+1}, 59")
        a(f"v_add_u32_sdwa v{CC}, v{U+1}, v{CC} dst_sel:DWORD dst_unused:UNUSED_PAD src0_sel:WORD_0 src1_sel:DWORD")
        a(f"v_add_u32_sdwa v{CC+1}, v{U+1}, v{CC+1} dst_sel:DWORD dst_unused:UNUSED_PAD src0_sel:WORD_1 src1_sel:DWORD")
        a(f"s_and_b32 s3, s3, 0xffff\nv_add_u32 v{CC}, s{sT2+3}, v{CC}\ns_add_u32 s3, s3, s{sT2+3}\nv_add_u32 v{CC+1}, s3, v{CC+1}")
        a(f"ds_write2_b32 v{U+4}, v{CC}, v{CC+1} offset1:12")
    else:
        a(f"s_mov_b32 exec_hi, 0x0fffffff\nv_add3_u32 v{U+1}, v{U+1}, v{U+5}, s{sT2+3}\nds_write_b32 v{U+4}, v{U+1} offset:{L_CELL}")
    a(f"ds_write_b64 v{U+6}, v[{U+8}:{U+9}] offset:{L_LIST}\ns_mov_b64 exec, -1")
    if o.tl < 2: twrite()
    efdma(EFS[3])
    a(f"s_waitcnt lgkmcnt({2 if o.tl < 2 else 0})\ns_barrier")
    for k in range(3):
        a(f"ds_read_b32 v{U+k}, v{RQ+4*k+3} offset:{L_CELL}")
    a(f"v_add_u32 v{vPW}, s{sT2+3}, v{vPW}\nv_add_u32 v{vPA}, s{sT2+3}, v{vPA}\nv_add_u32 v{vPT}, s{sT2+3}, v{vPT}\ns_lshr_b32 s{sCNT}, s{sCNT}, 3")
    for k in range(3):
        a(f"s_mov_b64 exec, s[{sM[k]}:{sM[k]+1}]\ns_waitcnt lgkmcnt(2)")
        a(f"v_add_u32_sdwa v{RK+k}, v{U+k}, v{RK+k} dst_sel:DWORD dst_unused:UNUSED_PAD src0_sel:WORD_0 src1_sel:DWORD")
        a(f"v_or_b32_sdwa v{LW+2*k}, v{U+k}, v{RQ+4*k+2} dst_sel:DWORD dst_unused:UNUSED_PAD src0_sel:WORD_1 src1_sel:DWORD")
        a(f"ds_write_b64 v{RK+k}, v[{LW+2*k}:{LW+2*k+1}] offset:{L_LIST}")
    a("s_mov_b64 exec, -1")
    efdma(EFS[4])
    a("s_waitcnt lgkmcnt(0)\ns_barrier")
    stamp(a, o, 7, sST)
    a(f"ds_read_b32 v{U}, v{vPW}\nds_read_b32 v{vWD[0]}, v{vPW} offset:{8*D}\nds_read_b32 v{vIA}, v{vPA} offset:4\nds_read_b32 v{vIT}, v{vPT} offset:4")
    if o.tl == 0:
        a(f"s_cmp_eq_u64 s[{sM[2]}:{sM[2]+1}], 0\ns_cbranch_scc1 L_not3")
        tcomp(2)
        twrite()
        a("s_waitcnt lgkmcnt(2)\ns_branch L_t3\nL_not3:\ns_waitcnt lgkmcnt(0)\nL_t3:")
    else:
        a("s_waitcnt lgkmcnt(3)")
    XS = [int(c) for c in o.xs]; assert sum(XS) == D and len(XS) == 4
    nx = [0]
    def xld(n):
        for _ in range(n):
            k = nx[0]; nx[0] += 1
            t = sT2 + 2 + (k & 1)
            a(f"s_and_b32 s{t}, s{sRING+k}, {XM}\nbuffer_load_dwordx4 v[{vX+4*k}:{vX+4*k+3}], v{vLANE16}, s[{rX}:{rX+3}], s{t} offen")
    for k in range(D):
        if k == XS[0]: xld(XS[0])
        a(f"v_readlane_b32 s{sRING+k}, v{U}, {k}")
    xld(XS[0] - nx[0])
    if o.tl:
        for k in range(3 - o.tl, 3):
            if k == 2: a(f"s_cmp_eq_u64 s[{sM[2]}:{sM[2]+1}], 0\ns_cbranch_scc1 L_not3")
            tcomp(k)
            twrite()
        a("L_not3:\ns_waitcnt lgkmcnt(0)")
    a(f"v_add_u32 v{vIA}, v{vIA}, v{vLA}\nv_add_u32 v{vIT}, v{vIT}, v{vLT}")
    a(f"v_readlane_b32 s{sRING+D}, v{vWD[0]}, 0")
    if o.m4: a(f"s_mov_b32 s0, {XM}")
    if o.a64: a(f"v_readlane_b32 s{sRING+D+1}, v{vWD[0]}, 1\ns_mov_b32 s0, 0xfffffc00\ns_mov_b32 s1, s0")
    if not o.mm:
        for s in range(5):
            a(f"s_and_b32 s{sN+s}, s{sN+s}, 0xffff\ns_mulk_i32 s{sN+s}, {AGS//CW}")
    if o.a64: a(f"s_and_b64 s[{sT2}:{sT2+1}], s[{sRING+D}:{sRING+D+1}], s[0:1]")
    else: a(f"s_and_b32 s{sT2}, s{sRING+D}, {XM}")
    def zclr(buf, r0, n):
        for r in range(r0, r0 + n):
            if o.sm == 1: a(f"ds_read_b128 {vr(Z(buf, 0) + 4*r, 4)}, v{vZA}")
            elif o.sm == 2: a(f"v_mov_b64 {vr(Z(buf, 0) + 4*r, 2)}, 0\nv_mov_b64 {vr(Z(buf, 0) + 4*r + 2, 2)}, 0")
    if o.sm: zclr(0, 0, 8)
    if o.bp == 2:
        a(f"s_cmp_lg_u32 s{sR0}, 0\ns_cbranch_scc1 L_nofr2\ns_waitcnt lgkmcnt(0)")
        bfrag(P + 8, P)
        a("L_nofr2:")
    a(f"s_waitcnt vmcnt({XS[0]}) lgkmcnt(0)\ns_barrier")
    stamp(a, o, 8, sST)
    if o.cyc: a(f"s_memtime s[{sST+2}:{sST+3}]")
    if o.cyc == 2: a(f"s_mov_b32 s{rX+2}, 0")
    a(f"s_cmp_eq_u32 s{sCNT}, 0\ns_cbranch_scc1 L_exit\ns_sub_u32 s{sCNT}, s{sCNT}, 1")

    def rdA(buf):
        if o.sm:
            a(f"ds_read_b128 v[{vA1}:{vA1+3}], v{vIA} offset:{L_EF}\nds_read_b64 v[{vT[buf]}:{vT[buf]+1}], v{vIT}")
            return
        a(f"s_mov_b64 exec, s[{sMA}:{sMA+1}]\nds_read_b128 v[{vA1}:{vA1+3}], v{vIA} offset:{L_EF}")
        a(f"s_mov_b64 exec, s[{sMB}:{sMB+1}]\nds_read_b128 v[{vA2}:{vA2+3}], v{vIA} offset:{L_EF}\ns_mov_b64 exec, -1")
        a(f"ds_read_b64 v[{vT[buf]}:{vT[buf]+1}], v{vIT}")
    def zm(buf, q):
        if o.sm: return f"v_smfmac_f32_32x32x32_bf16 {vr(Z(buf, q), 16)}, {vr(vA1, 4)}, {vr(vW + 8*q, 8)}, v{vSI}"
        par, h = q >> 1, q & 1
        z = vr(Z(buf, par), 16)
        return f"v_mfma_f32_32x32x16_bf16 {z}, {vr(vA2 if h else vA1, 4)}, {vr(vW + 4*q, 4)}, {z if h else '0'}"
    def unit(u):
        u %= 32
        return Z(u >> 4, u & 1, (u & 15) & ~1)
    def ta(u): return vTA + 2 * (u & 1)
    def EXP(u, j): return f"v_exp_f32 v{ta(u)+j}, v{unit(u)+j}"
    def RCP(u, j): return f"v_rcp_f32 v{ta(u)+j}, v{ta(u)+j}"
    def PADD(u): return f"v_pk_add_f32 {vr(ta(u),2)}, {vr(ta(u),2)}, 1.0 op_sel_hi:[1,0]"
    def PMUL(u): return f"v_pk_mul_f32 {vr(unit(u),2)}, {vr(unit(u),2)}, {vr(ta(u),2)}"
    rdA(0)
    xld(XS[1])
    a("s_waitcnt lgkmcnt(1)")
    for q in range(2 if o.sm else 4):
        a(zm(0, q))
    xld(XS[2])
    a(f"s_waitcnt lgkmcnt(0)\ns_nop {max(0, 10 - 2 * XS[2])}")
    a(EXP(0, 0)); a(EXP(0, 1)); a(EXP(1, 0)); a(EXP(1, 1)); a(PADD(0)); a(PADD(1)); a(RCP(0, 0)); a(RCP(0, 1)); a("s_nop 0"); a(PMUL(0))
    xld(XS[3])
    if o.pfc:
        a(f"buffer_load_dword v{vFA}, v{vFA}, s[{rX}:{rX+3}], 0 offen")
    zsteps = {int(c, 16): q for q, c in enumerate(o.zs)}; assert len(zsteps) == (2 if o.sm else 4) and min(zsteps) >= 4 and max(zsteps) <= 12
    if o.align:
        a(f".p2align {o.align}")
    for _ in range(o.pad): a("s_nop 0")
    a("L_loop:")
    ORD = [x.split() for x in o.order.split("|")]
    for i in range(32):
        b, s = i >> 4, i & 15
        x = vX + 4 * (i % 8)
        xl = vX + 4 * ((i + D) % 8)
        ring = sRING + (i + 1 + D) % 32
        sel = "op_sel_hi:[0,1,1]" if s % 2 == 0 else "op_sel:[1,0,0]"
        def extra():
            if o.prio and i % o.prio == 0:
                a(f"s_setprio {3 - (i // o.prio) % 4}")
            if s == 0:
                a(f"ds_read_b32 v{vIA}, v{vPA} offset:{4 + 128*(b+1)}\nds_read_b32 v{vIT}, v{vPT} offset:{4 + 128*(b+1)}")
                a(f"ds_read_b32 v{vWD[1-b]}, v{vPW} offset:{8*D + 128*(b+1)}")
            if o.sm:
                ZC = [int(c) for c in o.zc]; assert sum(ZC) == 8 and len(ZC) < min(zsteps)
                if s < len(ZC) and s != 2: zclr(1 - b, sum(ZC[:s]), ZC[s])
            if s == 2:
                a(f"s_waitcnt lgkmcnt(0)\nv_add_u32 v{vIA}, v{vIA}, v{vLA}\nv_add_u32 v{vIT}, v{vIT}, v{vLT}")
                rdA(1 - b)
                if o.sm and len(ZC) > 2: zclr(1 - b, sum(ZC[:2]), ZC[2])
        T = dict(
            M0=f"v_mfma_f32_4x4x4_16b_bf16 {vr(vDD,4)}, {vr(vT[b],2)}, {vr(x,2)}, 0 cbsz:4 abid:{s}",
            M1=f"v_mfma_f32_4x4x4_16b_bf16 {vr(vDD+4,4)}, {vr(vT[b],2)}, {vr(x+2,2)}, 0 cbsz:4 abid:{s}",
            RL=f"v_readlane_b32 s{ring}, v{vWD[((i + 1) >> 4) & 1]}, {(i + 1) & 15}",
            AND=f"s_and_b32 s{sT2 + (i + 1) % 2}, s{ring}, {'s0' if o.m4 else XM}",
            LD=f"buffer_load_dwordx4 {vr(xl,4)}, v{vLANE16}, s[{rX}:{rX+3}], s{sT2 + i % 2} offen {o.xf}",
            WT=f"s_waitcnt vmcnt({D-1})" + (" lgkmcnt(0)" if s == min(zsteps) else ""),
            F="\n".join(f"v_pk_fma_f32 {vr(vACC+2*q,2)}, {vr(Z(b, q >> 1, s & ~1),2)}, {vr(vDD+2*q,2)}, {vr(vACC+2*q,2)} {sel}" for q in range(4)),
            ON=f"s_set_gpr_idx_on s{sRING + i}, gpr_idx(SRC2,DST)", OFF="s_set_gpr_idx_off",
            E0=EXP(i+2, 0), E1=EXP(i+2, 1), R0=RCP(i+1, 0), R1=RCP(i+1, 1), PA=PADD(i+2), PM=PMUL(i+1),
            Z=zm(1 - b, zsteps.get(s, 0)))
        if o.a64:
            ring = sRING + (i + 2 + D) % 32
            T["RL"] = f"v_readlane_b32 s{ring}, v{vWD[((i + 2) >> 4) & 1]}, {(i + 2) & 15}"
            t2 = sT2 + (i + 1) % 4
            T["AND"] = f"s_and_b64 s[{t2}:{t2+1}], s[{ring-1}:{ring}], s[0:1]" if i & 1 else ""
            T["LD"] = f"buffer_load_dwordx4 {vr(x,4)}, v{vLANE16}, s[{rX}:{rX+3}], s{sT2 + i % 4} offen"
        if o.w2:
            T["WT"] = (f"s_waitcnt vmcnt({D-2})" + (" lgkmcnt(0)" if s == 4 else "")) if i % 2 == 0 else ""
        for t in ORD[1 if s in zsteps else 0]:
            if t == "X": extra()
            else: a(T[t])
        if (i + 1) % G == 0:
            if o.mark: a("s_cbranch_scc0 L_exit")
            else: a(f"s_sub_u32 s{sCNT}, s{sCNT}, {G}\ns_cbranch_scc1 L_exit")
    a(f"v_add_u32 v{vPW}, 256, v{vPW}\nv_add_u32 v{vPA}, 256, v{vPA}\nv_add_u32 v{vPT}, 256, v{vPT}")
    a("s_branch L_loop")
    if o.fs:
        assert not o.gl
        a(f"L_giveup:\ns_mov_b64 exec, -1\nv_mov_b64 v[{TQ}:{TQ+1}], 0\nv_mov_b64 v[{TQ+2}:{TQ+3}], 0\nv_add_u32 v{TQ+4}, {L_TBL}, v{vLANE16}\nds_write_b128 v{TQ+4}, v[{TQ}:{TQ+3}]")
        for r in range(4): a(f"v_mov_b32 v{TQ+8+r}, 0x00300000")
        for j in range(6): a(f"ds_write_b128 v{vLANE16}, v[{TQ+8}:{TQ+11}] offset:{L_REC + 1024*j}")
        a("s_branch L_fok")
    a("L_more:")
    a(f"s_waitcnt vmcnt(0) lgkmcnt(0)\ns_barrier\nv_lshlrev_b32 v{C}, 4, v0")
    for j in range(1, 6):
        a(f"v_add_u32 v{C+j}, {8192*j}, v{C}")
    init_lds()
    a("s_branch L_round")
    a("L_exit:")
    a(f"s_add_u32 s{sR0}, s{sR0}, {CAP}\ns_cmp_lt_u32 s{sR0}, s{sTOT}\ns_cbranch_scc1 L_more")
    stamp(a, o, 9, sST)
    if o.cyc: a(f"s_memtime s[{sST+4}:{sST+5}]")
    Q = vW
    for s in range(5):
        c = vACC + 8 * s
        if o.mm == 1: a(f"s_mul_i32 m0, s{sN+s}, {AGS//CW}")
        elif o.mm == 2: a(f"s_and_b32 s3, s{sN+s}, 0xffff\ns_mul_i32 m0, s3, {AGS//CW}")
        else: a(f"s_mov_b32 m0, s{sN+s}")
        if o.sc == 1:
            if s == 0: a(f"s_mov_b32 s{sT2}, 0xbf317218\ns_mov_b32 s{sT2+1}, s{sT2}")
            for q in range(4):
                a(f"v_pk_mul_f32 {vr(c+2*q,2)}, {vr(c+2*q,2)}, s[{sT2}:{sT2+1}]")
        for oo in range(4):
            a(f"v_cvt_pk_bf16_f32 v{c+oo}, v{c+oo}, v{c+4+oo}")
        for oo in range(4):
            a(f"ds_write_addtid_b32 v{c+oo} offset:{L_AGG + oo*AGS}")
    a(f"s_mov_b32 s{sT2}, 0xbf317218")
    a("s_waitcnt lgkmcnt(0)\ns_barrier")
    stamp(a, o, 10, sST)
    AF = vACC
    DF = vACC + 32
    def rdtile(k):
        for ks in range(4):
            a(f"ds_read_b128 {vr(AF+16*(k&1)+4*ks,4)}, v{vEA} offset:{L_AGG + 16*k*AGS + 64*ks}")
    def fin(kk):
        dd = DF + 8 * (kk & 1)
        t = Q + 8 + 4 * (kk & 1)
        r = [f"v_mul_f32 v{dd+q}, s{sT2}, v{dd+q}" for q in range(8)] if o.sc == 0 else []
        r += [f"v_cvt_pk_bf16_f32 v{t+q}, v{dd+2*q}, v{dd+2*q+1}" for q in range(4)]
        r += [f"s_mov_b32 s3, {kk << 20}\nbuffer_store_dwordx4 {vr(t,4)}, v{vEO}, s[{rOUT}:{rOUT+3}], s3 offen {o.of}"]
        return r
    rdtile(0)
    for k in range(5):
        if k < 4:
            rdtile(k + 1)
        else:
            a("s_nop 3")
        d = DF + 8 * (k & 1)
        f = fin(k - 1) if k else []
        for ks in range(4):
            a(f"s_waitcnt lgkmcnt({(4 if k < 4 else 0) + 3 - ks})")
            for par in range(2):
                a(f"v_mfma_f32_16x16x32_bf16 {vr(d+4*par,4)}, {vr(AF+16*(k&1)+4*ks,4)}, {vr(vB+8*ks+4*par,4)}, {'0' if ks == 0 else vr(d+4*par,4)}")
                if ks > 0:
                    for _ in range(o.fi):
                        if f: a(f.pop(0))
        for x in f: a(x)
    a(f"s_or_b32 s{sTMP}, s2, s{sW}\ns_cbranch_scc1 L_noep\nv_lshlrev_b32 v{Q}, 2, v{vL}\nv_mov_b32 v{Q+1}, s{sTAG}\nglobal_store_dword v{Q}, v{Q+1}, s[{sWS}:{sWS+1}] offset:{WS_EPOCH} sc0 sc1\nL_noep:")
    a("s_nop 5")
    for x in fin(4): a(x)
    if o.stamps:
        a("s_waitcnt vmcnt(0)")
    stamp(a, o, 11, sST)
    stamp_out(a, o, 12, sST, sWS, sW, 0, Q)
    a("L_end:\ns_endpgm")
    if o.dly:
        idx = [i for i, l in enumerate(a.l) if l.strip() == "s_barrier"]
        if o.dly > 0: a.l.insert(idx[o.dly - 1] + 1, f"    s_sleep {o.dlen}")
        else: a.l.insert(idx[-o.dly - 1] - 1, f"    s_sleep {o.dlen}")
    return a.text(), NV, 102

def build(o):
    ref = open("cdna_kernels/" + NAME + ".s.ref").read().split("\n")
    head = [l for l in ref if l.startswith(";") and "@launch" not in l and "Override" not in l and "grid=ceil" not in l]
    out = "\n".join(head) + "\n"
    if o.probe:
        out += f"; @launch kernel={NAME}_kernel grid=(256,1,1) block=(512,1,1) lds={LDS}\n; @launch kernel=tfn_probe_kernel grid=(1,1,1) block=(64,1,1) lds=0\n"
    else:
        out += f"; @launch grid=(256,1,1) block=(512,1,1) lds={LDS}\n"
    out += "; generated by gen/gen5.py\n"
    out += '.amdgcn_target "amdgcn-amd-amdhsa--gfx950"\n.text\n'
    nm = NAME + "_kernel"
    t, v, s = kern(o)
    out += f".globl {nm}\n.p2align 8\n.type {nm},@function\n{nm}:\n" + t
    if o.probe:
        o.nw0 = 8
        t3, v3, s3 = k3(o)
        out += ".globl tfn_probe_kernel\n.p2align 8\n.type tfn_probe_kernel,@function\ntfn_probe_kernel:\n" + t3
        out += KD.format(name="tfn_probe_kernel", v=v3, s=s3, acc=(v3 + 3) // 4 * 4)
    out += KD.format(name=nm, v=v, s=s, acc=(v + 3) // 4 * 4)
    return out

def parser():
    p = argparse.ArgumentParser()
    p.add_argument("-o", default="cdna_kernels/" + NAME + ".s")
    p.add_argument("--G", type=int, default=2)
    p.add_argument("--prio", type=int, default=4)
    p.add_argument("--pd", default="2350")
    p.add_argument("--late", type=int, default=0)
    p.add_argument("--efs", default="11211")
    p.add_argument("--xs", default="4210")
    p.add_argument("--pfa", type=int, default=520)
    p.add_argument("--pfb", type=int, default=0)
    p.add_argument("--pk", type=int, default=5)
    p.add_argument("--order", default="X WT R0 M0 E1 M1 E0 RL R1 PA PM AND ON LD F OFF | WT M1 M0 R1 X Z E0 E1 RL R0 PA PM AND ON LD F OFF")
    p.add_argument("--align", type=int, default=0)
    p.add_argument("--pad", type=int, default=0)
    p.add_argument("--cpf", type=int, default=2)
    p.add_argument("--kf", default="")
    p.add_argument("--yf", default="")
    p.add_argument("--ef", default="")
    p.add_argument("--of", default="sc0 sc1")
    p.add_argument("--a64", type=int, default=0)
    p.add_argument("--w2", type=int, default=0)
    p.add_argument("--mark", type=int, default=1)
    p.add_argument("--m4", type=int, default=0)
    p.add_argument("--b1", type=int, default=1)
    p.add_argument("--b2", type=int, default=1)
    p.add_argument("--il", type=int, default=0)
    p.add_argument("--xf", default="")
    p.add_argument("--zs", default="9b")
    p.add_argument("--fs", type=int, default=32)
    p.add_argument("--wd", type=int, default=1)
    p.add_argument("--bp", type=int, default=0)
    p.add_argument("--ce", type=int, default=0)
    p.add_argument("--tl", type=int, default=0)
    p.add_argument("--b3", type=int, default=1)
    p.add_argument("--w0", type=int, default=350)
    p.add_argument("--wst", type=int, default=0)
    p.add_argument("--pfc", type=int, default=0)
    p.add_argument("--D", type=int, default=7)
    p.add_argument("--sc", type=int, default=1)
    p.add_argument("--fi", type=int, default=2)
    p.add_argument("--probe", default="")
    p.add_argument("--gl", type=int, default=0)
    p.add_argument("--fine", type=int, default=0)
    p.add_argument("--ff", type=int, default=1)
    p.add_argument("--pp", type=int, default=9)
    p.add_argument("--spin", type=int, default=4000000)
    p.add_argument("--noflag", type=int, default=-1)
    p.add_argument("--mm", type=int, default=0)
    p.add_argument("--dly", type=int, default=0)
    p.add_argument("--dlen", type=int, default=8)
    p.add_argument("--pace", type=int, default=-1)
    p.add_argument("--cs", type=int, default=1280)
    p.add_argument("--rs", type=int, default=2048)
    p.add_argument("--tl2", type=int, default=0)
    p.add_argument("--sm", type=int, default=1)
    p.add_argument("--zc", default="11111111")
    p.add_argument("--nwin", type=int, default=12)
    p.add_argument("--n1", type=int, default=0)
    p.add_argument("--w1", type=int, default=500)
    p.add_argument("--cyc", type=int, default=0)
    p.add_argument("--stamps", type=int, default=0)
    return p

if __name__ == "__main__":
    o = parser().parse_args()
    open(o.o, "w").write(build(o))
```

```python
import argparse
from gen import A, vr, srd, stamp, stamp_out, KD, NAME, N, k3

R39 = [[8, 14, 18, 23, 36], [3, 13, 19, 29, 37], [0, 4, 9, 17, 39], [1, 12, 21, 31, 38], [2, 16, 26, 30, 33], [6, 11, 22, 28, 34], [7, 15, 20, 25, 32], [5, 10, 24, 27, 35]]
R40 = [[1, 15, 26, 28, 34], [7, 12, 16, 29, 32], [5, 8, 21, 27, 35], [0, 13, 23, 30, 39], [4, 11, 17, 24, 37], [3, 9, 19, 25, 38], [2, 14, 20, 31, 33], [6, 10, 18, 22, 36]]

CH, CS = 1250, 1280
WS_EPOCH = 0
WS_TABLE = 0x1000
WS_FLAG  = 0x90000
WS_AUX   = 0x100000
WS_EF    = 0x800000
AUX_BYTES, EF_BYTES = 256 * CS * 12, 256 * CS * 32
AUX_W = (CH * 12 + 127) // 128 * 128
EF_W = (CH * 32 + 127) // 128 * 128

CAP, PADN, NWIN = 1536, 60, 12
L_LIST = 0
L_AGG = (CAP + 8 * PADN) * 8
L_CELL = L_AGG
L_DEG = L_CELL + 3072
L_INV = L_DEG + 512
L_CNT = L_INV + 256
L_REC = L_CELL + 4096
L_WB = L_REC + CAP * 4
L_EF = L_WB + 36864
L_T = L_EF + CAP * 32
L_TBL = L_T + CAP * 32
L_CG = L_TBL + 1024
L_ZERO = L_CG + 1024
LDS = L_ZERO + 16
AGS = 288
assert L_AGG + 160 * AGS <= L_EF and L_EF < 65536 and LDS <= 163840
L_HIST, L_BASE, L_ID, L_WF = 0, 1024, 2048, 8192
L_AUX, L_RAW = L_EF, L_T
XB, XM = 512, 0xfffffe00
SDW = "dst_sel:DWORD dst_unused:UNUSED_PAD"

def scan(a, v, fill=()):
    fill = list(fill)
    for m in ("row_shr:1 row_mask:0xf", "row_shr:2 row_mask:0xf", "row_shr:4 row_mask:0xf", "row_shr:8 row_mask:0xf",
              "row_bcast:15 row_mask:0xa", "row_bcast:31 row_mask:0xc"):
        g = fill.pop(0) if fill else []
        for x in g:
            a(x)
        if len(g) < 2:
            a(f"s_nop {1 - len(g)}")
        a(f"v_add_u32_dpp v{v}, v{v}, v{v} {m} bank_mask:0xf")

def kern(o):
    a = A()
    D, G, FS = o.D, 2, o.fs
    sSRC, sDST, sY, sEFI, sWR, sCG, sWM, sOUT, sWS = 6, 8, 10, 12, 14, 16, 18, 20, 22
    rX, rAUX, rEF, rOUT = 4, 8, 12, 16
    sW, sTOT, sTAG, sPAR, sR0, sCNT, sBASE, sTMP = 24, 25, 26, 27, 28, 29, 30, 31
    sRING = S = 36
    sM = [S + 20, S + 22, S + 24]
    rPA, rPE = S + 12, S + 16
    sT2, sST, sN, sRK = 68, 72, 96, 101
    vLANE16, vLA, vLT, vPW, vPA, vPT = 1, 2, 3, 4, 5, 6
    vWD = [7, 8]
    vIA, vIT, vL = 9, 10, 11
    vTA, vDD, vA = 12, 16, 24
    vSI, vZA, vEA, vEO = 28, 29, 30, 31
    vT = [32, 34]
    vW, vB, vACC = 36, 52, 84
    vZ = vACC + 48
    vX = vZ + 64
    vCG = vX + 32
    NV = vCG + 2
    P, U = vZ, vTA
    def Z(buf, par, s=0): return vZ + 32 * buf + 16 * par + s

    DS_, SR_, YY, QA, RKP, RC, HC, HB, T0 = P, P + 4, P + 8, P + 14, P + 17, P + 20, P + 32, P + 36, P + 40
    TR = vX
    PL = vX + 10
    TA_, TP_, vFA = vX + 16, vX + 17, vX + 18
    C = P + 56
    vRA, vRB = P + 62, P + 63
    a("s_load_dwordx16 s[4:19], s[0:1], 0\ns_load_dwordx2 s[22:23], s[0:1], 80\ns_load_dwordx2 s[20:21], s[0:1], 64")
    stamp(a, o, 0, sST)
    a("s_cmp_ge_u32 s2, 256\ns_cbranch_scc1 L_end")
    a(f"v_mul_u32_u24 v{T0}, 3, v0\ns_mul_i32 s3, s2, {CH}\nv_min_u32 v{T0}, {CH-3}, v{T0}\nv_add_lshl_u32 v{T0+1}, v{T0}, s3, 2")
    a(f"v_lshrrev_b32 v{U}, 6, v0\nv_and_b32 v{U+1}, 255, v0\nv_lshlrev_b32 v{U+1}, 2, v{U+1}\nv_mov_b32 v{U+4}, 0")
    a(f"v_readfirstlane_b32 s{sW}, v{U}\nds_write_b32 v{U+1}, v{U+4} offset:{L_HIST}\nv_lshlrev_b32 v{T0+2}, 1, v{T0+1}")
    a("s_waitcnt lgkmcnt(0)")
    a(f"global_load_dwordx3 v[{DS_}:{DS_+2}], v{T0+1}, s[{sDST}:{sDST+1}]")
    a(f"s_load_dword s{sTAG}, s[{sWS}:{sWS+1}], {WS_EPOCH}\ns_barrier")
    a(f"global_load_dwordx3 v[{SR_}:{SR_+2}], v{T0+1}, s[{sSRC}:{sSRC+1}]")
    a(f"global_load_dwordx4 v[{YY}:{YY+3}], v{T0+2}, s[{sY}:{sY+1}]\nglobal_load_dwordx2 v[{YY+4}:{YY+5}], v{T0+2}, s[{sY}:{sY+1}] offset:16")
    a(f"v_lshlrev_b32 v{C}, 4, v0\nv_and_b32 v{vL}, 63, v0\ns_lshl_b32 s{sBASE}, s{sW}, 10\ns_lshl_b32 s3, s3, 5\ns_add_u32 s{sEFI}, s{sEFI}, s3\ns_addc_u32 s{sEFI+1}, s{sEFI+1}, 0")
    for j in range(1, 6):
        a(f"v_add_u32 v{C+j}, {8192*j}, v{C}")
    a(f"v_min_u32 v{T0+3}, {CH*32-16}, v{C+4}\nv_lshlrev_b32 v{vLANE16}, 4, v{vL}\ns_barrier")
    nd = [0]
    def dma(n):
        for _ in range(n):
            j = nd[0]; nd[0] += 1
            if j < 5:
                a(f"s_add_u32 m0, s{sBASE}, {L_RAW + 8192*j}\ns_nop 0\nglobal_load_lds_dwordx4 v{C+j if j < 4 else T0+3}, s[{sEFI}:{sEFI+1}]")
            elif j < 9:
                a(f"s_add_u32 m0, s{sBASE}, {L_WB + 8192*(j-5)}\ns_nop 0\nglobal_load_lds_dwordx4 v{C+j-5}, s[{sWM}:{sWM+1}]")
            else:
                a(f"s_add_u32 s{sT2+2}, s{sBASE}, {L_WB + 32768}\nv_min_u32 v{T0+13}, 112, v{vLANE16}\ns_cmp_lt_u32 s{sW}, 4\ns_cselect_b64 vcc, -1, 0")
                a(f"s_cselect_b32 m0, s{sT2+2}, {L_CG}\ns_cselect_b64 s[{sT2}:{sT2+1}], s[{sWR}:{sWR+1}], s[{sCG}:{sCG+1}]\nv_cndmask_b32 v{T0+13}, v{T0+13}, v{C}, vcc")
                a(f"global_load_lds_dwordx4 v{T0+13}, s[{sT2}:{sT2+1}]")
    PD = [int(c) for c in o.pd]; assert sum(PD) == 5 and len(PD) == 2
    dma(PD[0])
    a(f"s_cmp_eq_u32 s{sW}, 7\ns_cbranch_scc0 L_nocpf\ns_cmp_lt_u32 s2, 8\ns_cbranch_scc0 L_nocpf")
    a(f"s_getpc_b64 s[{sT2}:{sT2+1}]\nL_pc:\nv_lshlrev_b32 v{U+6}, 7, v{vL}\nv_mov_b32 v{U+7}, 0\nv_lshl_add_u64 v[{U+8}:{U+9}], v[{U+6}:{U+7}], 0, s[{sT2}:{sT2+1}]")
    a(f"global_load_dword v{vX+8}, v[{U+8}:{U+9}], off\nv_min_u32 v{U+6}, L_end-L_pc-8192, v{U+6}\nv_add_u32 v{U+6}, 8192, v{U+6}")
    a(f"v_lshl_add_u64 v[{U+8}:{U+9}], v[{U+6}:{U+7}], 0, s[{sT2}:{sT2+1}]\nglobal_load_dword v{vX+9}, v[{U+8}:{U+9}], off\nL_nocpf:")
    def init_lds():
        a(f"v_lshlrev_b32 v{vRA}, 2, v0\nv_lshlrev_b32 v{U+2}, 3, v0\nv_mov_b32 v{U+4}, 0\nv_mov_b32 v{U+5}, 0\nv_mov_b32 v{U+3}, 0x00300000")
        a(f"ds_write_b64 v{U+2}, v[{U+4}:{U+5}] offset:{L_CELL}")
        for k in range(3):
            a(f"ds_write_b32 v{vRA}, v{U+3} offset:{L_REC + 2048*k}")
        a(f"v_lshrrev_b32 v{vRB}, 1, v0\nv_lshlrev_b32 v{vRB}, 2, v{vRB}")
    init_lds()
    a(f"v_cmp_gt_u32 vcc, {CH//3}, v0\ns_mov_b64 s[{S}:{S+1}], vcc\nv_cmp_gt_u32 vcc, {CH//3+1}, v0\ns_mov_b64 s[{S+2}:{S+3}], vcc")
    a(f"v_mov_b32 v{U}, 1\ns_movk_i32 s{S+4}, {N // 8}\ns_mov_b32 s{S+5}, {L_AUX}\ns_lshr_b32 s{sPAR}, s{sW}, 2\ns_mov_b32 s{sR0}, 0")
    a(f"s_waitcnt vmcnt({3 + PD[0]})")
    stamp(a, o, 1, sST)
    a(f"s_mov_b64 exec, s[{S+2}:{S+3}]")
    for j in (1, 2, 0):
        if j == 0: a(f"s_mov_b64 exec, s[{S}:{S+1}]")
        a(f"v_and_b32 v{RC+j}, 7, v{DS_+j}\nv_bfe_u32 v{RKP+j}, v{DS_+j}, 3, 5\nv_lshl_add_u32 v{QA+j}, v{RC+j}, 5, v{RKP+j}\nv_lshlrev_b32 v{QA+j}, 2, v{QA+j}")
        a(f"ds_add_rtn_u32 v{RKP+j}, v{QA+j}, v{U} offset:{L_HIST}")
    a("s_mov_b64 exec, -1")
    dma(PD[1])
    a("s_waitcnt lgkmcnt(0)\ns_barrier")
    a(f"ds_read_b128 v[{HC}:{HC+3}], v{vLANE16} offset:{L_HIST}")
    fill = []
    for j in range(3):
        fill += [f"v_lshrrev_b32 v{DS_+j}, 8, v{DS_+j}", f"v_lshlrev_b32 v{DS_+j}, 2, v{DS_+j}", f"v_add_lshl_u32 v{T0+5+j}, v{T0}, {j}, 5"]
    fill += [f"s_lshl_b32 s{sTMP}, s2, 11", f"s_add_u32 s{sTMP}, s{sTMP}, {WS_TABLE}", f"v_add_u32 v{TA_}, s{sTMP}, v{vLANE16}"]
    a(f"s_mul_i32 s3, s2, {CS}\ns_add_u32 s{sTAG}, s{sTAG}, 1\ns_waitcnt lgkmcnt(0)")
    a(f"v_add_u32 v{T0+8}, v{HC}, v{HC+1}\nv_add3_u32 v{T0+8}, v{T0+8}, v{HC+2}, v{HC+3}\nv_mov_b32 v{T0+9}, v{T0+8}")
    scan(a, T0 + 9, [fill[2*i: 2*i + 2] for i in range(6)])
    a(f"v_sub_u32 v{HB}, v{T0+9}, v{T0+8}\nv_add_u32 v{HB+1}, v{HB}, v{HC}\nv_add_u32 v{HB+2}, v{HB+1}, v{HC+1}\nv_add_u32 v{HB+3}, v{HB+2}, v{HC+2}")
    a(f"ds_write_b128 v{vLANE16}, v[{HB}:{HB+3}] offset:{L_BASE}")
    a(f"s_mov_b64 exec, s[{S+2}:{S+3}]")
    for j in (1, 2, 0):
        if j == 0: a(f"s_mov_b64 exec, s[{S}:{S+1}]")
        a(f"ds_read_b32 v{QA+j}, v{QA+j} offset:{L_BASE}")
    a("s_mov_b64 exec, -1")
    def row():
        a(f"s_cmp_eq_u32 s{sW}, 7\ns_cbranch_scc0 L_norow\ns_mul_i32 s{sTMP}, s2, {CS}")
        for j in range(4):
            a(f"v_add_u32 v{HB+j}, s{sTMP}, v{HB+j}\nv_lshl_add_u32 v{TR+2*j}, v{HC+j}, 19, v{HB+j}\nv_mov_b32 v{TR+2*j+1}, s{sTAG}")
        a(f"global_store_dwordx4 v{TA_}, v[{TR}:{TR+3}], s[{sWS}:{sWS+1}] sc0 sc1\nglobal_store_dwordx4 v{TA_}, v[{TR+4}:{TR+7}], s[{sWS}:{sWS+1}] offset:1024 sc0 sc1\nL_norow:")
    a("s_waitcnt vmcnt(5)")
    for j in range(3):
        a(f"v_mad_u32_u24 v{RC+j}, v{RC+j}, s{S+4}, v{SR_+j}\nv_lshl_add_u32 v{DS_+j}, v{SR_+j}, 16, v{DS_+j}\nv_subrev_u32 v{RC+4+j}, {N}, v{RC+j}\nv_min_u32 v{RC+j}, v{RC+j}, v{RC+4+j}")
        a(f"v_add_u32 v{RC+j}, {o.w0}, v{RC+j}\nv_mul_u32_u24 v{RC+j}, {(NWIN << 17) // (N + o.w0)}, v{RC+j}\nv_lshrrev_b32 v{RC+j}, 17, v{RC+j}\nv_lshl_add_u32 v{RC+j}, v{RC+j}, 8, v{DS_+j}")
    a(f"s_mov_b64 exec, s[{S+2}:{S+3}]\ns_waitcnt lgkmcnt(0)")
    for j in (1, 2, 0):
        if j == 0: a(f"s_mov_b64 exec, s[{S}:{S+1}]")
        a(f"v_add_lshl_u32 v{QA+j}, v{QA+j}, v{RKP+j}, 1\nv_mad_u32_u24 v{T0+10+j}, v{QA+j}, 6, s{S+5}")
        a(f"ds_write_b16 v{QA+j}, v{T0+5+j} offset:{L_ID}\nds_write2_b32 v{T0+10+j}, v{YY+2*j}, v{YY+2*j+1} offset1:1\nds_write_b32 v{T0+10+j}, v{RC+j} offset:8")
    a("s_mov_b64 exec, -1")
    def polladdr():
        a(f"s_and_b32 s{sT2}, s2, 7\ns_lshl_b32 s{sT2}, s{sT2}, 7\ns_bfe_u32 s{sTMP}, s2, {(3 << 16) | 5}\ns_lshl_b32 s{sTMP}, s{sTMP}, 4\ns_add_u32 s{sT2}, s{sT2}, s{sTMP}")
        a(f"s_and_b32 s{sTMP}, s2, 8\ns_add_u32 s{sT2}, s{sT2}, s{sTMP}\ns_and_b32 s{sTMP}, s2, 16\ns_lshl_b32 s{sTMP}, s{sTMP}, 6\ns_add_u32 s{sT2}, s{sT2}, s{sTMP}\ns_add_u32 s{sT2}, s{sT2}, {WS_TABLE}")
        a(f"v_and_b32 v{vFA}, 255, v0\nv_lshl_add_u32 v{TP_}, v{vFA}, 11, s{sT2}\nv_mul_u32_u24 v{vFA}, {FS}, v{vFA}\nv_add_u32 v{vFA}, {WS_FLAG}, v{vFA}")
    POLL = f"global_load_dwordx2 v[{PL}:{PL+1}], v{TP_}, s[{sWS}:{sWS+1}] sc1"
    FPOLL = f"global_load_dword v{PL}, v{vFA}, s[{sWS}:{sWS+1}] sc1"
    def poll0():
        a(f"s_cmp_eq_u32 s{sPAR}, 0\ns_cbranch_scc0 L_np0\n{POLL}\nL_np0:")
    def pollwait(ny):
        a(f"s_cmp_eq_u32 s{sPAR}, 0\ns_cbranch_scc0 L_polled\ns_mov_b32 s3, 0\ns_waitcnt vmcnt({ny})\ns_branch L_poll1")
        a(f"L_poll:\n{POLL}\ns_add_u32 s3, s3, 1\ns_waitcnt vmcnt(0)\nL_poll1:")
        a(f"v_cmpx_ne_u32 vcc, s{sTAG}, v{PL+1}\ns_cbranch_execz L_pok\ns_cmp_lt_u32 s3, {o.spin}\ns_cbranch_scc1 L_poll\nv_mov_b32 v{PL}, 0")
        a(f"L_pok:\ns_mov_b64 exec, -1\nv_add_u32 v{U+2}, {L_TBL}, v{vRA}\nds_write_b32 v{U+2}, v{PL}\nL_polled:")
    dma(5)
    a(f"s_mul_i32 s{sTMP}, s3, 12\ns_add_u32 s{sTMP}, s{sTMP}, {WS_AUX}\ns_add_u32 s{rPA}, s{sWS}, s{sTMP}\ns_addc_u32 s{rPA+1}, s{sWS+1}, 0\ns_mov_b32 s{rPA+2}, {AUX_W}\ns_mov_b32 s{rPA+3}, 0x00020000")
    a(f"s_lshl_b32 s3, s3, 5\ns_add_u32 s{sTMP}, s3, {WS_EF}\ns_add_u32 s{rPE}, s{sWS}, s{sTMP}\ns_addc_u32 s{rPE+1}, s{sWS+1}, 0\ns_mov_b32 s{rPE+2}, {EF_W}\ns_mov_b32 s{rPE+3}, 0x00020000")
    a(f"v_and_b32 v{T0}, -2, v0\nv_and_b32 v{T0+1}, 16, v{C}\nv_add_u32 v{T0+1}, {L_RAW}, v{T0+1}")
    a("s_waitcnt lgkmcnt(0)\ns_barrier")
    if not o.cyc: stamp(a, o, 2, sST)
    for k in range(2):
        a(f"ds_read_b128 v[{P+4*k}:{P+4*k+3}], v{C+k} offset:{L_AUX}")
    for j in range(5):
        a(f"ds_read_u16 v{T0+2+j}, v{T0} offset:{L_ID + 512*j}")
    row()
    for k in range(2):
        a(f"s_waitcnt lgkmcnt({6-k})\nbuffer_store_dwordx4 v[{P+4*k}:{P+4*k+3}], v{C+k}, s[{rPA}:{rPA+3}], 0 offen sc0 sc1")
    a("s_waitcnt lgkmcnt(0)")
    for j in range(5):
        if j == 4: a(f"v_min_u32 v{T0+2+j}, {CH*32-32}, v{T0+2+j}\nv_and_b32 v{T0+2+j}, -16, v{T0+2+j}")
        a(f"v_add_u32 v{T0+2+j}, v{T0+2+j}, v{T0+1}")
    for r in range(0, 48, 2):
        a(f"v_mov_b64 v[{vACC+r}:{vACC+r+1}], 0")
    a(f"v_bfe_u32 v{vSI}, v{vL}, 2, 1\nv_mul_u32_u24 v{vSI}, 0xaaaa, v{vSI}\nv_add_u32 v{vSI}, 0x4444, v{vSI}\nv_mov_b32 v{vZA}, {L_ZERO}")
    a(f"ds_write_b128 v{vZA}, v[{vACC}:{vACC+3}]")
    a(f"v_lshrrev_b32 v{vLA}, 5, v{vL}\nv_lshlrev_b32 v{vLA}, 4, v{vLA}")
    a(f"v_and_b32 v{vLT}, 3, v{vL}\nv_lshlrev_b32 v{vLT}, 3, v{vLT}\nv_add_u32 v{vLT}, {L_T}, v{vLT}")
    a(f"s_sub_u32 s{rX}, s{rX}, {XB}\ns_subb_u32 s{rX+1}, s{rX+1}, 0\ns_mov_b32 s{rX+2}, {N*1024 + XB}\ns_mov_b32 s{rX+3}, 0x00020000")
    srd(a, rAUX, sWS, AUX_BYTES, WS_AUX)
    a(f"s_mov_b32 s{sRK}, 0\ns_cmp_lt_u32 s2, 16\ns_cbranch_scc1 L_r40")
    for nm, R in (("39", R39), ("40", R40)):
        if nm == "40": a("s_branch L_rd\nL_r40:")
        for w, r in enumerate(R):
            a(f"s_cmp_eq_u32 s{sW}, {w}\ns_cselect_b32 s{sRK}, {hex(sum(x << (6*i) for i, x in enumerate(r)))}, s{sRK}")
    a("L_rd:")
    polladdr()
    a(f"s_mul_i32 s3, s2, {FS}\ns_add_u32 s3, s3, {WS_FLAG}\nv_lshl_add_u32 v{TA_}, v{vL}, 2, s3\nv_mov_b32 v{TR+1}, s{sTAG}")
    a("s_waitcnt vmcnt(7)\ns_barrier")
    stamp(a, o, 3, sST)
    for j in range(5):
        a(f"ds_read_b128 v[{P+12+4*j}:{P+15+4*j}], v{T0+2+j}")
    for j in range(5):
        a(f"s_waitcnt lgkmcnt({4-j})\nbuffer_store_dwordx4 v[{P+12+4*j}:{P+15+4*j}], v{C+j}, s[{rPE}:{rPE+3}], 0 offen sc0 sc1")
    srd(a, rEF, sWS, EF_BYTES, WS_EF)
    srd(a, rOUT, sOUT, N * 1024)

    TB = P + 8
    RQ = P + 8
    DL = P + 20
    RK = P + 0
    C12 = P + 3
    LW = P + 26
    TQ = P + 32
    def fpoll():
        a(f"s_cmp_eq_u32 s{sPAR}, 0\ns_cbranch_scc1 L_npe\n{FPOLL}\nL_npe:")
    def gap():
        a("s_waitcnt vmcnt(0) lgkmcnt(0)\ns_barrier")
        stamp(a, o, 4, sST)
        a(f"s_cmp_eq_u32 s{sW}, 0\ns_cbranch_scc0 L_noflag")
        if o.noflag >= 0: a(f"s_cmp_eq_u32 s2, {o.noflag}\ns_cbranch_scc1 L_noflag")
        a(f"s_mov_b64 exec, {hex((1 << (FS // 4)) - 1)}\nglobal_store_dword v{TA_}, v{TR+1}, s[{sWS}:{sWS+1}] sc0 sc1\ns_mov_b64 exec, -1\nL_noflag:\ns_barrier")
        poll0()
        if o.pfa:
            per = o.pfa * 8 // 32
            a(f"s_cmp_eq_u32 s{sPAR}, 0\ns_cbranch_scc1 L_pfa")
            a(f"s_sub_u32 s3, 0, s2\ns_and_b32 s3, s3, 7\ns_mul_i32 s3, s3, {N // 8 * 1024}\ns_lshr_b32 s{sTMP}, s2, 3\ns_mul_i32 s{sTMP}, s{sTMP}, {per*128}\ns_add_u32 s3, s3, s{sTMP}\ns_add_u32 s3, s3, {XB}")
            a(f"v_and_b32 v{vX+12}, 255, v0\nv_cmp_gt_u32 vcc, {per}, v{vX+12}\nv_lshlrev_b32 v{vX+12}, 7, v{vX+12}\nv_mov_b32 v{vX+13}, 0x7fffff00\nv_cndmask_b32 v{vX+12}, v{vX+13}, v{vX+12}, vcc")
            a(f"buffer_load_dword v{vX+14}, v{vX+12}, s[{rX}:{rX+3}], s3 offen\nL_pfa:")
        F, V = TQ, U
        a(f"v_lshrrev_b32 v{V}, 5, v{vL}\nv_and_b32 v{V+1}, 31, v{vL}\nv_lshlrev_b32 v{V+1}, 2, v{V+1}\nv_lshl_add_u32 v{V}, v{V}, 10, v{V+1}")
        a(f"s_and_b32 s3, s{sW}, 2\ns_lshl_b32 s{sTMP}, s3, 8\ns_lshl_b32 s{sT2}, s{sPAR}, 11\ns_add_u32 s{sTMP}, s{sTMP}, s{sT2}\ns_and_b32 s3, s{sW}, 1\ns_lshl_b32 s3, s3, 7\ns_add_u32 s{sTMP}, s{sTMP}, s3")
        a(f"s_and_b32 s3, s{sW}, 3\nv_add_u32 v{V}, s{sTMP}, v{V}")
        a(f"ds_read_b32 v{F}, v{V} offset:{L_WB + 32768}\nds_read_b32 v{F+1}, v{V} offset:{L_WB + 32768 + 256}")
        a(f"s_lshl_b32 s3, s3, 2\ns_lshl_b32 s{sTMP}, s{sPAR}, 10\ns_add_u32 s3, s3, s{sTMP}\nv_add_u32 v{V+4}, s3, v{vLANE16}")
        a(f"v_and_b32 v{V+2}, 3, v{vL}\nv_bfe_u32 v{V+3}, v{vL}, 2, 2\nv_lshlrev_b32 v{V+3}, 1, v{V+3}\nv_lshl_add_u32 v{V+2}, v{V+2}, 5, v{V+3}\nv_add_u32 v{V+2}, {L_CG}, v{V+2}")
        a(f"s_mov_b32 s{sT2}, 0xbfb8aa3b\ns_mov_b32 s{sT2+1}, s{sT2}")
        for f in range(4):
            a(f"ds_read_u16 v{V+6+f}, v{V+2} offset:{8*f}")
        a("s_waitcnt lgkmcnt(4)")
        a(f"v_lshlrev_b32 v{V+10}, 16, v{F}\nv_lshlrev_b32 v{V+11}, 16, v{F+1}\nv_and_b32 v{F}, 0xffff0000, v{F}\nv_and_b32 v{F+1}, 0xffff0000, v{F+1}")
        a(f"v_pk_mul_f32 v[{V+10}:{V+11}], v[{V+10}:{V+11}], s[{sT2}:{sT2+1}]\nv_pk_mul_f32 v[{F}:{F+1}], v[{F}:{F+1}], s[{sT2}:{sT2+1}]")
        a(f"v_cvt_pk_bf16_f32 v{F+2}, v{V+10}, v{V+11}\nv_cvt_pk_bf16_f32 v{F+3}, v{F}, v{F+1}")
        a(f"ds_write_b32 v{V+4}, v{F+2} offset:{L_WF}\nds_write_b32 v{V+4}, v{F+3} offset:{L_WF + 2048}")
        a(f"s_waitcnt lgkmcnt(0)\nv_lshl_or_b32 v{vCG}, v{V+7}, 16, v{V+6}\nv_lshl_or_b32 v{vCG+1}, v{V+9}, 16, v{V+8}")
        F += 4
        a(f"s_mov_b32 s{sT2+2}, 0x05040100\ns_mov_b32 s{sT2+3}, 0x07060302")
        a(f"s_and_b32 s3, s{sW}, 3\ns_lshl_b32 s3, s3, 6\nv_lshrrev_b32 v{V+4}, 4, v{vL}\nv_and_b32 v{V+5}, 15, v{vL}\nv_lshl_add_u32 v{V+5}, v{V+5}, 2, s3\nv_lshl_add_u32 v{V+4}, v{V+4}, 11, v{V+5}")
        def brd(ks):
            for e in range(8):
                a(f"ds_read_b32 v{F+8*(ks&1)+e}, v{V+4} offset:{L_WB + 8192*ks + 256*e}")
        brd(0)
        for ks in range(4):
            if ks < 3:
                a("s_waitcnt lgkmcnt(7)")
                brd(ks + 1)
            a(f"s_waitcnt lgkmcnt({8 if ks < 3 else 0})")
            for ep in range(4):
                x0 = F + 8 * (ks & 1) + 2 * ep
                a(f"v_perm_b32 v{vB+8*ks+ep}, v{x0+1}, v{x0}, s{sT2+2}\nv_perm_b32 v{vB+8*ks+4+ep}, v{x0+1}, v{x0}, s{sT2+3}")
    def gate():
        a(f"s_cmp_eq_u32 s{sPAR}, 0\ns_cbranch_scc1 L_fok\ns_cmp_lg_u32 s{sR0}, 0\ns_cbranch_scc1 L_fok\ns_mov_b32 s3, 0\ns_branch L_fp1")
        a(f"L_fp:\n{FPOLL}\ns_add_u32 s3, s3, 1\nL_fp1:\ns_waitcnt vmcnt(0)")
        a(f"v_cmpx_ne_u32 vcc, s{sTAG}, v{PL}\ns_cbranch_execz L_fok\ns_cmp_lt_u32 s3, {o.spin}\ns_cbranch_scc1 L_fp\ns_branch L_giveup")
        a("L_fok:\ns_mov_b64 exec, -1")
    gap()
    pollwait(0)
    a("L_round:\ns_waitcnt lgkmcnt(0)\ns_barrier")
    stamp(a, o, 5, sST)
    a(f"v_add_u32 v{U+3}, {L_TBL}, v{vLANE16}\nds_read_b128 v[{TB}:{TB+3}], v{U+3}")
    a(f"s_cmp_lg_u32 s{sR0}, 0\ns_cbranch_scc1 L_npe")
    fpoll()
    a(f"s_and_b32 s{sTMP}, s{sW}, 3\nv_mov_b32 v{TB+8}, 0")
    a(f"v_mul_u32_u24 v{C12}, 12, v0\nv_add_u32 v{C12+1}, {512*12}, v{C12}\nv_add_u32 v{C12+2}, {1024*12}, v{C12}")
    a("s_waitcnt lgkmcnt(0)")
    for j in range(4):
        a(f"v_lshrrev_b32 v{TB+4+j}, 19, v{TB+j}")
    a(f"v_add_u32 v{TB+10}, v{TB+4}, v{TB+5}\nv_add3_u32 v{U}, v{TB+10}, v{TB+6}, v{TB+7}")
    scan(a, U, [[f"v_add_u32 v{U+1}, s{sR0}, v{U}", f"v_mov_b32 v{TB+9}, v{TB+4}"],
                [f"v_add_u32 v{TB+11}, v{TB+10}, v{TB+6}", f"s_set_gpr_idx_on s{sTMP}, gpr_idx(SRC0)", f"v_mov_b32 v{U+2}, v{TB}", f"v_mov_b32 v{U+3}, v{TB+4}", f"v_mov_b32 v{U+4}, v{TB+8}", "s_set_gpr_idx_off"],
                [f"v_and_b32 v{U+2}, 0x7ffff, v{U+2}", f"v_sub_u32 v{U+4}, v{U+4}, v{U+1}"],
                [f"v_subrev_u32 v{U+5}, s{sPAR}, v{U+3}", f"s_mov_b32 s{sTMP}, s{sPAR}"]])
    a(f"v_add_u32 v{U+4}, v{U+4}, v{U}\nv_readlane_b32 s{sTOT}, v{U}, 63\nv_sub_u32 v{U+2}, v{U+2}, v{U+4}\nv_add_lshl_u32 v{U+6}, v{U+4}, s{sPAR}, 2")
    a(f"s_cmp_gt_u32 s{sTOT}, {CAP}\ns_cbranch_scc1 L_exp")
    NX = 6
    for i in range(NX):
        a(f"v_cmpx_lt_i32 vcc, {2*i}, v{U+5}\nds_write_b32 v{U+6}, v{U+2} offset:{L_REC + 8*i}")
    a(f"v_cmpx_lt_i32 vcc, {2*NX}, v{U+5}\ns_cbranch_execz L_expd\ns_add_u32 s{sTMP}, s{sTMP}, {2*NX}")
    a("L_exp:")
    a(f"s_mov_b64 exec, -1\nv_cmp_lt_u32 vcc, s{sTMP}, v{U+3}\ns_cbranch_vccz L_expd")
    a(f"v_add_u32 v{U+7}, s{sTMP}, v{U+4}\ns_movk_i32 s3, {CAP}\nv_cmp_gt_u32 s[{sT2}:{sT2+1}], s3, v{U+7}\nv_lshlrev_b32 v{U+7}, 2, v{U+7}\ns_and_b64 exec, vcc, s[{sT2}:{sT2+1}]")
    a(f"ds_write_b32 v{U+7}, v{U+2} offset:{L_REC}\ns_add_u32 s{sTMP}, s{sTMP}, 2\ns_branch L_exp")
    a("L_expd:\ns_mov_b64 exec, -1")
    gate()
    a("s_waitcnt lgkmcnt(0)\ns_barrier")
    for k in range(3):
        a(f"ds_read_b32 v{RK+k}, v{vRA} offset:{L_REC + 2048*k}")
    for j in range(6):
        a(f"ds_read_b32 v{DL+j}, v{vRB} offset:{L_REC + 1024*j}")
    for k in range(3):
        a(f"s_waitcnt lgkmcnt({8-k})\nv_mad_i32_i24 v{RK+k}, v{RK+k}, 12, v{C12+k}")
        a(f"buffer_load_dwordx3 v[{RQ+4*k}:{RQ+4*k+2}], v{RK+k}, s[{rAUX}:{rAUX+3}], 0 offen sc1")
    a("s_waitcnt lgkmcnt(0)")
    for j in range(6):
        a(f"v_lshl_add_u32 v{DL+j}, v{DL+j}, 5, v{C+j}")
    a("s_barrier")
    nef = [0]
    def efdma(n):
        for _ in range(n):
            j = nef[0]; nef[0] += 1
            a(f"s_add_u32 m0, s{sBASE}, {L_EF + 8192*j}\ns_nop 0\nbuffer_load_dwordx4 v{DL+j}, s[{rEF}:{rEF+3}], 0 offen sc1 lds")
    EFS = [int(c) for c in o.efs]; assert sum(EFS) == 6 and len(EFS) == 5
    efdma(EFS[0])
    a(f"s_sub_u32 s{sCNT}, s{sTOT}, s{sR0}\ns_min_u32 s{sCNT}, s{sCNT}, {CAP}\ns_lshl_b32 s3, s{sCNT}, 4")
    for k in range(3):
        a(f"v_cmp_gt_u32 s[{sM[k]}:{sM[k]+1}], s3, v{C+k}\nv_lshlrev_b32 v{LW+2*k+1}, 1, v{C+k}\nv_mov_b32 v{RQ+4*k+3}, 0")
    a(f"v_and_b32 v{vPW}, 15, v{vL}\nv_lshrrev_b32 v{U+1}, 4, v{vL}")
    a(f"s_mul_i32 s3, s{sPAR}, {80*AGS}\nv_mul_u32_u24 v{vEA}, {AGS}, v{vPW}\nv_lshl_add_u32 v{vEA}, v{U+1}, 4, v{vEA}\nv_add_u32 v{vEA}, s3, v{vEA}")
    a(f"s_mul_i32 s{sT2}, s{sPAR}, {20*256}\ns_add_u32 s{sT2}, s{sT2}, s2\ns_lshl_b32 s{sT2}, s{sT2}, 10\ns_and_b32 s3, s{sW}, 3\ns_lshl_b32 s3, s3, 8\ns_add_u32 s{sT2}, s{sT2}, s3")
    a(f"v_lshl_add_u32 v{vEO}, v{U+1}, 18, s{sT2}\nv_lshl_add_u32 v{vEO}, v{vPW}, 4, v{vEO}")
    a(f"v_lshlrev_b32 v{vPW}, 3, v{vPW}\nv_bfe_u32 v{vPA}, v{vL}, 3, 2\nv_and_b32 v{U}, 3, v{vL}\nv_lshl_add_u32 v{vPA}, v{vPA}, 2, v{U}\nv_lshlrev_b32 v{vPA}, 3, v{vPA}")
    a(f"v_lshrrev_b32 v{vPT}, 2, v{vL}\nv_lshlrev_b32 v{vPT}, 3, v{vPT}")
    a(f"v_mul_u32_u24 v{U+4}, 52, v{vL}\nv_lshrrev_b32 v{U+4}, 8, v{U+4}\nv_mul_u32_u24 v{U+5}, 5, v{U+4}\nv_sub_u32 v{U+5}, v{vL}, v{U+5}")
    a(f"v_mul_u32_u24 v{U+3}, 6, v{U+5}\nv_bfe_u32 v{U+3}, s{sRK}, v{U+3}, 6\nv_lshlrev_b32 v{U+3}, 2, v{U+3}\nv_lshlrev_b32 v{U+4}, 8, v{U+4}\nv_add_lshl_u32 v{U+5}, v{U+5}, {XB // 8}, 19")
    a(f"s_mul_i32 s3, s{sW}, 5\nv_lshlrev_b32 v{U+6}, 2, v{vL}\nv_add_u32 v{U+9}, s3, v{vL}\nv_lshlrev_b32 v{U+7}, 2, v{U+9}")
    a(f"v_cmp_gt_u32 vcc, 40, v{vL}\nv_add_u32 v{U+8}, 1, v{vL}\nv_add_u32 v{U+9}, 1, v{U+9}\nv_cndmask_b32 v{U+8}, 0, v{U+8}, vcc")
    a(f"s_cmp_gt_u32 s{sTOT}, {CAP}\ns_cselect_b32 s{sT2+1}, 0, 8\nv_mov_b32 v{U+10}, 8")
    a(f"s_cmp_lg_u32 s{sR0}, 0\ns_cbranch_scc1 L_nofr")
    for q in range(4):
        a(f"ds_read_b128 {vr(vW+4*q,4)}, v{vLANE16} offset:{L_WF + 1024*q}")
    a("L_nofr:")
    for k in range(3):
        a(f"s_waitcnt vmcnt({2 - k + EFS[0]})")
        if k == 0: stamp(a, o, 6, sST)
        a(f"s_mov_b64 exec, s[{sM[k]}:{sM[k]+1}]\nv_and_b32 v{U+k}, 0xff, v{RQ+4*k+2}\nv_and_b32 v{RQ+4*k+3}, 0xffff, v{RQ+4*k+2}")
        a(f"ds_add_u32 v{U+k}, v{U+10} offset:{L_DEG}\nds_add_rtn_u32 v{RK+k}, v{RQ+4*k+3}, v{U+10} offset:{L_CELL}")
    a("s_mov_b64 exec, -1")
    def xoff(k):
        return f"v_lshlrev_b32_sdwa v{RQ+4*k+2}, 10, v{RQ+4*k+2} {SDW} src0_sel:DWORD src1_sel:WORD_1"
    def tcomp(k):
        for oo in range(4):
            a(f"v_mfma_f32_4x4x4_16b_bf16 {vr(TQ+4*oo,4)}, {vr(vCG,2)}, {vr(RQ+4*k,2)}, 0 cbsz:4 abid:{oo}")
        a(f"v_add_u32 v{U+11}, {L_T}, v{LW+2*k+1}")
        a(xoff(k) if k < 2 else "s_nop 0")
        for q in range(8):
            a(f"v_cvt_pk_bf16_f32 v{TQ+16+q}, v{TQ+2*q}, v{TQ+2*q+1}")
    def twrite():
        a(f"ds_write_b128 v{U+11}, v[{TQ+16}:{TQ+19}]\nds_write_b128 v{U+11}, v[{TQ+20}:{TQ+23}] offset:16")
    efdma(EFS[1])
    tcomp(0)
    a("s_waitcnt lgkmcnt(0)\ns_barrier")
    a(f"ds_read_b32 v{U}, v{U+6} offset:{L_DEG}\nds_read_b32 v{U+1}, v{U+7} offset:{L_DEG}")
    twrite()
    a(xoff(2))
    a(f"s_waitcnt lgkmcnt(2)\nv_mad_u32_u24 v{U+9}, v{U+1}, s{sT2+1}, v{U+9}\nv_mad_u32_u24 v{U+8}, v{U}, s{sT2+1}, v{U+8}")
    for j in range(5):
        a(f"v_readlane_b32 s{sN+j}, v{U+9}, {j}")
    a(f"v_lshl_add_u32 v{U+7}, v{U+1}, 16, v{U+7}")
    for j in range(5):
        a(f"v_cmp_lt_u32 s[{S+2*j}:{S+2*j+1}], s{sN+j}, v{U+8}")
    for j in range(5):
        a(f"s_bcnt1_i32_b64 s{sN+j}, s[{S+2*j}:{S+2*j+1}]\nv_writelane_b32 v{U}, s{sN+j}, {j}")
    a(f"s_mov_b64 exec, 31\nv_lshlrev_b32 v{U}, 2, v{U}\nds_write_b32 v{U}, v{U+7} offset:{L_INV}\ns_mov_b64 exec, -1")
    efdma(EFS[2])
    a("s_waitcnt lgkmcnt(0)\ns_barrier")
    a(f"ds_read_b32 v{U}, v{U+3} offset:{L_INV}")
    tcomp(1)
    a(f"s_waitcnt lgkmcnt(0)\nv_add_u32_sdwa v{U+4}, v{U}, v{U+4} {SDW} src0_sel:WORD_0 src1_sel:DWORD")
    a(f"ds_read_b32 v{U+1}, v{U+4} offset:{L_CELL}")
    for j in range(5):
        a(f"v_readlane_b32 s{sN+j}, v{U}, {j}")
    a(f"s_add_u32 s3, s{sN}, s{sN+1}\ns_add_u32 s3, s3, s{sN+2}\ns_add_u32 s3, s3, s{sN+3}\ns_add_u32 s3, s3, s{sN+4}\ns_lshr_b32 s{sCNT}, s3, 16")
    a(f"s_add_u32 s3, s{sCNT}, {8*PADN}\nv_mov_b32 v{U+2}, s3\nv_mov_b32 v{U+6}, 0\ns_mov_b64 exec, 1\nds_add_rtn_u32 v{U+2}, v{U+6}, v{U+2} offset:{L_CNT}\ns_mov_b64 exec, -1")
    a("s_waitcnt lgkmcnt(1)")
    scan(a, U + 1, [[f"v_sub_u32 v{U+5}, v{U+5}, v{U+1}"], [f"s_bfe_u32 s3, s{sCNT}, {(1 << 16) | 3}", f"s_add_u32 s3, s3, {D}"],
                    [f"v_mov_b32 v{U+8}, {0x7ffffc00 | 40}", f"v_mov_b32 v{U+9}, 0"], [f"v_writelane_b32 v{U+8}, 40, s3"],
                    ["s_waitcnt lgkmcnt(0)", f"v_readfirstlane_b32 s{sT2+3}, v{U+2}"], [f"s_add_u32 s3, s{sT2+3}, s{sCNT}", f"v_lshl_add_u32 v{U+6}, v{vL}, 3, s3"]])
    a(f"s_mov_b32 exec_hi, 0x0fffffff\nv_add3_u32 v{U+1}, v{U+1}, v{U+5}, s{sT2+3}\nds_write_b32 v{U+4}, v{U+1} offset:{L_CELL}")
    a(f"ds_write_b64 v{U+6}, v[{U+8}:{U+9}] offset:{L_LIST}\ns_mov_b64 exec, -1")
    twrite()
    efdma(EFS[3])
    a("s_waitcnt lgkmcnt(2)\ns_barrier")
    for k in range(3):
        a(f"ds_read_b32 v{U+k}, v{RQ+4*k+3} offset:{L_CELL}")
    a(f"v_add_u32 v{vPW}, s{sT2+3}, v{vPW}\nv_add_u32 v{vPA}, s{sT2+3}, v{vPA}\nv_add_u32 v{vPT}, s{sT2+3}, v{vPT}")
    for k in range(3):
        a(f"s_mov_b64 exec, s[{sM[k]}:{sM[k]+1}]\ns_waitcnt lgkmcnt(2)")
        a(f"v_add_u32_sdwa v{RK+k}, v{U+k}, v{RK+k} {SDW} src0_sel:WORD_0 src1_sel:DWORD")
        a(f"v_or_b32_sdwa v{LW+2*k}, v{U+k}, v{RQ+4*k+2} {SDW} src0_sel:WORD_1 src1_sel:DWORD")
        a(f"ds_write_b64 v{RK+k}, v[{LW+2*k}:{LW+2*k+1}] offset:{L_LIST}")
    a("s_mov_b64 exec, -1")
    efdma(EFS[4])
    a("s_waitcnt lgkmcnt(0)\ns_barrier")
    stamp(a, o, 7, sST)
    a(f"ds_read_b32 v{U}, v{vPW}\nds_read_b32 v{vWD[0]}, v{vPW} offset:{8*D}\nds_read_b32 v{vIA}, v{vPA} offset:4\nds_read_b32 v{vIT}, v{vPT} offset:4")
    a(f"s_cmp_eq_u64 s[{sM[2]}:{sM[2]+1}], 0\ns_cbranch_scc1 L_not3")
    tcomp(2)
    twrite()
    a("s_waitcnt lgkmcnt(2)\ns_branch L_t3\nL_not3:\ns_waitcnt lgkmcnt(0)\nL_t3:")
    XS = [int(c) for c in o.xs]; assert sum(XS) == D and len(XS) == 3 and XS[0] < D
    nx = [0]
    def xld(n):
        for _ in range(n):
            k = nx[0]; nx[0] += 1
            t = sT2 + 2 + (k & 1)
            a(f"s_and_b32 s{t}, s{sRING+k}, {XM}\nbuffer_load_dwordx4 v[{vX+4*k}:{vX+4*k+3}], v{vLANE16}, s[{rX}:{rX+3}], s{t} offen")
    for k in range(D + 1):
        if k == XS[0]: xld(XS[0])
        a(f"v_readlane_b32 s{sRING+k}, v{U}, {k}")
    def zclr(buf, r):
        a(f"ds_read_b128 {vr(Z(buf, 0) + 4*r, 4)}, v{vZA}")
    a(f"v_add_u32 v{vIA}, v{vIA}, v{vLA}\nv_add_u32 v{vIT}, v{vIT}, v{vLT}\ns_and_b32 s{sT2}, s{sRING+D}, {XM}")
    for r in range(8): zclr(0, r)
    a(f"s_waitcnt vmcnt({XS[0]}) lgkmcnt(0)\ns_barrier")
    stamp(a, o, 8, sST)
    if o.cyc: a(f"s_memtime s[{sST+2}:{sST+3}]")
    a(f"s_cmp_eq_u32 s{sCNT}, 0\ns_cbranch_scc1 L_exit")

    def rdA(buf):
        a(f"ds_read_b128 v[{vA}:{vA+3}], v{vIA} offset:{L_EF}\nds_read_b64 v[{vT[buf]}:{vT[buf]+1}], v{vIT}")
    def zm(buf, q): return f"v_smfmac_f32_32x32x32_bf16 {vr(Z(buf, q), 16)}, {vr(vA, 4)}, {vr(vW + 8*q, 8)}, v{vSI}"
    def unit(u):
        u %= 32
        return Z(u >> 4, u & 1, (u & 15) & ~1)
    def ta(u): return vTA + 2 * (u & 1)
    def EXP(u, j): return f"v_exp_f32 v{ta(u)+j}, v{unit(u)+j}"
    def RCP(u, j): return f"v_rcp_f32 v{ta(u)+j}, v{ta(u)+j}"
    def PADD(u): return f"v_pk_add_f32 {vr(ta(u),2)}, {vr(ta(u),2)}, 1.0 op_sel_hi:[1,0]"
    def PMUL(u): return f"v_pk_mul_f32 {vr(unit(u),2)}, {vr(unit(u),2)}, {vr(ta(u),2)}"
    rdA(0)
    xld(XS[1])
    a("s_waitcnt lgkmcnt(1)")
    a(zm(0, 0)); a(zm(0, 1))
    xld(XS[2])
    a(f"s_waitcnt lgkmcnt(0)\ns_nop {9 - 2 * XS[2]}")
    a(EXP(0, 0)); a(EXP(0, 1)); a(EXP(1, 0)); a(EXP(1, 1)); a(PADD(0)); a(PADD(1)); a(RCP(0, 0)); a(RCP(0, 1)); a("s_nop 0"); a(PMUL(0))
    zsteps = {9: 0, 11: 1}
    a("L_loop:")
    ORD = [x.split() for x in o.order.split("|")]
    for i in range(32):
        b, s = i >> 4, i & 15
        x, xl = vX + 4 * (i % 8), vX + 4 * ((i + D) % 8)
        ring = sRING + (i + 1 + D) % 32
        sel = "op_sel_hi:[0,1,1]" if s % 2 == 0 else "op_sel:[1,0,0]"
        if i % 4 == 0:
            a(f"s_setprio {3 - (i // 4) % 4}")
        if s == 0:
            a(f"ds_read_b32 v{vIA}, v{vPA} offset:{4 + 128*(b+1)}\nds_read_b32 v{vIT}, v{vPT} offset:{4 + 128*(b+1)}")
            a(f"ds_read_b32 v{vWD[1-b]}, v{vPW} offset:{8*D + 128*(b+1)}")
        if s == 2:
            a(f"v_add_u32 v{vIA}, v{vIA}, v{vLA}\nv_add_u32 v{vIT}, v{vIT}, v{vLT}")
            rdA(1 - b)
        if s < 8: zclr(1 - b, s)
        T = dict(
            M0=f"v_mfma_f32_4x4x4_16b_bf16 {vr(vDD,4)}, {vr(vT[b],2)}, {vr(x,2)}, 0 cbsz:4 abid:{s}",
            M1=f"v_mfma_f32_4x4x4_16b_bf16 {vr(vDD+4,4)}, {vr(vT[b],2)}, {vr(x+2,2)}, 0 cbsz:4 abid:{s}",
            RL=f"v_readlane_b32 s{ring}, v{vWD[((i + 1) >> 4) & 1]}, {(i + 1) & 15}",
            AND=f"s_and_b32 s{sT2 + (i + 1) % 2}, s{ring}, {XM}",
            LD=f"buffer_load_dwordx4 {vr(xl,4)}, v{vLANE16}, s[{rX}:{rX+3}], s{sT2 + i % 2} offen",
            WT=f"s_waitcnt vmcnt({D-1})" + {1: " lgkmcnt(2)", min(zsteps): " lgkmcnt(0)"}.get(s, ""),
            F="\n".join(f"v_pk_fma_f32 {vr(vACC+2*q,2)}, {vr(Z(b, q >> 1, s & ~1),2)}, {vr(vDD+2*q,2)}, {vr(vACC+2*q,2)} {sel}" for q in range(4)),
            ON=f"s_set_gpr_idx_on s{sRING + i}, gpr_idx(SRC2,DST)", OFF="s_set_gpr_idx_off",
            E0=EXP(i+2, 0), E1=EXP(i+2, 1), R0=RCP(i+1, 0), R1=RCP(i+1, 1), PA=PADD(i+2), PM=PMUL(i+1),
            Z=zm(1 - b, zsteps.get(s, 0)))
        for t in ORD[1 if s in zsteps else 0]:
            a(T[t])
        if (i + 1) % G == 0:
            a("s_cbranch_scc0 L_exit")
    a(f"v_add_u32 v{vPW}, 256, v{vPW}\nv_add_u32 v{vPA}, 256, v{vPA}\nv_add_u32 v{vPT}, 256, v{vPT}")
    a("s_branch L_loop")
    a(f"L_giveup:\ns_mov_b64 exec, -1\nv_mov_b64 v[{TQ}:{TQ+1}], 0\nv_mov_b64 v[{TQ+2}:{TQ+3}], 0\nv_add_u32 v{TQ+4}, {L_TBL}, v{vLANE16}\nds_write_b128 v{TQ+4}, v[{TQ}:{TQ+3}]")
    for r in range(4): a(f"v_mov_b32 v{TQ+8+r}, 0x00300000")
    for j in range(6): a(f"ds_write_b128 v{vLANE16}, v[{TQ+8}:{TQ+11}] offset:{L_REC + 1024*j}")
    a("s_branch L_fok")
    a(f"L_more:\ns_waitcnt vmcnt(0) lgkmcnt(0)\ns_barrier\nv_lshlrev_b32 v{C}, 4, v0")
    for j in range(1, 6):
        a(f"v_add_u32 v{C+j}, {8192*j}, v{C}")
    init_lds()
    a("s_branch L_round")
    a(f"L_exit:\ns_add_u32 s{sR0}, s{sR0}, {CAP}\ns_cmp_lt_u32 s{sR0}, s{sTOT}\ns_cbranch_scc1 L_more")
    stamp(a, o, 9, sST)
    if o.cyc: a(f"s_memtime s[{sST+4}:{sST+5}]")
    Q = vW
    a(f"s_mov_b32 s{sT2}, 0xbf317218\ns_mov_b32 s{sT2+1}, s{sT2}")
    for s in range(5):
        c = vACC + 8 * s
        a(f"s_and_b32 s3, s{sN+s}, 0xffff\ns_mul_i32 m0, s3, {AGS}")
        for q in range(4):
            a(f"v_pk_mul_f32 {vr(c+2*q,2)}, {vr(c+2*q,2)}, s[{sT2}:{sT2+1}]")
        for oo in range(4):
            a(f"v_cvt_pk_bf16_f32 v{c+oo}, v{c+oo}, v{c+4+oo}")
        for oo in range(4):
            a(f"ds_write_addtid_b32 v{c+oo} offset:{L_AGG + oo*AGS}")
    a("s_waitcnt lgkmcnt(0)\ns_barrier")
    stamp(a, o, 10, sST)
    AF, DF = vACC, vACC + 32
    def rdtile(k):
        for ks in range(4):
            a(f"ds_read_b128 {vr(AF+16*(k&1)+4*ks,4)}, v{vEA} offset:{L_AGG + 16*k*AGS + 64*ks}")
    def fin(kk):
        dd, t = DF + 8 * (kk & 1), Q + 8 + 4 * (kk & 1)
        r = [f"v_cvt_pk_bf16_f32 v{t+q}, v{dd+2*q}, v{dd+2*q+1}" for q in range(4)]
        return r + [f"s_mov_b32 s3, {kk << 20}\nbuffer_store_dwordx4 {vr(t,4)}, v{vEO}, s[{rOUT}:{rOUT+3}], s3 offen sc0 sc1"]
    rdtile(0)
    for k in range(5):
        if k < 4: rdtile(k + 1)
        else: a("s_nop 3")
        d = DF + 8 * (k & 1)
        f = fin(k - 1) if k else []
        for ks in range(4):
            a(f"s_waitcnt lgkmcnt({(4 if k < 4 else 0) + 3 - ks})")
            for par in range(2):
                a(f"v_mfma_f32_16x16x32_bf16 {vr(d+4*par,4)}, {vr(AF+16*(k&1)+4*ks,4)}, {vr(vB+8*ks+4*par,4)}, {'0' if ks == 0 else vr(d+4*par,4)}")
                if ks > 0:
                    for x in f[:2]: a(x)
                    f = f[2:]
    a(f"s_or_b32 s{sTMP}, s2, s{sW}\ns_cbranch_scc1 L_noep\nv_lshlrev_b32 v{Q}, 2, v{vL}\nv_mov_b32 v{Q+1}, s{sTAG}\nglobal_store_dword v{Q}, v{Q+1}, s[{sWS}:{sWS+1}] offset:{WS_EPOCH} sc0 sc1\nL_noep:")
    a("s_nop 5")
    for x in fin(4): a(x)
    if o.stamps:
        a("s_waitcnt vmcnt(0)")
    stamp(a, o, 11, sST)
    stamp_out(a, o, 12, sST, sWS, sW, 0, Q)
    a("L_end:\ns_endpgm")
    return a.text(), NV, 102

def build(o):
    ref = open("cdna_kernels/" + NAME + ".s.ref").read().split("\n")
    head = [l for l in ref if l.startswith(";") and "@launch" not in l and "Override" not in l and "grid=ceil" not in l]
    out = "\n".join(head) + "\n"
    nm = NAME + "_kernel"
    ks = [(nm,) + kern(o)]
    if o.probe:
        o.nw0 = 8
        ks.append(("tfn_probe_kernel",) + k3(o))
        out += f"; @launch kernel={nm} grid=(256,1,1) block=(512,1,1) lds={LDS}\n; @launch kernel=tfn_probe_kernel grid=(1,1,1) block=(64,1,1) lds=0\n"
    else:
        out += f"; @launch grid=(256,1,1) block=(512,1,1) lds={LDS}\n"
    out += "; generated by gen/gen8.py\n"
    out += '.amdgcn_target "amdgcn-amd-amdhsa--gfx950"\n.text\n'
    for n, t, v, s in ks:
        out += f".globl {n}\n.p2align 8\n.type {n},@function\n{n}:\n" + t
    for n, t, v, s in ks:
        out += KD.format(name=n, v=v, s=s, acc=(v + 3) // 4 * 4)
    return out

def parser():
    p = argparse.ArgumentParser()
    p.add_argument("-o", default="cdna_kernels/" + NAME + ".s")
    p.add_argument("--D", type=int, default=7)
    p.add_argument("--xs", default="421")
    p.add_argument("--pd", default="23")
    p.add_argument("--efs", default="11211")
    p.add_argument("--w0", type=int, default=350)
    p.add_argument("--pfa", type=int, default=520)
    p.add_argument("--fs", type=int, default=32)
    p.add_argument("--order", default="WT R0 M0 E1 M1 E0 RL R1 PA PM AND ON LD F OFF | WT M1 M0 R1 Z E0 E1 RL R0 PA PM AND ON LD F OFF")
    p.add_argument("--spin", type=int, default=4000000)
    p.add_argument("--noflag", type=int, default=-1)
    p.add_argument("--probe", default="")
    p.add_argument("--cyc", type=int, default=0)
    p.add_argument("--stamps", type=int, default=0)
    return p

if __name__ == "__main__":
    o = parser().parse_args()
    open(o.o, "w").write(build(o))
```

```python
import argparse
from gen import A, vr, srd, stamp, stamp_out, KD, NAME, N, k3

R39 = [[8, 14, 18, 23, 36], [3, 13, 19, 29, 37], [0, 4, 9, 17, 39], [1, 12, 21, 31, 38], [2, 16, 26, 30, 33], [6, 11, 22, 28, 34], [7, 15, 20, 25, 32], [5, 10, 24, 27, 35]]
R40 = [[1, 15, 26, 28, 34], [7, 12, 16, 29, 32], [5, 8, 21, 27, 35], [0, 13, 23, 30, 39], [4, 11, 17, 24, 37], [3, 9, 19, 25, 38], [2, 14, 20, 31, 33], [6, 10, 18, 22, 36]]

CH, CS = 1250, 1280
WS_EPOCH = 0
WS_TABLE = 0x1000
WS_FLAG  = 0x90000
WS_AUX   = 0x100000
WS_EF    = 0x800000
AUX_BYTES, EF_BYTES = 256 * CS * 12, 256 * CS * 32
AUX_W = (CH * 12 + 127) // 128 * 128
EF_W = (CH * 32 + 127) // 128 * 128

CAP, PADN, NWIN = 1536, 60, 12
L_LIST = 0
L_AGG = (CAP + 8 * PADN) * 8
L_CELL = L_AGG
L_DEG = L_CELL + 3072
L_INV = L_DEG + 512
L_CNT = L_INV + 256
L_REC = L_CELL + 4096
L_WB = L_REC + CAP * 4
L_EF = L_WB + 36864
L_T = L_EF + CAP * 32
L_TBL = L_T + CAP * 32
L_CG = L_TBL + 1024
L_ZERO = L_CG + 1024
LDS = L_ZERO + 16
AGS = 288
assert L_AGG + 160 * AGS <= L_EF and L_EF < 65536 and LDS <= 163840
L_HIST, L_BASE, L_ID, L_WF = 0, 1024, 2048, 8192
L_AUX, L_RAW = L_EF, L_T
XB, XM = 512, 0xfffffe00
SDW = "dst_sel:DWORD dst_unused:UNUSED_PAD"

def scan(a, v, fill=()):
    fill = list(fill)
    for m in ("row_shr:1 row_mask:0xf", "row_shr:2 row_mask:0xf", "row_shr:4 row_mask:0xf", "row_shr:8 row_mask:0xf",
              "row_bcast:15 row_mask:0xa", "row_bcast:31 row_mask:0xc"):
        g = fill.pop(0) if fill else []
        for x in g:
            a(x)
        if len(g) < 2:
            a(f"s_nop {1 - len(g)}")
        a(f"v_add_u32_dpp v{v}, v{v}, v{v} {m} bank_mask:0xf")

def kern(o):
    a = A()
    D, G, FS = o.D, 2, o.fs
    sSRC, sDST, sY, sEFI, sWR, sCG, sWM, sOUT, sWS = 6, 8, 10, 12, 14, 16, 18, 20, 22
    rX, rAUX, rEF, rOUT = 4, 8, 12, 16
    sW, sTOT, sTAG, sPAR, sR0, sCNT, sBASE, sTMP = 24, 25, 26, 27, 28, 29, 30, 31
    sRING = S = 36
    sM = [S + 20, S + 22, S + 24]
    rPA, rPE = S + 12, S + 16
    sT2, sST, sN, sRK = 68, 72, 96, 101
    vLANE16, vLA, vLT, vPW, vPA, vPT = 1, 2, 3, 4, 5, 6
    vWD = [7, 8]
    vIA, vIT, vL = 9, 10, 11
    vTA, vDD, vA = 12, 16, 24
    vSI, vZA, vEA, vEO = 28, 29, 30, 31
    vT = [32, 34]
    vW, vB, vACC = 36, 52, 84
    vZ = vACC + 48
    vX = vZ + 64
    vCG = vX + 32
    NV = vCG + 2
    P, U = vZ, vTA
    def Z(buf, par, s=0): return vZ + 32 * buf + 16 * par + s

    a.c("producer")
    DS_, SR_, YY, QA, RKP, RC, HC, HB, T0 = P, P + 4, P + 8, P + 14, P + 17, P + 20, P + 32, P + 36, P + 40
    TR = vX
    PL = vX + 10
    TA_, TP_, vFA = vX + 16, vX + 17, vX + 18
    C = P + 56
    vRA, vRB = P + 62, P + 63
    a("s_load_dwordx16 s[4:19], s[0:1], 0\ns_load_dwordx2 s[22:23], s[0:1], 80\ns_load_dwordx2 s[20:21], s[0:1], 64")
    stamp(a, o, 0, sST)
    a("s_cmp_ge_u32 s2, 256\ns_cbranch_scc1 L_end")
    a.c("thread t owns edges 3t..3t+2 of the chunk (thread 416: the last two)")
    a(f"v_mul_u32_u24 v{T0}, 3, v0\ns_mul_i32 s3, s2, {CH}\nv_min_u32 v{T0}, {CH-3}, v{T0}\nv_add_lshl_u32 v{T0+1}, v{T0}, s3, 2")
    a(f"v_lshrrev_b32 v{U}, 6, v0\nv_and_b32 v{U+1}, 255, v0\nv_lshlrev_b32 v{U+1}, 2, v{U+1}\nv_mov_b32 v{U+4}, 0")
    a(f"v_readfirstlane_b32 s{sW}, v{U}\nds_write_b32 v{U+1}, v{U+4} offset:{L_HIST}\nv_lshlrev_b32 v{T0+2}, 1, v{T0+1}")
    a("s_waitcnt lgkmcnt(0)")
    a(f"global_load_dwordx3 v[{DS_}:{DS_+2}], v{T0+1}, s[{sDST}:{sDST+1}]")
    a(f"s_load_dword s{sTAG}, s[{sWS}:{sWS+1}], {WS_EPOCH}\ns_barrier")
    a(f"global_load_dwordx3 v[{SR_}:{SR_+2}], v{T0+1}, s[{sSRC}:{sSRC+1}]")
    a(f"global_load_dwordx4 v[{YY}:{YY+3}], v{T0+2}, s[{sY}:{sY+1}]\nglobal_load_dwordx2 v[{YY+4}:{YY+5}], v{T0+2}, s[{sY}:{sY+1}] offset:16")
    a(f"v_lshlrev_b32 v{C}, 4, v0\nv_and_b32 v{vL}, 63, v0\ns_lshl_b32 s{sBASE}, s{sW}, 10\ns_lshl_b32 s3, s3, 5\ns_add_u32 s{sEFI}, s{sEFI}, s3\ns_addc_u32 s{sEFI+1}, s{sEFI+1}, 0")
    for j in range(1, 6):
        a(f"v_add_u32 v{C+j}, {8192*j}, v{C}")
    a(f"v_min_u32 v{T0+3}, {CH*32-16}, v{C+4}\nv_lshlrev_b32 v{vLANE16}, 4, v{vL}\ns_barrier")
    nd = [0]
    def dma(n):
        for _ in range(n):
            j = nd[0]; nd[0] += 1
            if j < 5:
                a(f"s_add_u32 m0, s{sBASE}, {L_RAW + 8192*j}\ns_nop 0\nglobal_load_lds_dwordx4 v{C+j if j < 4 else T0+3}, s[{sEFI}:{sEFI+1}]")
            elif j < 9:
                a(f"s_add_u32 m0, s{sBASE}, {L_WB + 8192*(j-5)}\ns_nop 0\nglobal_load_lds_dwordx4 v{C+j-5}, s[{sWM}:{sWM+1}]")
            else:
                a.c("waves 0-3: w_rad, waves 4-7: cg (128 bytes, the other lanes repeat the last piece)")
                a(f"s_add_u32 s{sT2+2}, s{sBASE}, {L_WB + 32768}\nv_min_u32 v{T0+13}, 112, v{vLANE16}\ns_cmp_lt_u32 s{sW}, 4\ns_cselect_b64 vcc, -1, 0")
                a(f"s_cselect_b32 m0, s{sT2+2}, {L_CG}\ns_cselect_b64 s[{sT2}:{sT2+1}], s[{sWR}:{sWR+1}], s[{sCG}:{sCG+1}]\nv_cndmask_b32 v{T0+13}, v{T0+13}, v{C}, vcc")
                a(f"global_load_lds_dwordx4 v{T0+13}, s[{sT2}:{sT2+1}]")
    PD = [int(c) for c in o.pd]; assert sum(PD) == 5 and len(PD) == 2
    dma(PD[0])
    a.c("wave 7 has no edges: in the first 8 workgroups it pulls the code into the XCD's L2 (plain loads, results unused)")
    a(f"s_cmp_eq_u32 s{sW}, 7\ns_cbranch_scc0 L_nocpf\ns_cmp_lt_u32 s2, 8\ns_cbranch_scc0 L_nocpf")
    a(f"s_getpc_b64 s[{sT2}:{sT2+1}]\nL_pc:\nv_lshlrev_b32 v{U+6}, 7, v{vL}\nv_mov_b32 v{U+7}, 0\nv_lshl_add_u64 v[{U+8}:{U+9}], v[{U+6}:{U+7}], 0, s[{sT2}:{sT2+1}]")
    a(f"global_load_dword v{vX+8}, v[{U+8}:{U+9}], off\nv_min_u32 v{U+6}, L_end-L_pc-8192, v{U+6}\nv_add_u32 v{U+6}, 8192, v{U+6}")
    a(f"v_lshl_add_u64 v[{U+8}:{U+9}], v[{U+6}:{U+7}], 0, s[{sT2}:{sT2+1}]\nglobal_load_dword v{vX+9}, v[{U+8}:{U+9}], off\nL_nocpf:")
    def init_lds():
        a(f"v_lshlrev_b32 v{vRA}, 2, v0\nv_lshlrev_b32 v{U+2}, 3, v0\nv_mov_b32 v{U+4}, 0\nv_mov_b32 v{U+5}, 0\nv_mov_b32 v{U+3}, 0x00300000")
        a(f"ds_write_b64 v{U+2}, v[{U+4}:{U+5}] offset:{L_CELL}")
        for k in range(3):
            a(f"ds_write_b32 v{vRA}, v{U+3} offset:{L_REC + 2048*k}")
        a(f"v_lshrrev_b32 v{vRB}, 1, v0\nv_lshlrev_b32 v{vRB}, 2, v{vRB}")
    init_lds()
    a(f"v_cmp_gt_u32 vcc, {CH//3}, v0\ns_mov_b64 s[{S}:{S+1}], vcc\nv_cmp_gt_u32 vcc, {CH//3+1}, v0\ns_mov_b64 s[{S+2}:{S+3}], vcc")
    a(f"v_mov_b32 v{U}, 1\ns_movk_i32 s{S+4}, {N // 8}\ns_mov_b32 s{S+5}, {L_AUX}\ns_lshr_b32 s{sPAR}, s{sW}, 2\ns_mov_b32 s{sR0}, 0")
    a(f"s_waitcnt vmcnt({3 + PD[0]})")
    stamp(a, o, 1, sST)
    a.c("rank inside the bin; bins are ordered by (dst&7, dst>>3&31) so that the bins of an XCD are neighbours (speed only)")
    a(f"s_mov_b64 exec, s[{S+2}:{S+3}]")
    for j in (1, 2, 0):
        if j == 0: a(f"s_mov_b64 exec, s[{S}:{S+1}]")
        a(f"v_and_b32 v{RC+j}, 7, v{DS_+j}\nv_bfe_u32 v{RKP+j}, v{DS_+j}, 3, 5\nv_lshl_add_u32 v{QA+j}, v{RC+j}, 5, v{RKP+j}\nv_lshlrev_b32 v{QA+j}, 2, v{QA+j}")
        a(f"ds_add_rtn_u32 v{RKP+j}, v{QA+j}, v{U} offset:{L_HIST}")
    a("s_mov_b64 exec, -1")
    dma(PD[1])
    a("s_waitcnt lgkmcnt(0)\ns_barrier")
    a(f"ds_read_b128 v[{HC}:{HC+3}], v{vLANE16} offset:{L_HIST}")
    fill = []
    for j in range(3):
        fill += [f"v_lshrrev_b32 v{DS_+j}, 8, v{DS_+j}", f"v_lshlrev_b32 v{DS_+j}, 2, v{DS_+j}", f"v_add_lshl_u32 v{T0+5+j}, v{T0}, {j}, 5"]
    fill += [f"s_lshl_b32 s{sTMP}, s2, 11", f"s_add_u32 s{sTMP}, s{sTMP}, {WS_TABLE}", f"v_add_u32 v{TA_}, s{sTMP}, v{vLANE16}"]
    a(f"s_mul_i32 s3, s2, {CS}\ns_add_u32 s{sTAG}, s{sTAG}, 1\ns_waitcnt lgkmcnt(0)")
    a(f"v_add_u32 v{T0+8}, v{HC}, v{HC+1}\nv_add3_u32 v{T0+8}, v{T0+8}, v{HC+2}, v{HC+3}\nv_mov_b32 v{T0+9}, v{T0+8}")
    scan(a, T0 + 9, [fill[2*i: 2*i + 2] for i in range(6)])
    a(f"v_sub_u32 v{HB}, v{T0+9}, v{T0+8}\nv_add_u32 v{HB+1}, v{HB}, v{HC}\nv_add_u32 v{HB+2}, v{HB+1}, v{HC+1}\nv_add_u32 v{HB+3}, v{HB+2}, v{HC+2}")
    a(f"ds_write_b128 v{vLANE16}, v[{HB}:{HB+3}] offset:{L_BASE}")
    a(f"s_mov_b64 exec, s[{S+2}:{S+3}]")
    for j in (1, 2, 0):
        if j == 0: a(f"s_mov_b64 exec, s[{S}:{S+1}]")
        a(f"ds_read_b32 v{QA+j}, v{QA+j} offset:{L_BASE}")
    a("s_mov_b64 exec, -1")
    def row():
        a.c("wave 7: table row {first record | count << 19, tag}; it only describes the layout, the data is covered by the flag")
        a(f"s_cmp_eq_u32 s{sW}, 7\ns_cbranch_scc0 L_norow\ns_mul_i32 s{sTMP}, s2, {CS}")
        for j in range(4):
            a(f"v_add_u32 v{HB+j}, s{sTMP}, v{HB+j}\nv_lshl_add_u32 v{TR+2*j}, v{HC+j}, 19, v{HB+j}\nv_mov_b32 v{TR+2*j+1}, s{sTAG}")
        a(f"global_store_dwordx4 v{TA_}, v[{TR}:{TR+3}], s[{sWS}:{sWS+1}] sc0 sc1\nglobal_store_dwordx4 v{TA_}, v[{TR+4}:{TR+7}], s[{sWS}:{sWS+1}] offset:1024 sc0 sc1\nL_norow:")
    a("s_waitcnt vmcnt(5)")
    a.c("key = src << 16 | window << 8 | local << 2; the src sweep of each XCD's bins starts at a different point (speed only)")
    for j in range(3):
        a(f"v_mad_u32_u24 v{RC+j}, v{RC+j}, s{S+4}, v{SR_+j}\nv_lshl_add_u32 v{DS_+j}, v{SR_+j}, 16, v{DS_+j}\nv_subrev_u32 v{RC+4+j}, {N}, v{RC+j}\nv_min_u32 v{RC+j}, v{RC+j}, v{RC+4+j}")
        a(f"v_add_u32 v{RC+j}, {o.w0}, v{RC+j}\nv_mul_u32_u24 v{RC+j}, {(NWIN << 17) // (N + o.w0)}, v{RC+j}\nv_lshrrev_b32 v{RC+j}, 17, v{RC+j}\nv_lshl_add_u32 v{RC+j}, v{RC+j}, 8, v{DS_+j}")
    a(f"s_mov_b64 exec, s[{S+2}:{S+3}]\ns_waitcnt lgkmcnt(0)")
    for j in (1, 2, 0):
        if j == 0: a(f"s_mov_b64 exec, s[{S}:{S+1}]")
        a(f"v_add_lshl_u32 v{QA+j}, v{QA+j}, v{RKP+j}, 1\nv_mad_u32_u24 v{T0+10+j}, v{QA+j}, 6, s{S+5}")
        a(f"ds_write_b16 v{QA+j}, v{T0+5+j} offset:{L_ID}\nds_write2_b32 v{T0+10+j}, v{YY+2*j}, v{YY+2*j+1} offset1:1\nds_write_b32 v{T0+10+j}, v{RC+j} offset:8")
    a("s_mov_b64 exec, -1")
    def polladdr():
        a(f"s_and_b32 s{sT2}, s2, 7\ns_lshl_b32 s{sT2}, s{sT2}, 7\ns_bfe_u32 s{sTMP}, s2, {(3 << 16) | 5}\ns_lshl_b32 s{sTMP}, s{sTMP}, 4\ns_add_u32 s{sT2}, s{sT2}, s{sTMP}")
        a(f"s_and_b32 s{sTMP}, s2, 8\ns_add_u32 s{sT2}, s{sT2}, s{sTMP}\ns_and_b32 s{sTMP}, s2, 16\ns_lshl_b32 s{sTMP}, s{sTMP}, 6\ns_add_u32 s{sT2}, s{sT2}, s{sTMP}\ns_add_u32 s{sT2}, s{sT2}, {WS_TABLE}")
        a(f"v_and_b32 v{vFA}, 255, v0\nv_lshl_add_u32 v{TP_}, v{vFA}, 11, s{sT2}\nv_mul_u32_u24 v{vFA}, {FS}, v{vFA}\nv_add_u32 v{vFA}, {WS_FLAG}, v{vFA}")
    POLL = f"global_load_dwordx2 v[{PL}:{PL+1}], v{TP_}, s[{sWS}:{sWS+1}] sc1"
    FPOLL = f"global_load_dword v{PL}, v{vFA}, s[{sWS}:{sWS+1}] sc1"
    def poll0():
        a(f"s_cmp_eq_u32 s{sPAR}, 0\ns_cbranch_scc0 L_np0\n{POLL}\nL_np0:")
    def pollwait(ny):
        a.c("waves 0-3, one producer per lane: the rows of all producers")
        a(f"s_cmp_eq_u32 s{sPAR}, 0\ns_cbranch_scc0 L_polled\ns_mov_b32 s3, 0\ns_waitcnt vmcnt({ny})\ns_branch L_poll1")
        a(f"L_poll:\n{POLL}\ns_add_u32 s3, s3, 1\ns_waitcnt vmcnt(0)\nL_poll1:")
        a(f"v_cmpx_ne_u32 vcc, s{sTAG}, v{PL+1}\ns_cbranch_execz L_pok\ns_cmp_lt_u32 s3, {o.spin}\ns_cbranch_scc1 L_poll\nv_mov_b32 v{PL}, 0")
        a(f"L_pok:\ns_mov_b64 exec, -1\nv_add_u32 v{U+2}, {L_TBL}, v{vRA}\nds_write_b32 v{U+2}, v{PL}\nL_polled:")
    a.c("all HBM reads are issued before the first large store (reads queued behind write-through stores are slow)")
    a.c("and the weight loads keep the stores back until the reads of the other workgroups have landed too")
    dma(5)
    a(f"s_mul_i32 s{sTMP}, s3, 12\ns_add_u32 s{sTMP}, s{sTMP}, {WS_AUX}\ns_add_u32 s{rPA}, s{sWS}, s{sTMP}\ns_addc_u32 s{rPA+1}, s{sWS+1}, 0\ns_mov_b32 s{rPA+2}, {AUX_W}\ns_mov_b32 s{rPA+3}, 0x00020000")
    a(f"s_lshl_b32 s3, s3, 5\ns_add_u32 s{sTMP}, s3, {WS_EF}\ns_add_u32 s{rPE}, s{sWS}, s{sTMP}\ns_addc_u32 s{rPE+1}, s{sWS+1}, 0\ns_mov_b32 s{rPE+2}, {EF_W}\ns_mov_b32 s{rPE+3}, 0x00020000")
    a(f"v_and_b32 v{T0}, -2, v0\nv_and_b32 v{T0+1}, 16, v{C}\nv_add_u32 v{T0+1}, {L_RAW}, v{T0+1}")
    a("s_waitcnt lgkmcnt(0)\ns_barrier")
    if not o.cyc: stamp(a, o, 2, sST)
    for k in range(2):
        a(f"ds_read_b128 v[{P+4*k}:{P+4*k+3}], v{C+k} offset:{L_AUX}")
    for j in range(5):
        a(f"ds_read_u16 v{T0+2+j}, v{T0} offset:{L_ID + 512*j}")
    row()
    for k in range(2):
        a(f"s_waitcnt lgkmcnt({6-k})\nbuffer_store_dwordx4 v[{P+4*k}:{P+4*k+3}], v{C+k}, s[{rPA}:{rPA+3}], 0 offen sc0 sc1")
    a("s_waitcnt lgkmcnt(0)")
    for j in range(5):
        if j == 4: a(f"v_min_u32 v{T0+2+j}, {CH*32-32}, v{T0+2+j}\nv_and_b32 v{T0+2+j}, -16, v{T0+2+j}")
        a(f"v_add_u32 v{T0+2+j}, v{T0+2+j}, v{T0+1}")
    a.c("consumer constants")
    for r in range(0, 48, 2):
        a(f"v_mov_b64 v[{vACC+r}:{vACC+r+1}], 0")
    a.c("sparse z: rows with bit 2 set use positions 2,3 of every group of four k, the others 0,1")
    a(f"v_bfe_u32 v{vSI}, v{vL}, 2, 1\nv_mul_u32_u24 v{vSI}, 0xaaaa, v{vSI}\nv_add_u32 v{vSI}, 0x4444, v{vSI}\nv_mov_b32 v{vZA}, {L_ZERO}")
    a(f"ds_write_b128 v{vZA}, v[{vACC}:{vACC+3}]")
    a(f"v_lshrrev_b32 v{vLA}, 5, v{vL}\nv_lshlrev_b32 v{vLA}, 4, v{vLA}")
    a(f"v_and_b32 v{vLT}, 3, v{vL}\nv_lshlrev_b32 v{vLT}, 3, v{vLT}\nv_add_u32 v{vLT}, {L_T}, v{vLT}")
    a(f"s_sub_u32 s{rX}, s{rX}, {XB}\ns_subb_u32 s{rX+1}, s{rX+1}, 0\ns_mov_b32 s{rX+2}, {N*1024 + XB}\ns_mov_b32 s{rX+3}, 0x00020000")
    srd(a, rAUX, sWS, AUX_BYTES, WS_AUX)
    a(f"s_mov_b32 s{sRK}, 0\ns_cmp_lt_u32 s2, 16\ns_cbranch_scc1 L_r40")
    for nm, R in (("39", R39), ("40", R40)):
        if nm == "40": a("s_branch L_rd\nL_r40:")
        for w, r in enumerate(R):
            a(f"s_cmp_eq_u32 s{sW}, {w}\ns_cselect_b32 s{sRK}, {hex(sum(x << (6*i) for i, x in enumerate(r)))}, s{sRK}")
    a("L_rd:")
    polladdr()
    a(f"s_mul_i32 s3, s2, {FS}\ns_add_u32 s3, s3, {WS_FLAG}\nv_lshl_add_u32 v{TA_}, v{vL}, 2, s3\nv_mov_b32 v{TR+1}, s{sTAG}")
    a("s_waitcnt vmcnt(7)\ns_barrier")
    stamp(a, o, 3, sST)
    for j in range(5):
        a(f"ds_read_b128 v[{P+12+4*j}:{P+15+4*j}], v{T0+2+j}")
    for j in range(5):
        a(f"s_waitcnt lgkmcnt({4-j})\nbuffer_store_dwordx4 v[{P+12+4*j}:{P+15+4*j}], v{C+j}, s[{rPE}:{rPE+3}], 0 offen sc0 sc1")
    srd(a, rEF, sWS, EF_BYTES, WS_EF)
    srd(a, rOUT, sOUT, N * 1024)

    TB = P + 8
    RQ = P + 8
    DL = P + 20
    RK = P + 0
    C12 = P + 3
    LW = P + 26
    TQ = P + 32
    def fpoll():
        a(f"s_cmp_eq_u32 s{sPAR}, 0\ns_cbranch_scc1 L_npe\n{FPOLL}\nL_npe:")
    def gap():
        a.c("every store of this workgroup has been acknowledged: raise the flag before other requests fill the memory pipe")
        a("s_waitcnt vmcnt(0) lgkmcnt(0)\ns_barrier")
        stamp(a, o, 4, sST)
        a(f"s_cmp_eq_u32 s{sW}, 0\ns_cbranch_scc0 L_noflag")
        if o.noflag >= 0: a(f"s_cmp_eq_u32 s2, {o.noflag}\ns_cbranch_scc1 L_noflag")
        a(f"s_mov_b64 exec, {hex((1 << (FS // 4)) - 1)}\nglobal_store_dword v{TA_}, v{TR+1}, s[{sWS}:{sWS+1}] sc0 sc1\ns_mov_b64 exec, -1\nL_noflag:\ns_barrier")
        poll0()
        if o.pfa:
            a.c("waves 4-7: L2 prefetch of the rows this XCD's sweep starts with (one dword per line, result unused)")
            per = o.pfa * 8 // 32
            a(f"s_cmp_eq_u32 s{sPAR}, 0\ns_cbranch_scc1 L_pfa")
            a(f"s_sub_u32 s3, 0, s2\ns_and_b32 s3, s3, 7\ns_mul_i32 s3, s3, {N // 8 * 1024}\ns_lshr_b32 s{sTMP}, s2, 3\ns_mul_i32 s{sTMP}, s{sTMP}, {per*128}\ns_add_u32 s3, s3, s{sTMP}\ns_add_u32 s3, s3, {XB}")
            a(f"v_and_b32 v{vX+12}, 255, v0\nv_cmp_gt_u32 vcc, {per}, v{vX+12}\nv_lshlrev_b32 v{vX+12}, 7, v{vX+12}\nv_mov_b32 v{vX+13}, 0x7fffff00\nv_cndmask_b32 v{vX+12}, v{vX+13}, v{vX+12}, vcc")
            a(f"buffer_load_dword v{vX+14}, v{vX+12}, s[{rX}:{rX+3}], s3 offen\nL_pfa:")
        a.c("operand fragments.  w_rad * -log2(e): wave r converts dword r of both B operands, the image is read back after a barrier")
        F, V = TQ, U
        a(f"v_lshrrev_b32 v{V}, 5, v{vL}\nv_and_b32 v{V+1}, 31, v{vL}\nv_lshlrev_b32 v{V+1}, 2, v{V+1}\nv_lshl_add_u32 v{V}, v{V}, 10, v{V+1}")
        a(f"s_and_b32 s3, s{sW}, 2\ns_lshl_b32 s{sTMP}, s3, 8\ns_lshl_b32 s{sT2}, s{sPAR}, 11\ns_add_u32 s{sTMP}, s{sTMP}, s{sT2}\ns_and_b32 s3, s{sW}, 1\ns_lshl_b32 s3, s3, 7\ns_add_u32 s{sTMP}, s{sTMP}, s3")
        a(f"s_and_b32 s3, s{sW}, 3\nv_add_u32 v{V}, s{sTMP}, v{V}")
        a(f"ds_read_b32 v{F}, v{V} offset:{L_WB + 32768}\nds_read_b32 v{F+1}, v{V} offset:{L_WB + 32768 + 256}")
        a(f"s_lshl_b32 s3, s3, 2\ns_lshl_b32 s{sTMP}, s{sPAR}, 10\ns_add_u32 s3, s3, s{sTMP}\nv_add_u32 v{V+4}, s3, v{vLANE16}")
        a(f"v_and_b32 v{V+2}, 3, v{vL}\nv_bfe_u32 v{V+3}, v{vL}, 2, 2\nv_lshlrev_b32 v{V+3}, 1, v{V+3}\nv_lshl_add_u32 v{V+2}, v{V+2}, 5, v{V+3}\nv_add_u32 v{V+2}, {L_CG}, v{V+2}")
        a(f"s_mov_b32 s{sT2}, 0xbfb8aa3b\ns_mov_b32 s{sT2+1}, s{sT2}")
        for f in range(4):
            a(f"ds_read_u16 v{V+6+f}, v{V+2} offset:{8*f}")
        a("s_waitcnt lgkmcnt(4)")
        a(f"v_lshlrev_b32 v{V+10}, 16, v{F}\nv_lshlrev_b32 v{V+11}, 16, v{F+1}\nv_and_b32 v{F}, 0xffff0000, v{F}\nv_and_b32 v{F+1}, 0xffff0000, v{F+1}")
        a(f"v_pk_mul_f32 v[{V+10}:{V+11}], v[{V+10}:{V+11}], s[{sT2}:{sT2+1}]\nv_pk_mul_f32 v[{F}:{F+1}], v[{F}:{F+1}], s[{sT2}:{sT2+1}]")
        a(f"v_cvt_pk_bf16_f32 v{F+2}, v{V+10}, v{V+11}\nv_cvt_pk_bf16_f32 v{F+3}, v{F}, v{F+1}")
        a(f"ds_write_b32 v{V+4}, v{F+2} offset:{L_WF}\nds_write_b32 v{V+4}, v{F+3} offset:{L_WF + 2048}")
        a(f"s_waitcnt lgkmcnt(0)\nv_lshl_or_b32 v{vCG}, v{V+7}, 16, v{V+6}\nv_lshl_or_b32 v{vCG+1}, v{V+9}, 16, v{V+8}")
        a.c("w_mix: columns 32p + 2j + par")
        F += 4
        a(f"s_mov_b32 s{sT2+2}, 0x05040100\ns_mov_b32 s{sT2+3}, 0x07060302")
        a(f"s_and_b32 s3, s{sW}, 3\ns_lshl_b32 s3, s3, 6\nv_lshrrev_b32 v{V+4}, 4, v{vL}\nv_and_b32 v{V+5}, 15, v{vL}\nv_lshl_add_u32 v{V+5}, v{V+5}, 2, s3\nv_lshl_add_u32 v{V+4}, v{V+4}, 11, v{V+5}")
        def brd(ks):
            for e in range(8):
                a(f"ds_read_b32 v{F+8*(ks&1)+e}, v{V+4} offset:{L_WB + 8192*ks + 256*e}")
        brd(0)
        for ks in range(4):
            if ks < 3:
                a("s_waitcnt lgkmcnt(7)")
                brd(ks + 1)
            a(f"s_waitcnt lgkmcnt({8 if ks < 3 else 0})")
            for ep in range(4):
                x0 = F + 8 * (ks & 1) + 2 * ep
                a(f"v_perm_b32 v{vB+8*ks+ep}, v{x0+1}, v{x0}, s{sT2+2}\nv_perm_b32 v{vB+8*ks+4+ep}, v{x0+1}, v{x0}, s{sT2+3}")
    def gate():
        a.c("waves 4-7: every producer has raised its flag")
        a(f"s_cmp_eq_u32 s{sPAR}, 0\ns_cbranch_scc1 L_fok\ns_cmp_lg_u32 s{sR0}, 0\ns_cbranch_scc1 L_fok\ns_mov_b32 s3, 0\ns_branch L_fp1")
        a(f"L_fp:\n{FPOLL}\ns_add_u32 s3, s3, 1\nL_fp1:\ns_waitcnt vmcnt(0)")
        a(f"v_cmpx_ne_u32 vcc, s{sTAG}, v{PL}\ns_cbranch_execz L_fok\ns_cmp_lt_u32 s3, {o.spin}\ns_cbranch_scc1 L_fp\ns_branch L_giveup")
        a("L_fok:\ns_mov_b64 exec, -1")
    gap()
    pollwait(0)
    a("L_round:\ns_waitcnt lgkmcnt(0)\ns_barrier")
    stamp(a, o, 5, sST)
    a.c("consumer")
    a(f"v_add_u32 v{U+3}, {L_TBL}, v{vLANE16}\nds_read_b128 v[{TB}:{TB+3}], v{U+3}")
    a(f"s_cmp_lg_u32 s{sR0}, 0\ns_cbranch_scc1 L_npe")
    fpoll()
    a(f"s_and_b32 s{sTMP}, s{sW}, 3\nv_mov_b32 v{TB+8}, 0")
    a(f"v_mul_u32_u24 v{C12}, 12, v0\nv_add_u32 v{C12+1}, {512*12}, v{C12}\nv_add_u32 v{C12+2}, {1024*12}, v{C12}")
    a("s_waitcnt lgkmcnt(0)")
    for j in range(4):
        a(f"v_lshrrev_b32 v{TB+4+j}, 19, v{TB+j}")
    a(f"v_add_u32 v{TB+10}, v{TB+4}, v{TB+5}\nv_add3_u32 v{U}, v{TB+10}, v{TB+6}, v{TB+7}")
    scan(a, U, [[f"v_add_u32 v{U+1}, s{sR0}, v{U}", f"v_mov_b32 v{TB+9}, v{TB+4}"],
                [f"v_add_u32 v{TB+11}, v{TB+10}, v{TB+6}", f"s_set_gpr_idx_on s{sTMP}, gpr_idx(SRC0)", f"v_mov_b32 v{U+2}, v{TB}", f"v_mov_b32 v{U+3}, v{TB+4}", f"v_mov_b32 v{U+4}, v{TB+8}", "s_set_gpr_idx_off"],
                [f"v_and_b32 v{U+2}, 0x7ffff, v{U+2}", f"v_sub_u32 v{U+4}, v{U+4}, v{U+1}"],
                [f"v_subrev_u32 v{U+5}, s{sPAR}, v{U+3}", f"s_mov_b32 s{sTMP}, s{sPAR}"]])
    a.c("r = first record of the segment in this round ; rec[r+i] = g - r")
    a(f"v_add_u32 v{U+4}, v{U+4}, v{U}\nv_readlane_b32 s{sTOT}, v{U}, 63\nv_sub_u32 v{U+2}, v{U+2}, v{U+4}\nv_add_lshl_u32 v{U+6}, v{U+4}, s{sPAR}, 2")
    a(f"s_cmp_gt_u32 s{sTOT}, {CAP}\ns_cbranch_scc1 L_exp")
    NX = 6
    for i in range(NX):
        a(f"v_cmpx_lt_i32 vcc, {2*i}, v{U+5}\nds_write_b32 v{U+6}, v{U+2} offset:{L_REC + 8*i}")
    a(f"v_cmpx_lt_i32 vcc, {2*NX}, v{U+5}\ns_cbranch_execz L_expd\ns_add_u32 s{sTMP}, s{sTMP}, {2*NX}")
    a("L_exp:")
    a(f"s_mov_b64 exec, -1\nv_cmp_lt_u32 vcc, s{sTMP}, v{U+3}\ns_cbranch_vccz L_expd")
    a(f"v_add_u32 v{U+7}, s{sTMP}, v{U+4}\ns_movk_i32 s3, {CAP}\nv_cmp_gt_u32 s[{sT2}:{sT2+1}], s3, v{U+7}\nv_lshlrev_b32 v{U+7}, 2, v{U+7}\ns_and_b64 exec, vcc, s[{sT2}:{sT2+1}]")
    a(f"ds_write_b32 v{U+7}, v{U+2} offset:{L_REC}\ns_add_u32 s{sTMP}, s{sTMP}, 2\ns_branch L_exp")
    a("L_expd:\ns_mov_b64 exec, -1")
    gate()
    a("s_waitcnt lgkmcnt(0)\ns_barrier")
    for k in range(3):
        a(f"ds_read_b32 v{RK+k}, v{vRA} offset:{L_REC + 2048*k}")
    for j in range(6):
        a(f"ds_read_b32 v{DL+j}, v{vRB} offset:{L_REC + 1024*j}")
    for k in range(3):
        a(f"s_waitcnt lgkmcnt({8-k})\nv_mad_i32_i24 v{RK+k}, v{RK+k}, 12, v{C12+k}")
        a(f"buffer_load_dwordx3 v[{RQ+4*k}:{RQ+4*k+2}], v{RK+k}, s[{rAUX}:{rAUX+3}], 0 offen sc1")
    a("s_waitcnt lgkmcnt(0)")
    for j in range(6):
        a(f"v_lshl_add_u32 v{DL+j}, v{DL+j}, 5, v{C+j}")
    a("s_barrier")
    nef = [0]
    def efdma(n):
        for _ in range(n):
            j = nef[0]; nef[0] += 1
            a(f"s_add_u32 m0, s{sBASE}, {L_EF + 8192*j}\ns_nop 0\nbuffer_load_dwordx4 v{DL+j}, s[{rEF}:{rEF+3}], 0 offen sc1 lds")
    EFS = [int(c) for c in o.efs]; assert sum(EFS) == 6 and len(EFS) == 5
    efdma(EFS[0])
    a.c("in the shadow of the record loads")
    a(f"s_sub_u32 s{sCNT}, s{sTOT}, s{sR0}\ns_min_u32 s{sCNT}, s{sCNT}, {CAP}\ns_lshl_b32 s3, s{sCNT}, 4")
    for k in range(3):
        a(f"v_cmp_gt_u32 s[{sM[k]}:{sM[k]+1}], s3, v{C+k}\nv_lshlrev_b32 v{LW+2*k+1}, 1, v{C+k}\nv_mov_b32 v{RQ+4*k+3}, 0")
    a(f"v_and_b32 v{vPW}, 15, v{vL}\nv_lshrrev_b32 v{U+1}, 4, v{vL}")
    a.c("epilogue addresses: A rows 80 t + m, output ((20 t + g)*256 + bin)*1024 + 256 p + 16 j")
    a(f"s_mul_i32 s3, s{sPAR}, {80*AGS}\nv_mul_u32_u24 v{vEA}, {AGS}, v{vPW}\nv_lshl_add_u32 v{vEA}, v{U+1}, 4, v{vEA}\nv_add_u32 v{vEA}, s3, v{vEA}")
    a(f"s_mul_i32 s{sT2}, s{sPAR}, {20*256}\ns_add_u32 s{sT2}, s{sT2}, s2\ns_lshl_b32 s{sT2}, s{sT2}, 10\ns_and_b32 s3, s{sW}, 3\ns_lshl_b32 s3, s3, 8\ns_add_u32 s{sT2}, s{sT2}, s3")
    a(f"v_lshl_add_u32 v{vEO}, v{U+1}, 18, s{sT2}\nv_lshl_add_u32 v{vEO}, v{vPW}, 4, v{vEO}")
    a.c("lane parts of the list pointers")
    a(f"v_lshlrev_b32 v{vPW}, 3, v{vPW}\nv_bfe_u32 v{vPA}, v{vL}, 3, 2\nv_and_b32 v{U}, 3, v{vL}\nv_lshl_add_u32 v{vPA}, v{vPA}, 2, v{U}\nv_lshlrev_b32 v{vPA}, 3, v{vPA}")
    a(f"v_lshrrev_b32 v{vPT}, 2, v{vL}\nv_lshlrev_b32 v{vPT}, 3, v{vPT}")
    a.c("lane = 5*window + slot : U+3 = inv address, U+4 = window*256, U+5 = (bit 9 | slot*8) << 16")
    a(f"v_mul_u32_u24 v{U+4}, 52, v{vL}\nv_lshrrev_b32 v{U+4}, 8, v{U+4}\nv_mul_u32_u24 v{U+5}, 5, v{U+4}\nv_sub_u32 v{U+5}, v{vL}, v{U+5}")
    a(f"v_mul_u32_u24 v{U+3}, 6, v{U+5}\nv_bfe_u32 v{U+3}, s{sRK}, v{U+3}, 6\nv_lshlrev_b32 v{U+3}, 2, v{U+3}\nv_lshlrev_b32 v{U+4}, 8, v{U+4}\nv_add_lshl_u32 v{U+5}, v{U+5}, {XB // 8}, 19")
    a.c("U+6 = 4*lane (degree of node lane), U+7 = 4*(5w+lane), U+8 = lane+1 (0 above 39), U+9 = 5w+lane+1")
    a(f"s_mul_i32 s3, s{sW}, 5\nv_lshlrev_b32 v{U+6}, 2, v{vL}\nv_add_u32 v{U+9}, s3, v{vL}\nv_lshlrev_b32 v{U+7}, 2, v{U+9}")
    a(f"v_cmp_gt_u32 vcc, 40, v{vL}\nv_add_u32 v{U+8}, 1, v{vL}\nv_add_u32 v{U+9}, 1, v{U+9}\nv_cndmask_b32 v{U+8}, 0, v{U+8}, vcc")
    a(f"s_cmp_gt_u32 s{sTOT}, {CAP}\ns_cselect_b32 s{sT2+1}, 0, 8\nv_mov_b32 v{U+10}, 8")
    a(f"s_cmp_lg_u32 s{sR0}, 0\ns_cbranch_scc1 L_nofr")
    for q in range(4):
        a(f"ds_read_b128 {vr(vW+4*q,4)}, v{vLANE16} offset:{L_WF + 1024*q}")
    a("L_nofr:")
    a.c("phase A: rank in cell and degree counts (both in units of 8)")
    for k in range(3):
        a(f"s_waitcnt vmcnt({2 - k + EFS[0]})")
        if k == 0: stamp(a, o, 6, sST)
        a(f"s_mov_b64 exec, s[{sM[k]}:{sM[k]+1}]\nv_and_b32 v{U+k}, 0xff, v{RQ+4*k+2}\nv_and_b32 v{RQ+4*k+3}, 0xffff, v{RQ+4*k+2}")
        a(f"ds_add_u32 v{U+k}, v{U+10} offset:{L_DEG}\nds_add_rtn_u32 v{RK+k}, v{RQ+4*k+3}, v{U+10} offset:{L_CELL}")
    a("s_mov_b64 exec, -1")
    def xoff(k):
        return f"v_lshlrev_b32_sdwa v{RQ+4*k+2}, 10, v{RQ+4*k+2} {SDW} src0_sel:DWORD src1_sel:WORD_1"
    def tcomp(k):
        a.c("T[i][o] = sum_f Y[f] cg[i][f][o] of the thread's k-th record")
        for oo in range(4):
            a(f"v_mfma_f32_4x4x4_16b_bf16 {vr(TQ+4*oo,4)}, {vr(vCG,2)}, {vr(RQ+4*k,2)}, 0 cbsz:4 abid:{oo}")
        a(f"v_add_u32 v{U+11}, {L_T}, v{LW+2*k+1}")
        a(xoff(k) if k < 2 else "s_nop 0")
        for q in range(8):
            a(f"v_cvt_pk_bf16_f32 v{TQ+16+q}, v{TQ+2*q}, v{TQ+2*q+1}")
    def twrite():
        a(f"ds_write_b128 v{U+11}, v[{TQ+16}:{TQ+19}]\nds_write_b128 v{U+11}, v[{TQ+20}:{TQ+23}] offset:16")
    efdma(EFS[1])
    tcomp(0)
    a("s_waitcnt lgkmcnt(0)\ns_barrier")
    a.c("phase B1: rank of nodes 5w..5w+4 by degree (ties by index); several rounds: fixed order")
    a(f"ds_read_b32 v{U}, v{U+6} offset:{L_DEG}\nds_read_b32 v{U+1}, v{U+7} offset:{L_DEG}")
    twrite()
    a(xoff(2))
    a(f"s_waitcnt lgkmcnt(2)\nv_mad_u32_u24 v{U+9}, v{U+1}, s{sT2+1}, v{U+9}\nv_mad_u32_u24 v{U+8}, v{U}, s{sT2+1}, v{U+8}")
    for j in range(5):
        a(f"v_readlane_b32 s{sN+j}, v{U+9}, {j}")
    a(f"v_lshl_add_u32 v{U+7}, v{U+1}, 16, v{U+7}")
    for j in range(5):
        a(f"v_cmp_lt_u32 s[{S+2*j}:{S+2*j+1}], s{sN+j}, v{U+8}")
    for j in range(5):
        a(f"s_bcnt1_i32_b64 s{sN+j}, s[{S+2*j}:{S+2*j+1}]\nv_writelane_b32 v{U}, s{sN+j}, {j}")
    a(f"s_mov_b64 exec, 31\nv_lshlrev_b32 v{U}, 2, v{U}\nds_write_b32 v{U}, v{U+7} offset:{L_INV}\ns_mov_b64 exec, -1")
    efdma(EFS[2])
    a("s_waitcnt lgkmcnt(0)\ns_barrier")
    a.c("phase B2: list positions of this wave's cells")
    a(f"ds_read_b32 v{U}, v{U+3} offset:{L_INV}")
    tcomp(1)
    a(f"s_waitcnt lgkmcnt(0)\nv_add_u32_sdwa v{U+4}, v{U}, v{U+4} {SDW} src0_sel:WORD_0 src1_sel:DWORD")
    a(f"ds_read_b32 v{U+1}, v{U+4} offset:{L_CELL}")
    for j in range(5):
        a(f"v_readlane_b32 s{sN+j}, v{U}, {j}")
    a(f"s_add_u32 s3, s{sN}, s{sN+1}\ns_add_u32 s3, s3, s{sN+2}\ns_add_u32 s3, s3, s{sN+3}\ns_add_u32 s3, s3, s{sN+4}\ns_lshr_b32 s{sCNT}, s3, 16")
    a(f"s_add_u32 s3, s{sCNT}, {8*PADN}\nv_mov_b32 v{U+2}, s3\nv_mov_b32 v{U+6}, 0\ns_mov_b64 exec, 1\nds_add_rtn_u32 v{U+2}, v{U+6}, v{U+2} offset:{L_CNT}\ns_mov_b64 exec, -1")
    a("s_waitcnt lgkmcnt(1)")
    a.c("pad entries (out-of-range row, spare slot) follow the list; pad D + (n&1) is the end marker")
    scan(a, U + 1, [[f"v_sub_u32 v{U+5}, v{U+5}, v{U+1}"], [f"s_bfe_u32 s3, s{sCNT}, {(1 << 16) | 3}", f"s_add_u32 s3, s3, {D}"],
                    [f"v_mov_b32 v{U+8}, {0x7ffffc00 | 40}", f"v_mov_b32 v{U+9}, 0"], [f"v_writelane_b32 v{U+8}, 40, s3"],
                    ["s_waitcnt lgkmcnt(0)", f"v_readfirstlane_b32 s{sT2+3}, v{U+2}"], [f"s_add_u32 s3, s{sT2+3}, s{sCNT}", f"v_lshl_add_u32 v{U+6}, v{vL}, 3, s3"]])
    a(f"s_mov_b32 exec_hi, 0x0fffffff\nv_add3_u32 v{U+1}, v{U+1}, v{U+5}, s{sT2+3}\nds_write_b32 v{U+4}, v{U+1} offset:{L_CELL}")
    a(f"ds_write_b64 v{U+6}, v[{U+8}:{U+9}] offset:{L_LIST}\ns_mov_b64 exec, -1")
    twrite()
    efdma(EFS[3])
    a("s_waitcnt lgkmcnt(2)\ns_barrier")
    a.c("phase C: scatter the list entries {x offset | bit 9 | 8*slot, 32*record}")
    for k in range(3):
        a(f"ds_read_b32 v{U+k}, v{RQ+4*k+3} offset:{L_CELL}")
    a(f"v_add_u32 v{vPW}, s{sT2+3}, v{vPW}\nv_add_u32 v{vPA}, s{sT2+3}, v{vPA}\nv_add_u32 v{vPT}, s{sT2+3}, v{vPT}")
    for k in range(3):
        a(f"s_mov_b64 exec, s[{sM[k]}:{sM[k]+1}]\ns_waitcnt lgkmcnt(2)")
        a(f"v_add_u32_sdwa v{RK+k}, v{U+k}, v{RK+k} {SDW} src0_sel:WORD_0 src1_sel:DWORD")
        a(f"v_or_b32_sdwa v{LW+2*k}, v{U+k}, v{RQ+4*k+2} {SDW} src0_sel:WORD_1 src1_sel:DWORD")
        a(f"ds_write_b64 v{RK+k}, v[{LW+2*k}:{LW+2*k+1}] offset:{L_LIST}")
    a("s_mov_b64 exec, -1")
    efdma(EFS[4])
    a("s_waitcnt lgkmcnt(0)\ns_barrier")
    stamp(a, o, 7, sST)
    a(f"ds_read_b32 v{U}, v{vPW}\nds_read_b32 v{vWD[0]}, v{vPW} offset:{8*D}\nds_read_b32 v{vIA}, v{vPA} offset:4\nds_read_b32 v{vIT}, v{vPT} offset:4")
    a(f"s_cmp_eq_u64 s[{sM[2]}:{sM[2]+1}], 0\ns_cbranch_scc1 L_not3")
    tcomp(2)
    twrite()
    a("s_waitcnt lgkmcnt(2)\ns_branch L_t3\nL_not3:\ns_waitcnt lgkmcnt(0)\nL_t3:")
    XS = [int(c) for c in o.xs]; assert sum(XS) == D and len(XS) == 3 and XS[0] < D
    nx = [0]
    def xld(n):
        for _ in range(n):
            k = nx[0]; nx[0] += 1
            t = sT2 + 2 + (k & 1)
            a(f"s_and_b32 s{t}, s{sRING+k}, {XM}\nbuffer_load_dwordx4 v[{vX+4*k}:{vX+4*k+3}], v{vLANE16}, s[{rX}:{rX+3}], s{t} offen")
    for k in range(D + 1):
        if k == XS[0]: xld(XS[0])
        a(f"v_readlane_b32 s{sRING+k}, v{U}, {k}")
    def zclr(buf, r):
        a(f"ds_read_b128 {vr(Z(buf, 0) + 4*r, 4)}, v{vZA}")
    a(f"v_add_u32 v{vIA}, v{vIA}, v{vLA}\nv_add_u32 v{vIT}, v{vIT}, v{vLT}\ns_and_b32 s{sT2}, s{sRING+D}, {XM}")
    for r in range(8): zclr(0, r)
    a(f"s_waitcnt vmcnt({XS[0]}) lgkmcnt(0)\ns_barrier")
    stamp(a, o, 8, sST)
    if o.cyc: a(f"s_memtime s[{sST+2}:{sST+3}]")
    a(f"s_cmp_eq_u32 s{sCNT}, 0\ns_cbranch_scc1 L_exit")

    a.c("main loop: one edge per step, lane = channels 2l, 2l+1; z' = -log2(e) * ef.w_rad for 16 edges at a time")
    def rdA(buf):
        a(f"ds_read_b128 v[{vA}:{vA+3}], v{vIA} offset:{L_EF}\nds_read_b64 v[{vT[buf]}:{vT[buf]+1}], v{vIT}")
    def zm(buf, q): return f"v_smfmac_f32_32x32x32_bf16 {vr(Z(buf, q), 16)}, {vr(vA, 4)}, {vr(vW + 8*q, 8)}, v{vSI}"
    def unit(u):
        u %= 32
        return Z(u >> 4, u & 1, (u & 15) & ~1)
    def ta(u): return vTA + 2 * (u & 1)
    def EXP(u, j): return f"v_exp_f32 v{ta(u)+j}, v{unit(u)+j}"
    def RCP(u, j): return f"v_rcp_f32 v{ta(u)+j}, v{ta(u)+j}"
    def PADD(u): return f"v_pk_add_f32 {vr(ta(u),2)}, {vr(ta(u),2)}, 1.0 op_sel_hi:[1,0]"
    def PMUL(u): return f"v_pk_mul_f32 {vr(unit(u),2)}, {vr(unit(u),2)}, {vr(ta(u),2)}"
    rdA(0)
    xld(XS[1])
    a("s_waitcnt lgkmcnt(1)")
    a(zm(0, 0)); a(zm(0, 1))
    xld(XS[2])
    a(f"s_waitcnt lgkmcnt(0)\ns_nop {9 - 2 * XS[2]}")
    a(EXP(0, 0)); a(EXP(0, 1)); a(EXP(1, 0)); a(EXP(1, 1)); a(PADD(0)); a(PADD(1)); a(RCP(0, 0)); a(RCP(0, 1)); a("s_nop 0"); a(PMUL(0))
    zsteps = {9: 0, 11: 1}
    a("L_loop:")
    ORD = [x.split() for x in o.order.split("|")]
    for i in range(32):
        b, s = i >> 4, i & 15
        x, xl = vX + 4 * (i % 8), vX + 4 * ((i + D) % 8)
        ring = sRING + (i + 1 + D) % 32
        sel = "op_sel_hi:[0,1,1]" if s % 2 == 0 else "op_sel:[1,0,0]"
        if i % 4 == 0:
            a(f"s_setprio {3 - (i // 4) % 4}")
        if s == 0:
            a(f"ds_read_b32 v{vIA}, v{vPA} offset:{4 + 128*(b+1)}\nds_read_b32 v{vIT}, v{vPT} offset:{4 + 128*(b+1)}")
            a(f"ds_read_b32 v{vWD[1-b]}, v{vPW} offset:{8*D + 128*(b+1)}")
        if s == 2:
            a(f"v_add_u32 v{vIA}, v{vIA}, v{vLA}\nv_add_u32 v{vIT}, v{vIT}, v{vLT}")
            rdA(1 - b)
        if s < 8: zclr(1 - b, s)
        T = dict(
            M0=f"v_mfma_f32_4x4x4_16b_bf16 {vr(vDD,4)}, {vr(vT[b],2)}, {vr(x,2)}, 0 cbsz:4 abid:{s}",
            M1=f"v_mfma_f32_4x4x4_16b_bf16 {vr(vDD+4,4)}, {vr(vT[b],2)}, {vr(x+2,2)}, 0 cbsz:4 abid:{s}",
            RL=f"v_readlane_b32 s{ring}, v{vWD[((i + 1) >> 4) & 1]}, {(i + 1) & 15}",
            AND=f"s_and_b32 s{sT2 + (i + 1) % 2}, s{ring}, {XM}",
            LD=f"buffer_load_dwordx4 {vr(xl,4)}, v{vLANE16}, s[{rX}:{rX+3}], s{sT2 + i % 2} offen",
            WT=f"s_waitcnt vmcnt({D-1})" + {1: " lgkmcnt(2)", min(zsteps): " lgkmcnt(0)"}.get(s, ""),
            F="\n".join(f"v_pk_fma_f32 {vr(vACC+2*q,2)}, {vr(Z(b, q >> 1, s & ~1),2)}, {vr(vDD+2*q,2)}, {vr(vACC+2*q,2)} {sel}" for q in range(4)),
            ON=f"s_set_gpr_idx_on s{sRING + i}, gpr_idx(SRC2,DST)", OFF="s_set_gpr_idx_off",
            E0=EXP(i+2, 0), E1=EXP(i+2, 1), R0=RCP(i+1, 0), R1=RCP(i+1, 1), PA=PADD(i+2), PM=PMUL(i+1),
            Z=zm(1 - b, zsteps.get(s, 0)))
        for t in ORD[1 if s in zsteps else 0]:
            a(T[t])
        if (i + 1) % G == 0:
            a("s_cbranch_scc0 L_exit")
    a(f"v_add_u32 v{vPW}, 256, v{vPW}\nv_add_u32 v{vPA}, 256, v{vPA}\nv_add_u32 v{vPT}, 256, v{vPT}")
    a("s_branch L_loop")
    a.c("a producer never showed up (cannot happen while all workgroups are resident): drop all records instead of reading unwritten data")
    a(f"L_giveup:\ns_mov_b64 exec, -1\nv_mov_b64 v[{TQ}:{TQ+1}], 0\nv_mov_b64 v[{TQ+2}:{TQ+3}], 0\nv_add_u32 v{TQ+4}, {L_TBL}, v{vLANE16}\nds_write_b128 v{TQ+4}, v[{TQ}:{TQ+3}]")
    for r in range(4): a(f"v_mov_b32 v{TQ+8+r}, 0x00300000")
    for j in range(6): a(f"ds_write_b128 v{vLANE16}, v[{TQ+8}:{TQ+11}] offset:{L_REC + 1024*j}")
    a("s_branch L_fok")
    a.c("a bin with more than CAP records: next round (the accumulators stay)")
    a(f"L_more:\ns_waitcnt vmcnt(0) lgkmcnt(0)\ns_barrier\nv_lshlrev_b32 v{C}, 4, v0")
    for j in range(1, 6):
        a(f"v_add_u32 v{C+j}, {8192*j}, v{C}")
    init_lds()
    a("s_branch L_round")
    a(f"L_exit:\ns_add_u32 s{sR0}, s{sR0}, {CAP}\ns_cmp_lt_u32 s{sR0}, s{sTOT}\ns_cbranch_scc1 L_more")
    stamp(a, o, 9, sST)
    if o.cyc: a(f"s_memtime s[{sST+4}:{sST+5}]")
    a.c("epilogue: aggregate (times -ln2, undoing the scaling of w_rad) -> LDS -> w_mix -> out")
    Q = vW
    a(f"s_mov_b32 s{sT2}, 0xbf317218\ns_mov_b32 s{sT2+1}, s{sT2}")
    for s in range(5):
        c = vACC + 8 * s
        a(f"s_and_b32 s3, s{sN+s}, 0xffff\ns_mul_i32 m0, s3, {AGS}")
        for q in range(4):
            a(f"v_pk_mul_f32 {vr(c+2*q,2)}, {vr(c+2*q,2)}, s[{sT2}:{sT2+1}]")
        for oo in range(4):
            a(f"v_cvt_pk_bf16_f32 v{c+oo}, v{c+oo}, v{c+4+oo}")
        for oo in range(4):
            a(f"ds_write_addtid_b32 v{c+oo} offset:{L_AGG + oo*AGS}")
    a("s_waitcnt lgkmcnt(0)\ns_barrier")
    stamp(a, o, 10, sST)
    AF, DF = vACC, vACC + 32
    def rdtile(k):
        for ks in range(4):
            a(f"ds_read_b128 {vr(AF+16*(k&1)+4*ks,4)}, v{vEA} offset:{L_AGG + 16*k*AGS + 64*ks}")
    def fin(kk):
        dd, t = DF + 8 * (kk & 1), Q + 8 + 4 * (kk & 1)
        r = [f"v_cvt_pk_bf16_f32 v{t+q}, v{dd+2*q}, v{dd+2*q+1}" for q in range(4)]
        return r + [f"s_mov_b32 s3, {kk << 20}\nbuffer_store_dwordx4 {vr(t,4)}, v{vEO}, s[{rOUT}:{rOUT+3}], s3 offen sc0 sc1"]
    rdtile(0)
    for k in range(5):
        if k < 4: rdtile(k + 1)
        else: a("s_nop 3")
        d = DF + 8 * (k & 1)
        f = fin(k - 1) if k else []
        for ks in range(4):
            a(f"s_waitcnt lgkmcnt({(4 if k < 4 else 0) + 3 - ks})")
            for par in range(2):
                a(f"v_mfma_f32_16x16x32_bf16 {vr(d+4*par,4)}, {vr(AF+16*(k&1)+4*ks,4)}, {vr(vB+8*ks+4*par,4)}, {'0' if ks == 0 else vr(d+4*par,4)}")
                if ks > 0:
                    for x in f[:2]: a(x)
                    f = f[2:]
    a.c("every workgroup has read the epoch word by now (this workgroup has seen all rows): advance it for the next launch")
    a(f"s_or_b32 s{sTMP}, s2, s{sW}\ns_cbranch_scc1 L_noep\nv_lshlrev_b32 v{Q}, 2, v{vL}\nv_mov_b32 v{Q+1}, s{sTAG}\nglobal_store_dword v{Q}, v{Q+1}, s[{sWS}:{sWS+1}] offset:{WS_EPOCH} sc0 sc1\nL_noep:")
    a("s_nop 5")
    for x in fin(4): a(x)
    if o.stamps:
        a("s_waitcnt vmcnt(0)")
    stamp(a, o, 11, sST)
    stamp_out(a, o, 12, sST, sWS, sW, 0, Q)
    a("L_end:\ns_endpgm")
    return a.text(), NV, 102

def build(o):
    ref = open("cdna_kernels/" + NAME + ".s.ref").read().split("\n")
    head = [l for l in ref if l.startswith(";") and "@launch" not in l and "Override" not in l and "grid=ceil" not in l]
    out = "\n".join(head) + "\n"
    nm = NAME + "_kernel"
    ks = [(nm,) + kern(o)]
    if o.probe:
        o.nw0 = 8
        ks.append(("tfn_probe_kernel",) + k3(o))
        out += f"; @launch kernel={nm} grid=(256,1,1) block=(512,1,1) lds={LDS}\n; @launch kernel=tfn_probe_kernel grid=(1,1,1) block=(64,1,1) lds=0\n"
    else:
        out += f"; @launch grid=(256,1,1) block=(512,1,1) lds={LDS}\n"
    out += """; generated by gen/gen8.py
;    (12-byte records {Y, src | window | dst >> 8} and the 32-byte edge features) with write-through stores, plus a table row
"""
    out += '.amdgcn_target "amdgcn-amd-amdhsa--gfx950"\n.text\n'
    for n, t, v, s in ks:
        out += f".globl {n}\n.p2align 8\n.type {n},@function\n{n}:\n" + t
    for n, t, v, s in ks:
        out += KD.format(name=n, v=v, s=s, acc=(v + 3) // 4 * 4)
    return out

def parser():
    p = argparse.ArgumentParser()
    p.add_argument("-o", default="cdna_kernels/" + NAME + ".s")
    p.add_argument("--D", type=int, default=7)
    p.add_argument("--xs", default="421")
    p.add_argument("--pd", default="23")
    p.add_argument("--efs", default="11211")
    p.add_argument("--w0", type=int, default=350)
    p.add_argument("--pfa", type=int, default=520)
    p.add_argument("--fs", type=int, default=32)
    p.add_argument("--order", default="WT R0 M0 E1 M1 E0 RL R1 PA PM AND ON LD F OFF | WT M1 M0 R1 Z E0 E1 RL R0 PA PM AND ON LD F OFF")
    p.add_argument("--spin", type=int, default=4000000)
    p.add_argument("--noflag", type=int, default=-1)
    p.add_argument("--probe", default="")
    p.add_argument("--cyc", type=int, default=0)
    p.add_argument("--stamps", type=int, default=0)
    return p

if __name__ == "__main__":
    o = parser().parse_args()
    open(o.o, "w").write(build(o))
```

```python
import argparse
from gen import A, vr, srd, stamp, stamp_out, KD, NAME, N, k3

R39 = [[8, 14, 18, 23, 36], [3, 13, 19, 29, 37], [0, 4, 9, 17, 39], [1, 12, 21, 31, 38], [2, 16, 26, 30, 33], [6, 11, 22, 28, 34], [7, 15, 20, 25, 32], [5, 10, 24, 27, 35]]
R40 = [[1, 15, 26, 28, 34], [7, 12, 16, 29, 32], [5, 8, 21, 27, 35], [0, 13, 23, 30, 39], [4, 11, 17, 24, 37], [3, 9, 19, 25, 38], [2, 14, 20, 31, 33], [6, 10, 18, 22, 36]]

CH, CS = 1250, 1280
WS_EPOCH = 0
WS_TABLE = 0x1000
WS_FLAG  = 0x90000
WS_AUX   = 0x100000
WS_EF    = 0x800000
AUX_BYTES, EF_BYTES = 256 * CS * 12, 256 * CS * 32
AUX_W = (CH * 12 + 127) // 128 * 128
EF_W = (CH * 32 + 127) // 128 * 128

CAP, PADN, NWIN = 1536, 60, 12
L_LIST = 0
L_AGG = (CAP + 8 * PADN) * 8
L_CELL = L_AGG
L_DEG = L_CELL + 3072
L_INV = L_DEG + 512
L_CNT = L_INV + 256
L_REC = L_CELL + 4096
L_WB = L_REC + CAP * 4
L_EF = L_WB + 36864
L_T = L_EF + CAP * 32
L_TBL = L_T + CAP * 32
L_CG = L_TBL + 1024
L_ZERO = L_CG + 1024
LDS = L_ZERO + 16
AGS = 288
assert L_AGG + 160 * AGS <= L_EF and L_EF < 65536 and LDS <= 163840
L_HIST, L_BASE, L_ID, L_WF = 0, 1024, 2048, 8192
L_AUX, L_RAW = L_EF, L_T
XB, XM = 512, 0xfffffe00
SDW = "dst_sel:DWORD dst_unused:UNUSED_PAD"

def scan(a, v, fill=()):
    fill = list(fill)
    for m in ("row_shr:1 row_mask:0xf", "row_shr:2 row_mask:0xf", "row_shr:4 row_mask:0xf", "row_shr:8 row_mask:0xf",
              "row_bcast:15 row_mask:0xa", "row_bcast:31 row_mask:0xc"):
        g = fill.pop(0) if fill else []
        for x in g:
            a(x)
        if len(g) < 2:
            a(f"s_nop {1 - len(g)}")
        a(f"v_add_u32_dpp v{v}, v{v}, v{v} {m} bank_mask:0xf")

def kern(o):
    a = A()
    H = o.h2
    D, G, FS = o.D, 2, o.fs
    sSRC, sDST, sY, sEFI, sWR, sCG, sWM, sOUT, sWS = 6, 8, 10, 12, 14, 16, 18, 20, 22
    rX, rAUX, rEF, rOUT = 4, 8, 12, 16
    sW, sTOT, sTAG, sPAR, sR0, sCNT, sBASE, sTMP = 24, 25, 26, 27, 28, 29, 30, 31
    sRING = S = 36
    sM = [S + 20, S + 22, S + 24]
    rPA, rPE = S + 12, S + 16
    sT2, sST, sN, sRK = 68, 72, 96, 101
    vLANE16, vLA, vLT, vPW, vPA, vPT = 1, 2, 3, 4, 5, 6
    vWD = [7, 8]
    vIA, vIT, vL = 9, 10, 11
    vTA, vDD, vA = 12, 16, 24
    vSI, vZA, vEA, vEO = 28, 29, 30, 31
    vT = [32, 34]
    vW, vB, vACC = 36, 52, 84
    vZ = vACC + 48
    vX = vZ + 64
    vCG = vX + 32
    NV = vCG + 2
    P, U = vZ, vTA
    def Z(buf, par, s=0): return vZ + 32 * buf + 16 * par + s

    a.c("producer")
    DS_, SR_, YY, QA, RKP, RC, HC, HB, T0 = P, P + 4, P + 8, P + 14, P + 17, P + 20, P + 32, P + 36, P + 40
    TR = vX
    PL = vX + 10
    TA_, TP_, vFA = vX + 16, vX + 17, vX + 18
    C = P + 56
    vRA, vRB = P + 62, P + 63
    a("s_load_dwordx16 s[4:19], s[0:1], 0\ns_load_dwordx2 s[22:23], s[0:1], 80\ns_load_dwordx2 s[20:21], s[0:1], 64")
    stamp(a, o, 0, sST)
    a("s_cmp_ge_u32 s2, 256\ns_cbranch_scc1 L_end")
    a.c("thread t owns edges 3t..3t+2 of the chunk (thread 416: the last two)")
    a(f"v_mul_u32_u24 v{T0}, 3, v0\ns_mul_i32 s3, s2, {CH}\nv_min_u32 v{T0}, {CH-3}, v{T0}\nv_add_lshl_u32 v{T0+1}, v{T0}, s3, 2")
    a(f"v_lshrrev_b32 v{U}, 6, v0\nv_and_b32 v{U+1}, 255, v0\nv_lshlrev_b32 v{U+1}, 2, v{U+1}\nv_mov_b32 v{U+4}, 0")
    a(f"v_readfirstlane_b32 s{sW}, v{U}\nds_write_b32 v{U+1}, v{U+4} offset:{L_HIST}\nv_lshlrev_b32 v{T0+2}, 1, v{T0+1}")
    a("s_waitcnt lgkmcnt(0)")
    a(f"global_load_dwordx3 v[{DS_}:{DS_+2}], v{T0+1}, s[{sDST}:{sDST+1}]")
    a(f"s_load_dword s{sTAG}, s[{sWS}:{sWS+1}], {WS_EPOCH} glc\ns_barrier")
    a(f"global_load_dwordx3 v[{SR_}:{SR_+2}], v{T0+1}, s[{sSRC}:{sSRC+1}]")
    a(f"global_load_dwordx4 v[{YY}:{YY+3}], v{T0+2}, s[{sY}:{sY+1}]\nglobal_load_dwordx2 v[{YY+4}:{YY+5}], v{T0+2}, s[{sY}:{sY+1}] offset:16")
    a(f"v_lshlrev_b32 v{C}, 4, v0\nv_and_b32 v{vL}, 63, v0\ns_lshl_b32 s{sBASE}, s{sW}, 10\ns_lshl_b32 s3, s3, 5\ns_add_u32 s{sEFI}, s{sEFI}, s3\ns_addc_u32 s{sEFI+1}, s{sEFI+1}, 0")
    for j in range(1, 6):
        a(f"v_add_u32 v{C+j}, {8192*j}, v{C}")
    a(f"v_min_u32 v{T0+3}, {CH*32-16}, v{C+4}\nv_lshlrev_b32 v{vLANE16}, 4, v{vL}\ns_barrier")
    nd = [0]
    def dma(n):
        for _ in range(n):
            j = nd[0]; nd[0] += 1
            if j < 5:
                a(f"s_add_u32 m0, s{sBASE}, {L_RAW + 8192*j}\ns_nop 0\nglobal_load_lds_dwordx4 v{C+j if j < 4 else T0+3}, s[{sEFI}:{sEFI+1}]")
            elif j < 9:
                a(f"s_add_u32 m0, s{sBASE}, {L_WB + 8192*(j-5)}\ns_nop 0\nglobal_load_lds_dwordx4 v{C+j-5}, s[{sWM}:{sWM+1}]")
            else:
                a.c("waves 0-3: w_rad, waves 4-7: cg (128 bytes, the other lanes repeat the last piece)")
                a(f"s_add_u32 s{sT2+2}, s{sBASE}, {L_WB + 32768}\nv_min_u32 v{T0+13}, 112, v{vLANE16}\ns_cmp_lt_u32 s{sW}, 4\ns_cselect_b64 vcc, -1, 0")
                a(f"s_cselect_b32 m0, s{sT2+2}, {L_CG}\ns_cselect_b64 s[{sT2}:{sT2+1}], s[{sWR}:{sWR+1}], s[{sCG}:{sCG+1}]\nv_cndmask_b32 v{T0+13}, v{T0+13}, v{C}, vcc")
                a(f"global_load_lds_dwordx4 v{T0+13}, s[{sT2}:{sT2+1}]")
    PD = [int(c) for c in o.pd]; assert sum(PD) == 5 and len(PD) == 2
    dma(PD[0])
    a.c("wave 7 has no edges: in the first 8 workgroups it pulls the code into the XCD's L2 (plain loads, results unused)")
    a(f"s_cmp_eq_u32 s{sW}, 7\ns_cbranch_scc0 L_nocpf\ns_cmp_lt_u32 s2, 8\ns_cbranch_scc0 L_nocpf")
    a(f"s_getpc_b64 s[{sT2}:{sT2+1}]\nL_pc:\nv_lshlrev_b32 v{U+6}, 7, v{vL}\nv_mov_b32 v{U+7}, 0\nv_lshl_add_u64 v[{U+8}:{U+9}], v[{U+6}:{U+7}], 0, s[{sT2}:{sT2+1}]")
    a(f"global_load_dword v{vX+8}, v[{U+8}:{U+9}], off\nv_min_u32 v{U+6}, L_end-L_pc-8192, v{U+6}\nv_add_u32 v{U+6}, 8192, v{U+6}")
    a(f"v_lshl_add_u64 v[{U+8}:{U+9}], v[{U+6}:{U+7}], 0, s[{sT2}:{sT2+1}]\nglobal_load_dword v{vX+9}, v[{U+8}:{U+9}], off")
    if o.fw:
        a.c("... and the flag lines into the memory-side cache (their contents are not used)")
        nl = 256 * FS // 128 // 8
        a(f"s_mul_i32 s3, s2, {nl*128}\ns_add_u32 s3, s3, {WS_FLAG}\nv_min_u32 v{U+6}, {nl-1}, v{vL}\nv_lshl_add_u32 v{U+6}, v{U+6}, 7, s3\nglobal_load_dword v{vX+15}, v{U+6}, s[{sWS}:{sWS+1}] {o.fw}")
    a("L_nocpf:")
    def init_lds():
        a(f"v_lshlrev_b32 v{vRA}, 2, v0\nv_lshlrev_b32 v{U+2}, 3, v0\nv_mov_b32 v{U+4}, 0\nv_mov_b32 v{U+5}, 0\nv_mov_b32 v{U+3}, 0x00300000")
        a(f"ds_write_b64 v{U+2}, v[{U+4}:{U+5}] offset:{L_CELL}")
        for k in range(3):
            a(f"ds_write_b32 v{vRA}, v{U+3} offset:{L_REC + 2048*k}")
        a(f"v_lshrrev_b32 v{vRB}, 1, v0\nv_lshlrev_b32 v{vRB}, 2, v{vRB}")
    init_lds()
    a(f"v_cmp_gt_u32 vcc, {CH//3}, v0\ns_mov_b64 s[{S}:{S+1}], vcc\nv_cmp_gt_u32 vcc, {CH//3+1}, v0\ns_mov_b64 s[{S+2}:{S+3}], vcc")
    a(f"v_mov_b32 v{U}, 1\ns_movk_i32 s{S+4}, {N // 8}\ns_mov_b32 s{S+5}, {L_AUX}\ns_lshr_b32 s{sPAR}, s{sW}, 2\ns_mov_b32 s{sR0}, 0")
    a(f"s_waitcnt vmcnt({3 + PD[0]})")
    stamp(a, o, 1, sST)
    a.c("rank inside the bin; bins are ordered by (dst&7, dst>>3&31) so that the bins of an XCD are neighbours (speed only)")
    a(f"s_mov_b64 exec, s[{S+2}:{S+3}]")
    for j in (1, 2, 0):
        if j == 0: a(f"s_mov_b64 exec, s[{S}:{S+1}]")
        a(f"v_and_b32 v{RC+j}, 7, v{DS_+j}\nv_bfe_u32 v{RKP+j}, v{DS_+j}, 3, 5\nv_lshl_add_u32 v{QA+j}, v{RC+j}, 5, v{RKP+j}\nv_lshlrev_b32 v{QA+j}, 2, v{QA+j}")
        a(f"ds_add_rtn_u32 v{RKP+j}, v{QA+j}, v{U} offset:{L_HIST}")
    a("s_mov_b64 exec, -1")
    dma(PD[1])
    a("s_waitcnt lgkmcnt(0)\ns_barrier")
    a(f"ds_read_b128 v[{HC}:{HC+3}], v{vLANE16} offset:{L_HIST}")
    fill = []
    for j in range(3):
        fill += [f"v_lshrrev_b32 v{DS_+j}, 8, v{DS_+j}", f"v_lshlrev_b32 v{DS_+j}, 2, v{DS_+j}", f"v_add_lshl_u32 v{T0+5+j}, v{T0}, {j}, 5"]
    a(f"s_mul_i32 s3, s2, {CS}\ns_add_u32 s{sTAG}, s{sTAG}, 1\ns_waitcnt lgkmcnt(0)")
    a(f"v_add_u32 v{T0+8}, v{HC}, v{HC+1}\nv_add3_u32 v{T0+8}, v{T0+8}, v{HC+2}, v{HC+3}\nv_mov_b32 v{T0+9}, v{T0+8}")
    scan(a, T0 + 9, [fill[2*i: 2*i + 2] for i in range(6)])
    a(f"v_sub_u32 v{HB}, v{T0+9}, v{T0+8}\nv_add_u32 v{HB+1}, v{HB}, v{HC}\nv_add_u32 v{HB+2}, v{HB+1}, v{HC+1}\nv_add_u32 v{HB+3}, v{HB+2}, v{HC+2}")
    a(f"ds_write_b128 v{vLANE16}, v[{HB}:{HB+3}] offset:{L_BASE}")
    a(f"s_mov_b64 exec, s[{S+2}:{S+3}]")
    for j in (1, 2, 0):
        if j == 0: a(f"s_mov_b64 exec, s[{S}:{S+1}]")
        a(f"ds_read_b32 v{QA+j}, v{QA+j} offset:{L_BASE}")
    a("s_mov_b64 exec, -1")
    def row():
        a.c("wave 7: table row, per lane {borders of 4 bins as 5 x u16, tag}; it only describes the layout, the data is covered by the flag")
        a(f"s_cmp_eq_u32 s{sW}, 7\ns_cbranch_scc0 L_norow")
        a(f"s_lshr_b32 s{sTMP}, s2, {H}\ns_lshl_b32 s{sTMP}, s{sTMP}, {10+H}\ns_and_b32 s{sT2}, s2, {(1 << H) - 1}\ns_lshl_b32 s{sT2}, s{sT2}, {7-H}\ns_add_u32 s{sTMP}, s{sTMP}, s{sT2}\ns_add_u32 s{sTMP}, s{sTMP}, {WS_TABLE}")
        a(f"v_lshrrev_b32 v{TA_}, {3-H}, v{vL}\nv_lshl_add_u32 v{TA_}, v{TA_}, 7, s{sTMP}\nv_and_b32 v{TR}, {(128 >> H) - 1}, v{vLANE16}\nv_add_u32 v{TA_}, v{TA_}, v{TR}")
        a(f"v_lshl_or_b32 v{TR}, v{HB+1}, 16, v{HB}\nv_lshl_or_b32 v{TR+1}, v{HB+3}, 16, v{HB+2}\nv_add_u32 v{TR+2}, v{HB+3}, v{HC+3}\nv_mov_b32 v{TR+3}, s{sTAG}")
        a(f"global_store_dwordx4 v{TA_}, v[{TR}:{TR+3}], s[{sWS}:{sWS+1}] sc0 sc1\nL_norow:")
    a("s_waitcnt vmcnt(5)")
    a.c("key = src << 16 | window << 8 | local << 2; the src sweep of each XCD's bins starts at a different point (speed only)")
    for j in range(3):
        a(f"v_mad_u32_u24 v{RC+j}, v{RC+j}, s{S+4}, v{SR_+j}\nv_lshl_add_u32 v{DS_+j}, v{SR_+j}, 16, v{DS_+j}\nv_subrev_u32 v{RC+4+j}, {N}, v{RC+j}\nv_min_u32 v{RC+j}, v{RC+j}, v{RC+4+j}")
        a(f"v_add_u32 v{RC+j}, {o.w0}, v{RC+j}\nv_mul_u32_u24 v{RC+j}, {(NWIN << 17) // (N + o.w0)}, v{RC+j}\nv_lshrrev_b32 v{RC+j}, 17, v{RC+j}\nv_lshl_add_u32 v{RC+j}, v{RC+j}, 8, v{DS_+j}")
    a(f"s_mov_b64 exec, s[{S+2}:{S+3}]\ns_waitcnt lgkmcnt(0)")
    for j in (1, 2, 0):
        if j == 0: a(f"s_mov_b64 exec, s[{S}:{S+1}]")
        a(f"v_add_lshl_u32 v{QA+j}, v{QA+j}, v{RKP+j}, 1\nv_mad_u32_u24 v{T0+10+j}, v{QA+j}, 6, s{S+5}")
        a(f"ds_write_b16 v{QA+j}, v{T0+5+j} offset:{L_ID}\nds_write2_b32 v{T0+10+j}, v{YY+2*j}, v{YY+2*j+1} offset1:1\nds_write_b32 v{T0+10+j}, v{RC+j} offset:8")
    a("s_mov_b64 exec, -1")
    PQ, vCB = vX + 20, vX + 19
    def polladdr():
        a(f"s_and_b32 s{sT2}, s2, 7\ns_lshl_b32 s{sT2}, s{sT2}, 3\ns_lshr_b32 s{sTMP}, s2, 5\ns_add_u32 s{sT2}, s{sT2}, s{sTMP}\ns_lshl_b32 s{sT2}, s{sT2}, 4")
        a(f"s_lshr_b32 s{sTMP}, s{sT2}, {7-H}\ns_lshl_b32 s{sTMP}, s{sTMP}, 7\ns_and_b32 s{sT2}, s{sT2}, {(128 >> H) - 1}\ns_add_u32 s{sT2}, s{sT2}, s{sTMP}\ns_add_u32 s{sT2}, s{sT2}, {WS_TABLE}")
        a(f"v_and_b32 v{vFA}, 255, v0\nv_lshrrev_b32 v{TP_}, {H}, v{vFA}\nv_lshl_add_u32 v{TP_}, v{TP_}, {10+H}, s{sT2}\nv_and_b32 v{vCB}, {(1 << H) - 1}, v0\nv_lshl_add_u32 v{TP_}, v{vCB}, {7-H}, v{TP_}")
        a(f"v_mul_u32_u24 v{vCB}, {CS}, v{vFA}\nv_mul_u32_u24 v{vFA}, {FS}, v{vFA}\nv_add_u32 v{vFA}, {WS_FLAG}, v{vFA}")
        a("s_and_b32 s33, s2, 8\ns_lshl_b32 s33, s33, 1\ns_bitcmp1_b32 s2, 4\ns_cselect_b64 s[34:35], -1, 0")
    POLL = f"global_load_dwordx4 v[{PQ}:{PQ+3}], v{TP_}, s[{sWS}:{sWS+1}] sc1"
    FPOLL = f"global_load_dwordx2 v[{PL}:{PL+1}], v{vFA}, s[{sWS}:{sWS+1}] sc1"
    def poll0():
        a(f"s_cmp_eq_u32 s{sPAR}, 0\ns_cbranch_scc0 L_np0\n{POLL}\nL_np0:")
    def pollwait(ny):
        a.c("waves 0-3, one producer per lane: the rows of all producers")
        a(f"s_cmp_eq_u32 s{sPAR}, 0\ns_cbranch_scc0 L_polled\ns_mov_b32 s3, 0\ns_waitcnt vmcnt({ny})\ns_branch L_poll1")
        a(f"L_poll:\n{POLL}\ns_add_u32 s3, s3, 1\ns_waitcnt vmcnt(0)\nL_poll1:")
        a(f"v_cmpx_ne_u32 vcc, s{sTAG}, v{PQ+3}\ns_cbranch_execz L_pok\ns_cmp_lt_u32 s3, {o.spin}\ns_cbranch_scc1 L_poll\nv_mov_b64 v[{PQ}:{PQ+1}], 0\nv_mov_b32 v{PQ+2}, 0")
        a.c("entry = first record | count << 19")
        a(f"L_pok:\ns_mov_b64 exec, -1\nv_cndmask_b32 v{PQ}, v{PQ}, v{PQ+1}, s[34:35]\nv_cndmask_b32 v{PQ+1}, v{PQ+1}, v{PQ+2}, s[34:35]\nv_add_u32 v{U+2}, {L_TBL}, v{vRA}\nv_alignbit_b32 v{PQ}, v{PQ+1}, v{PQ}, s33")
        a(f"v_sub_u32_sdwa v{PQ+1}, v{PQ}, v{PQ} {SDW} src0_sel:WORD_1 src1_sel:WORD_0\nv_add_u32_sdwa v{PQ}, v{PQ}, v{vCB} {SDW} src0_sel:WORD_0 src1_sel:DWORD")
        a(f"v_lshl_add_u32 v{PQ}, v{PQ+1}, 19, v{PQ}\nds_write_b32 v{U+2}, v{PQ}\nL_polled:")
    a.c("all HBM reads are issued before the first large store (reads queued behind write-through stores are slow)")
    a.c("and the weight loads keep the stores back until the reads of the other workgroups have landed too")
    dma(5)
    a(f"s_mul_i32 s{sTMP}, s3, 12\ns_add_u32 s{sTMP}, s{sTMP}, {WS_AUX}\ns_add_u32 s{rPA}, s{sWS}, s{sTMP}\ns_addc_u32 s{rPA+1}, s{sWS+1}, 0\ns_mov_b32 s{rPA+2}, {AUX_W}\ns_mov_b32 s{rPA+3}, 0x00020000")
    a(f"s_lshl_b32 s3, s3, 5\ns_add_u32 s{sTMP}, s3, {WS_EF}\ns_add_u32 s{rPE}, s{sWS}, s{sTMP}\ns_addc_u32 s{rPE+1}, s{sWS+1}, 0\ns_mov_b32 s{rPE+2}, {EF_W}\ns_mov_b32 s{rPE+3}, 0x00020000")
    a(f"v_and_b32 v{T0}, -2, v0\nv_and_b32 v{T0+1}, 16, v{C}\nv_add_u32 v{T0+1}, {L_RAW}, v{T0+1}")
    a("s_waitcnt lgkmcnt(0)\ns_barrier")
    if not o.cyc: stamp(a, o, 2, sST)
    for k in range(2):
        a(f"ds_read_b128 v[{P+4*k}:{P+4*k+3}], v{C+k} offset:{L_AUX}")
    for j in range(5):
        a(f"ds_read_u16 v{T0+2+j}, v{T0} offset:{L_ID + 512*j}")
    row()
    for k in range(2):
        a(f"s_waitcnt lgkmcnt({6-k})\nbuffer_store_dwordx4 v[{P+4*k}:{P+4*k+3}], v{C+k}, s[{rPA}:{rPA+3}], 0 offen sc0 sc1")
    a("s_waitcnt lgkmcnt(0)")
    for j in range(5):
        if j == 4: a(f"v_min_u32 v{T0+2+j}, {CH*32-32}, v{T0+2+j}\nv_and_b32 v{T0+2+j}, -16, v{T0+2+j}")
        a(f"v_add_u32 v{T0+2+j}, v{T0+2+j}, v{T0+1}")
    a.c("consumer constants")
    for r in range(0, 48, 2):
        a(f"v_mov_b64 v[{vACC+r}:{vACC+r+1}], 0")
    a.c("sparse z: rows with bit 2 set use positions 2,3 of every group of four k, the others 0,1")
    a(f"v_bfe_u32 v{vSI}, v{vL}, 2, 1\nv_mul_u32_u24 v{vSI}, 0xaaaa, v{vSI}\nv_add_u32 v{vSI}, 0x4444, v{vSI}\nv_mov_b32 v{vZA}, {L_ZERO}")
    a(f"ds_write_b128 v{vZA}, v[{vACC}:{vACC+3}]")
    a(f"v_lshrrev_b32 v{vLA}, 5, v{vL}\nv_lshlrev_b32 v{vLA}, 4, v{vLA}")
    a(f"v_and_b32 v{vLT}, 3, v{vL}\nv_lshlrev_b32 v{vLT}, 3, v{vLT}\nv_add_u32 v{vLT}, {L_T}, v{vLT}")
    a(f"s_sub_u32 s{rX}, s{rX}, {XB}\ns_subb_u32 s{rX+1}, s{rX+1}, 0\ns_mov_b32 s{rX+2}, {N*1024 + XB}\ns_mov_b32 s{rX+3}, 0x00020000")
    srd(a, rAUX, sWS, AUX_BYTES, WS_AUX)
    a(f"s_mov_b32 s{sRK}, 0\ns_cmp_lt_u32 s2, 16\ns_cbranch_scc1 L_r40")
    for nm, R in (("39", R39), ("40", R40)):
        if nm == "40": a("s_branch L_rd\nL_r40:")
        for w, r in enumerate(R):
            a(f"s_cmp_eq_u32 s{sW}, {w}\ns_cselect_b32 s{sRK}, {hex(sum(x << (6*i) for i, x in enumerate(r)))}, s{sRK}")
    a("L_rd:")
    polladdr()
    a(f"s_mul_i32 s3, s2, {FS}\ns_add_u32 s3, s3, {WS_FLAG}\nv_lshl_add_u32 v{TA_}, v{vL}, 2, s3\nv_mov_b32 v{TR+1}, s{sTAG}")
    a("s_waitcnt vmcnt(7)\ns_barrier")
    stamp(a, o, 3, sST)
    for j in range(5):
        a(f"ds_read_b128 v[{P+12+4*j}:{P+15+4*j}], v{T0+2+j}")
    for j in range(5):
        a(f"s_waitcnt lgkmcnt({4-j})\nbuffer_store_dwordx4 v[{P+12+4*j}:{P+15+4*j}], v{C+j}, s[{rPE}:{rPE+3}], 0 offen sc0 sc1")
    srd(a, rEF, sWS, EF_BYTES, WS_EF)
    srd(a, rOUT, sOUT, N * 1024)

    TB = P + 8
    RQ = P + 8
    DL = P + 20
    RK = P + 0
    C12 = P + 3
    LW = P + 26
    TQ = P + 32
    def fpoll():
        a(f"s_cmp_eq_u32 s{sPAR}, 0\ns_cbranch_scc1 L_npe\n{FPOLL}\nL_npe:")
    def gap():
        a.c("every store of this workgroup has been acknowledged: raise the flag before other requests fill the memory pipe")
        a("s_waitcnt vmcnt(0) lgkmcnt(0)\ns_barrier")
        stamp(a, o, 4, sST)
        a(f"s_cmp_eq_u32 s{sW}, 0\ns_cbranch_scc0 L_noflag")
        if o.noflag >= 0: a(f"s_cmp_eq_u32 s2, {o.noflag}\ns_cbranch_scc1 L_noflag")
        a(f"s_mov_b64 exec, {hex((1 << (FS // 4)) - 1)}\nglobal_store_dword v{TA_}, v{TR+1}, s[{sWS}:{sWS+1}] sc0 sc1\ns_mov_b64 exec, -1\nL_noflag:\ns_barrier")
        poll0()
        if o.pfa:
            a.c("waves 4-7: L2 prefetch of the rows this XCD's sweep starts with (one dword per line, result unused)")
            per = o.pfa * 8 // 32
            a(f"s_cmp_eq_u32 s{sPAR}, 0\ns_cbranch_scc1 L_pfa")
            a(f"s_sub_u32 s3, 0, s2\ns_and_b32 s3, s3, 7\ns_mul_i32 s3, s3, {N // 8 * 1024}\ns_lshr_b32 s{sTMP}, s2, 3\ns_mul_i32 s{sTMP}, s{sTMP}, {per*128}\ns_add_u32 s3, s3, s{sTMP}\ns_add_u32 s3, s3, {XB}")
            a(f"v_and_b32 v{vX+12}, 255, v0\nv_cmp_gt_u32 vcc, {per}, v{vX+12}\nv_lshlrev_b32 v{vX+12}, 7, v{vX+12}\nv_mov_b32 v{vX+13}, 0x7fffff00\nv_cndmask_b32 v{vX+12}, v{vX+13}, v{vX+12}, vcc")
            a(f"buffer_load_dword v{vX+14}, v{vX+12}, s[{rX}:{rX+3}], s3 offen\nL_pfa:")
        a.c("operand fragments.  w_rad * -log2(e): wave r converts dword r of both B operands, the image is read back after a barrier")
        F, V = TQ, U
        a(f"v_lshrrev_b32 v{V}, 5, v{vL}\nv_and_b32 v{V+1}, 31, v{vL}\nv_lshlrev_b32 v{V+1}, 2, v{V+1}\nv_lshl_add_u32 v{V}, v{V}, 10, v{V+1}")
        a(f"s_and_b32 s3, s{sW}, 2\ns_lshl_b32 s{sTMP}, s3, 8\ns_lshl_b32 s{sT2}, s{sPAR}, 11\ns_add_u32 s{sTMP}, s{sTMP}, s{sT2}\ns_and_b32 s3, s{sW}, 1\ns_lshl_b32 s3, s3, 7\ns_add_u32 s{sTMP}, s{sTMP}, s3")
        a(f"s_and_b32 s3, s{sW}, 3\nv_add_u32 v{V}, s{sTMP}, v{V}")
        a(f"ds_read_b32 v{F}, v{V} offset:{L_WB + 32768}\nds_read_b32 v{F+1}, v{V} offset:{L_WB + 32768 + 256}")
        a(f"s_lshl_b32 s3, s3, 2\ns_lshl_b32 s{sTMP}, s{sPAR}, 10\ns_add_u32 s3, s3, s{sTMP}\nv_add_u32 v{V+4}, s3, v{vLANE16}")
        a(f"v_and_b32 v{V+2}, 3, v{vL}\nv_bfe_u32 v{V+3}, v{vL}, 2, 2\nv_lshlrev_b32 v{V+3}, 1, v{V+3}\nv_lshl_add_u32 v{V+2}, v{V+2}, 5, v{V+3}\nv_add_u32 v{V+2}, {L_CG}, v{V+2}")
        a(f"s_mov_b32 s{sT2}, 0xbfb8aa3b\ns_mov_b32 s{sT2+1}, s{sT2}")
        for f in range(4):
            a(f"ds_read_u16 v{V+6+f}, v{V+2} offset:{8*f}")
        a("s_waitcnt lgkmcnt(4)")
        a(f"v_lshlrev_b32 v{V+10}, 16, v{F}\nv_lshlrev_b32 v{V+11}, 16, v{F+1}\nv_and_b32 v{F}, 0xffff0000, v{F}\nv_and_b32 v{F+1}, 0xffff0000, v{F+1}")
        a(f"v_pk_mul_f32 v[{V+10}:{V+11}], v[{V+10}:{V+11}], s[{sT2}:{sT2+1}]\nv_pk_mul_f32 v[{F}:{F+1}], v[{F}:{F+1}], s[{sT2}:{sT2+1}]")
        a(f"v_cvt_pk_bf16_f32 v{F+2}, v{V+10}, v{V+11}\nv_cvt_pk_bf16_f32 v{F+3}, v{F}, v{F+1}")
        a(f"ds_write_b32 v{V+4}, v{F+2} offset:{L_WF}\nds_write_b32 v{V+4}, v{F+3} offset:{L_WF + 2048}")
        a(f"s_waitcnt lgkmcnt(0)\nv_lshl_or_b32 v{vCG}, v{V+7}, 16, v{V+6}\nv_lshl_or_b32 v{vCG+1}, v{V+9}, 16, v{V+8}")
        a.c("w_mix: columns 32p + 2j + par")
        F += 4
        a(f"s_mov_b32 s{sT2+2}, 0x05040100\ns_mov_b32 s{sT2+3}, 0x07060302")
        a(f"s_and_b32 s3, s{sW}, 3\ns_lshl_b32 s3, s3, 6\nv_lshrrev_b32 v{V+4}, 4, v{vL}\nv_and_b32 v{V+5}, 15, v{vL}\nv_lshl_add_u32 v{V+5}, v{V+5}, 2, s3\nv_lshl_add_u32 v{V+4}, v{V+4}, 11, v{V+5}")
        def brd(ks):
            for e in range(8):
                a(f"ds_read_b32 v{F+8*(ks&1)+e}, v{V+4} offset:{L_WB + 8192*ks + 256*e}")
        brd(0)
        for ks in range(4):
            if ks < 3:
                a("s_waitcnt lgkmcnt(7)")
                brd(ks + 1)
            a(f"s_waitcnt lgkmcnt({8 if ks < 3 else 0})")
            for ep in range(4):
                x0 = F + 8 * (ks & 1) + 2 * ep
                a(f"v_perm_b32 v{vB+8*ks+ep}, v{x0+1}, v{x0}, s{sT2+2}\nv_perm_b32 v{vB+8*ks+4+ep}, v{x0+1}, v{x0}, s{sT2+3}")
    def gate():
        a.c("waves 4-7: every producer has raised its flag")
        a(f"s_cmp_eq_u32 s{sPAR}, 0\ns_cbranch_scc1 L_fok\ns_cmp_lg_u32 s{sR0}, 0\ns_cbranch_scc1 L_fok\ns_mov_b32 s3, 0\ns_branch L_fp1")
        a(f"L_fp:\n{FPOLL}\ns_add_u32 s3, s3, 1\nL_fp1:\ns_waitcnt vmcnt(0)")
        a(f"v_cmpx_ne_u32 vcc, s{sTAG}, v{PL}\ns_cbranch_execz L_fok\ns_cmp_lt_u32 s3, {o.spin}\ns_cbranch_scc1 L_fp\ns_branch L_giveup")
        a("L_fok:\ns_mov_b64 exec, -1")
    gap()
    pollwait(0)
    a("L_round:\ns_waitcnt lgkmcnt(0)\ns_barrier")
    stamp(a, o, 5, sST)
    a.c("consumer")
    a(f"v_add_u32 v{U+3}, {L_TBL}, v{vLANE16}\nds_read_b128 v[{TB}:{TB+3}], v{U+3}")
    def fpoll1():
        a(f"s_cmp_lg_u32 s{sR0}, 0\ns_cbranch_scc1 L_npe")
        fpoll()
    if o.fp == 0: fpoll1()
    a(f"s_and_b32 s{sTMP}, s{sW}, 3\nv_mov_b32 v{TB+8}, 0")
    a(f"v_mul_u32_u24 v{C12}, 12, v0\nv_add_u32 v{C12+1}, {512*12}, v{C12}\nv_add_u32 v{C12+2}, {1024*12}, v{C12}")
    a("s_waitcnt lgkmcnt(0)")
    for j in range(4):
        a(f"v_lshrrev_b32 v{TB+4+j}, 19, v{TB+j}")
    a(f"v_add_u32 v{TB+10}, v{TB+4}, v{TB+5}\nv_add3_u32 v{U}, v{TB+10}, v{TB+6}, v{TB+7}")
    scan(a, U, [[f"v_add_u32 v{U+1}, s{sR0}, v{U}", f"v_mov_b32 v{TB+9}, v{TB+4}"],
                [f"v_add_u32 v{TB+11}, v{TB+10}, v{TB+6}", f"s_set_gpr_idx_on s{sTMP}, gpr_idx(SRC0)", f"v_mov_b32 v{U+2}, v{TB}", f"v_mov_b32 v{U+3}, v{TB+4}", f"v_mov_b32 v{U+4}, v{TB+8}", "s_set_gpr_idx_off"],
                [f"v_and_b32 v{U+2}, 0x7ffff, v{U+2}", f"v_sub_u32 v{U+4}, v{U+4}, v{U+1}"],
                [f"v_subrev_u32 v{U+5}, s{sPAR}, v{U+3}", f"s_mov_b32 s{sTMP}, s{sPAR}"]])
    a.c("r = first record of the segment in this round ; rec[r+i] = g - r")
    a(f"v_add_u32 v{U+4}, v{U+4}, v{U}\nv_readlane_b32 s{sTOT}, v{U}, 63\nv_sub_u32 v{U+2}, v{U+2}, v{U+4}\nv_add_lshl_u32 v{U+6}, v{U+4}, s{sPAR}, 2")
    if o.fp == 1: fpoll1()
    a(f"s_cmp_gt_u32 s{sTOT}, {CAP}\ns_cbranch_scc1 L_exp")
    NX = 6
    for i in range(NX):
        a(f"v_cmpx_lt_i32 vcc, {2*i}, v{U+5}\nds_write_b32 v{U+6}, v{U+2} offset:{L_REC + 8*i}")
    a(f"v_cmpx_lt_i32 vcc, {2*NX}, v{U+5}\ns_cbranch_execz L_expd\ns_add_u32 s{sTMP}, s{sTMP}, {2*NX}")
    a("L_exp:")
    a(f"s_mov_b64 exec, -1\nv_cmp_lt_u32 vcc, s{sTMP}, v{U+3}\ns_cbranch_vccz L_expd")
    a(f"v_add_u32 v{U+7}, s{sTMP}, v{U+4}\ns_movk_i32 s3, {CAP}\nv_cmp_gt_u32 s[{sT2}:{sT2+1}], s3, v{U+7}\nv_lshlrev_b32 v{U+7}, 2, v{U+7}\ns_and_b64 exec, vcc, s[{sT2}:{sT2+1}]")
    a(f"ds_write_b32 v{U+7}, v{U+2} offset:{L_REC}\ns_add_u32 s{sTMP}, s{sTMP}, 2\ns_branch L_exp")
    a("L_expd:\ns_mov_b64 exec, -1")
    gate()
    a("s_waitcnt lgkmcnt(0)\ns_barrier")
    for k in range(3):
        a(f"ds_read_b32 v{RK+k}, v{vRA} offset:{L_REC + 2048*k}")
    for j in range(6):
        a(f"ds_read_b32 v{DL+j}, v{vRB} offset:{L_REC + 1024*j}")
    for k in range(3):
        a(f"s_waitcnt lgkmcnt({8-k})\nv_mad_i32_i24 v{RK+k}, v{RK+k}, 12, v{C12+k}")
        a(f"buffer_load_dwordx3 v[{RQ+4*k}:{RQ+4*k+2}], v{RK+k}, s[{rAUX}:{rAUX+3}], 0 offen sc1")
    a("s_waitcnt lgkmcnt(0)")
    for j in range(6):
        a(f"v_lshl_add_u32 v{DL+j}, v{DL+j}, 5, v{C+j}")
    a("s_barrier")
    nef = [0]
    def efdma(n):
        for _ in range(n):
            j = nef[0]; nef[0] += 1
            if j == 5 and o.sk: a(f"s_cmp_lt_u32 s{sBASE}, s32\ns_cbranch_scc0 L_noef5")
            a(f"s_add_u32 m0, s{sBASE}, {L_EF + 8192*j}\ns_nop 0\nbuffer_load_dwordx4 v{DL+j}, s[{rEF}:{rEF+3}], 0 offen sc1 lds")
            if j == 5 and o.sk: a("L_noef5:")
    EFS = [int(c) for c in o.efs]; assert sum(EFS) == 6 and len(EFS) == 5
    efdma(EFS[0])
    a.c("in the shadow of the record loads")
    a(f"s_sub_u32 s{sCNT}, s{sTOT}, s{sR0}\ns_min_u32 s{sCNT}, s{sCNT}, {CAP}\ns_lshl_b32 s3, s{sCNT}, 4")
    if o.sk: a(f"s_max_u32 s32, s{sCNT}, 1280\ns_sub_u32 s32, s32, 1280\ns_lshl_b32 s32, s32, 5")
    for k in range(3):
        a(f"v_cmp_gt_u32 s[{sM[k]}:{sM[k]+1}], s3, v{C+k}\nv_lshlrev_b32 v{LW+2*k+1}, 1, v{C+k}\nv_mov_b32 v{RQ+4*k+3}, 0")
    a(f"v_and_b32 v{vPW}, 15, v{vL}\nv_lshrrev_b32 v{U+1}, 4, v{vL}")
    a.c("epilogue addresses: A rows 80 t + m, output ((20 t + g)*256 + bin)*1024 + 256 p + 16 j")
    a(f"s_mul_i32 s3, s{sPAR}, {80*AGS}\nv_mul_u32_u24 v{vEA}, {AGS}, v{vPW}\nv_lshl_add_u32 v{vEA}, v{U+1}, 4, v{vEA}\nv_add_u32 v{vEA}, s3, v{vEA}")
    a(f"s_mul_i32 s{sT2}, s{sPAR}, {20*256}\ns_add_u32 s{sT2}, s{sT2}, s2\ns_lshl_b32 s{sT2}, s{sT2}, 10\ns_and_b32 s3, s{sW}, 3\ns_lshl_b32 s3, s3, 8\ns_add_u32 s{sT2}, s{sT2}, s3")
    a(f"v_lshl_add_u32 v{vEO}, v{U+1}, 18, s{sT2}\nv_lshl_add_u32 v{vEO}, v{vPW}, 4, v{vEO}")
    a.c("lane parts of the list pointers")
    a(f"v_lshlrev_b32 v{vPW}, 3, v{vPW}\nv_bfe_u32 v{vPA}, v{vL}, 3, 2\nv_and_b32 v{U}, 3, v{vL}\nv_lshl_add_u32 v{vPA}, v{vPA}, 2, v{U}\nv_lshlrev_b32 v{vPA}, 3, v{vPA}")
    a(f"v_lshrrev_b32 v{vPT}, 2, v{vL}\nv_lshlrev_b32 v{vPT}, 3, v{vPT}")
    a.c("lane = 5*window + slot : U+3 = inv address, U+4 = window*256, U+5 = (bit 9 | slot*8) << 16")
    a(f"v_mul_u32_u24 v{U+4}, 52, v{vL}\nv_lshrrev_b32 v{U+4}, 8, v{U+4}\nv_mul_u32_u24 v{U+5}, 5, v{U+4}\nv_sub_u32 v{U+5}, v{vL}, v{U+5}")
    a(f"v_mul_u32_u24 v{U+3}, 6, v{U+5}\nv_bfe_u32 v{U+3}, s{sRK}, v{U+3}, 6\nv_lshlrev_b32 v{U+3}, 2, v{U+3}\nv_lshlrev_b32 v{U+4}, 8, v{U+4}\nv_add_lshl_u32 v{U+5}, v{U+5}, {XB // 8}, 19")
    a.c("U+6 = 4*lane (degree of node lane), U+7 = 4*(5w+lane), U+8 = lane+1 (0 above 39), U+9 = 5w+lane+1")
    a(f"s_mul_i32 s3, s{sW}, 5\nv_lshlrev_b32 v{U+6}, 2, v{vL}\nv_add_u32 v{U+9}, s3, v{vL}\nv_lshlrev_b32 v{U+7}, 2, v{U+9}")
    a(f"v_cmp_gt_u32 vcc, 40, v{vL}\nv_add_u32 v{U+8}, 1, v{vL}\nv_add_u32 v{U+9}, 1, v{U+9}\nv_cndmask_b32 v{U+8}, 0, v{U+8}, vcc")
    a(f"s_cmp_gt_u32 s{sTOT}, {CAP}\ns_cselect_b32 s{sT2+1}, 0, 8\nv_mov_b32 v{U+10}, 8")
    a(f"s_cmp_lg_u32 s{sR0}, 0\ns_cbranch_scc1 L_nofr")
    for q in range(4):
        a(f"ds_read_b128 {vr(vW+4*q,4)}, v{vLANE16} offset:{L_WF + 1024*q}")
    a("L_nofr:")
    a.c("phase A: rank in cell and degree counts (both in units of 8)")
    for k in range(3):
        a(f"s_waitcnt vmcnt({2 - k + EFS[0]})")
        if k == 0: stamp(a, o, 6, sST)
        a(f"s_mov_b64 exec, s[{sM[k]}:{sM[k]+1}]\nv_and_b32 v{U+k}, 0xff, v{RQ+4*k+2}\nv_and_b32 v{RQ+4*k+3}, 0xffff, v{RQ+4*k+2}")
        a(f"ds_add_u32 v{U+k}, v{U+10} offset:{L_DEG}\nds_add_rtn_u32 v{RK+k}, v{RQ+4*k+3}, v{U+10} offset:{L_CELL}")
    a("s_mov_b64 exec, -1")
    def xoff(k):
        return f"v_lshlrev_b32_sdwa v{RQ+4*k+2}, 10, v{RQ+4*k+2} {SDW} src0_sel:DWORD src1_sel:WORD_1"
    def tcomp(k):
        a.c("T[i][o] = sum_f Y[f] cg[i][f][o] of the thread's k-th record")
        for oo in range(4):
            a(f"v_mfma_f32_4x4x4_16b_bf16 {vr(TQ+4*oo,4)}, {vr(vCG,2)}, {vr(RQ+4*k,2)}, 0 cbsz:4 abid:{oo}")
        a(f"v_add_u32 v{U+11}, {L_T}, v{LW+2*k+1}")
        a(xoff(k) if k < 2 else "s_nop 0")
        for q in range(8):
            a(f"v_cvt_pk_bf16_f32 v{TQ+16+q}, v{TQ+2*q}, v{TQ+2*q+1}")
    def twrite():
        a(f"ds_write_b128 v{U+11}, v[{TQ+16}:{TQ+19}]\nds_write_b128 v{U+11}, v[{TQ+20}:{TQ+23}] offset:16")
    efdma(EFS[1])
    tcomp(0)
    a("s_waitcnt lgkmcnt(0)\ns_barrier")
    a.c("phase B1: rank of nodes 5w..5w+4 by degree (ties by index); several rounds: fixed order")
    a(f"ds_read_b32 v{U}, v{U+6} offset:{L_DEG}\nds_read_b32 v{U+1}, v{U+7} offset:{L_DEG}")
    twrite()
    a(xoff(2))
    a(f"s_waitcnt lgkmcnt(2)\nv_mad_u32_u24 v{U+9}, v{U+1}, s{sT2+1}, v{U+9}\nv_mad_u32_u24 v{U+8}, v{U}, s{sT2+1}, v{U+8}")
    for j in range(5):
        a(f"v_readlane_b32 s{sN+j}, v{U+9}, {j}")
    a(f"v_lshl_add_u32 v{U+7}, v{U+1}, 16, v{U+7}")
    for j in range(5):
        a(f"v_cmp_lt_u32 s[{S+2*j}:{S+2*j+1}], s{sN+j}, v{U+8}")
    for j in range(5):
        a(f"s_bcnt1_i32_b64 s{sN+j}, s[{S+2*j}:{S+2*j+1}]\nv_writelane_b32 v{U}, s{sN+j}, {j}")
    a(f"s_mov_b64 exec, 31\nv_lshlrev_b32 v{U}, 2, v{U}\nds_write_b32 v{U}, v{U+7} offset:{L_INV}\ns_mov_b64 exec, -1")
    efdma(EFS[2])
    a("s_waitcnt lgkmcnt(0)\ns_barrier")
    a.c("phase B2: list positions of this wave's cells")
    a(f"ds_read_b32 v{U}, v{U+3} offset:{L_INV}")
    tcomp(1)
    a(f"s_waitcnt lgkmcnt(0)\nv_add_u32_sdwa v{U+4}, v{U}, v{U+4} {SDW} src0_sel:WORD_0 src1_sel:DWORD")
    a(f"ds_read_b32 v{U+1}, v{U+4} offset:{L_CELL}")
    for j in range(5):
        a(f"v_readlane_b32 s{sN+j}, v{U}, {j}")
    a(f"s_add_u32 s3, s{sN}, s{sN+1}\ns_add_u32 s3, s3, s{sN+2}\ns_add_u32 s3, s3, s{sN+3}\ns_add_u32 s3, s3, s{sN+4}\ns_lshr_b32 s{sCNT}, s3, 16")
    a(f"s_add_u32 s3, s{sCNT}, {8*PADN}\nv_mov_b32 v{U+2}, s3\nv_mov_b32 v{U+6}, 0\ns_mov_b64 exec, 1\nds_add_rtn_u32 v{U+2}, v{U+6}, v{U+2} offset:{L_CNT}\ns_mov_b64 exec, -1")
    a("s_waitcnt lgkmcnt(1)")
    a.c("pad entries (out-of-range row, spare slot) follow the list; pad D + (n&1) is the end marker")
    scan(a, U + 1, [[f"v_sub_u32 v{U+5}, v{U+5}, v{U+1}"], [f"s_bfe_u32 s3, s{sCNT}, {(1 << 16) | 3}", f"s_add_u32 s3, s3, {D}"],
                    [f"v_mov_b32 v{U+8}, {0x7ffffc00 | 40}", f"v_mov_b32 v{U+9}, 0"], [f"v_writelane_b32 v{U+8}, 40, s3"],
                    ["s_waitcnt lgkmcnt(0)", f"v_readfirstlane_b32 s{sT2+3}, v{U+2}"], [f"s_add_u32 s3, s{sT2+3}, s{sCNT}", f"v_lshl_add_u32 v{U+6}, v{vL}, 3, s3"]])
    a(f"s_mov_b32 exec_hi, 0x0fffffff\nv_add3_u32 v{U+1}, v{U+1}, v{U+5}, s{sT2+3}\nds_write_b32 v{U+4}, v{U+1} offset:{L_CELL}")
    a(f"ds_write_b64 v{U+6}, v[{U+8}:{U+9}] offset:{L_LIST}\ns_mov_b64 exec, -1")
    twrite()
    efdma(EFS[3])
    a("s_waitcnt lgkmcnt(2)\ns_barrier")
    a.c("phase C: scatter the list entries {x offset | bit 9 | 8*slot, 32*record}")
    for k in range(3):
        a(f"ds_read_b32 v{U+k}, v{RQ+4*k+3} offset:{L_CELL}")
    a(f"v_add_u32 v{vPW}, s{sT2+3}, v{vPW}\nv_add_u32 v{vPA}, s{sT2+3}, v{vPA}\nv_add_u32 v{vPT}, s{sT2+3}, v{vPT}")
    for k in range(3):
        a(f"s_mov_b64 exec, s[{sM[k]}:{sM[k]+1}]\ns_waitcnt lgkmcnt(2)")
        a(f"v_add_u32_sdwa v{RK+k}, v{U+k}, v{RK+k} {SDW} src0_sel:WORD_0 src1_sel:DWORD")
        a(f"v_or_b32_sdwa v{LW+2*k}, v{U+k}, v{RQ+4*k+2} {SDW} src0_sel:WORD_1 src1_sel:DWORD")
        a(f"ds_write_b64 v{RK+k}, v[{LW+2*k}:{LW+2*k+1}] offset:{L_LIST}")
    a("s_mov_b64 exec, -1")
    efdma(EFS[4])
    a("s_waitcnt lgkmcnt(0)\ns_barrier")
    stamp(a, o, 7, sST)
    a(f"ds_read_b32 v{U}, v{vPW}\nds_read_b32 v{vWD[0]}, v{vPW} offset:{8*D}\nds_read_b32 v{vIA}, v{vPA} offset:4\nds_read_b32 v{vIT}, v{vPT} offset:4")
    a(f"s_cmp_eq_u64 s[{sM[2]}:{sM[2]+1}], 0\ns_cbranch_scc1 L_not3")
    tcomp(2)
    twrite()
    a("s_waitcnt lgkmcnt(2)\ns_branch L_t3\nL_not3:\ns_waitcnt lgkmcnt(0)\nL_t3:")
    XS = [int(c) for c in o.xs]; assert sum(XS) == D and len(XS) == 3 and XS[0] < D
    nx = [0]
    def xld(n):
        for _ in range(n):
            k = nx[0]; nx[0] += 1
            t = sT2 + 2 + (k & 1)
            a(f"s_and_b32 s{t}, s{sRING+k}, {XM}\nbuffer_load_dwordx4 v[{vX+4*k}:{vX+4*k+3}], v{vLANE16}, s[{rX}:{rX+3}], s{t} offen")
    for k in range(D + 1):
        if k == XS[0]: xld(XS[0])
        a(f"v_readlane_b32 s{sRING+k}, v{U}, {k}")
    def zclr(buf, r):
        a(f"ds_read_b128 {vr(Z(buf, 0) + 4*r, 4)}, v{vZA}")
    a(f"v_add_u32 v{vIA}, v{vIA}, v{vLA}\nv_add_u32 v{vIT}, v{vIT}, v{vLT}\ns_and_b32 s{sT2}, s{sRING+D}, {XM}")
    for r in range(8): zclr(0, r)
    a(f"s_waitcnt vmcnt({XS[0]}) lgkmcnt(0)\ns_barrier")
    stamp(a, o, 8, sST)
    if o.cyc: a(f"s_memtime s[{sST+2}:{sST+3}]")
    a(f"s_cmp_eq_u32 s{sCNT}, 0\ns_cbranch_scc1 L_exit")

    a.c("main loop: one edge per step, lane = channels 2l, 2l+1; z' = -log2(e) * ef.w_rad for 16 edges at a time")
    def rdA(buf):
        a(f"ds_read_b128 v[{vA}:{vA+3}], v{vIA} offset:{L_EF}\nds_read_b64 v[{vT[buf]}:{vT[buf]+1}], v{vIT}")
    def zm(buf, q): return f"v_smfmac_f32_32x32x32_bf16 {vr(Z(buf, q), 16)}, {vr(vA, 4)}, {vr(vW + 8*q, 8)}, v{vSI}"
    def unit(u):
        u %= 32
        return Z(u >> 4, u & 1, (u & 15) & ~1)
    def ta(u): return vTA + 2 * (u & 1)
    def EXP(u, j): return f"v_exp_f32 v{ta(u)+j}, v{unit(u)+j}"
    def RCP(u, j): return f"v_rcp_f32 v{ta(u)+j}, v{ta(u)+j}"
    def PADD(u): return f"v_pk_add_f32 {vr(ta(u),2)}, {vr(ta(u),2)}, 1.0 op_sel_hi:[1,0]"
    def PMUL(u): return f"v_pk_mul_f32 {vr(unit(u),2)}, {vr(unit(u),2)}, {vr(ta(u),2)}"
    rdA(0)
    xld(XS[1])
    a("s_waitcnt lgkmcnt(1)")
    a(zm(0, 0)); a(zm(0, 1))
    xld(XS[2])
    a(f"s_waitcnt lgkmcnt(0)\ns_nop {9 - 2 * XS[2]}")
    a(EXP(0, 0)); a(EXP(0, 1)); a(EXP(1, 0)); a(EXP(1, 1)); a(PADD(0)); a(PADD(1)); a(RCP(0, 0)); a(RCP(0, 1)); a("s_nop 0"); a(PMUL(0))
    zsteps = {9: 0, 11: 1}
    a("L_loop:")
    ORD = [x.split() for x in o.order.split("|")]
    for i in range(32):
        b, s = i >> 4, i & 15
        x, xl = vX + 4 * (i % 8), vX + 4 * ((i + D) % 8)
        ring = sRING + (i + 1 + D) % 32
        sel = "op_sel_hi:[0,1,1]" if s % 2 == 0 else "op_sel:[1,0,0]"
        if i % 4 == 0:
            a(f"s_setprio {3 - (i // 4) % 4}")
        if s == 0:
            a(f"ds_read_b32 v{vIA}, v{vPA} offset:{4 + 128*(b+1)}\nds_read_b32 v{vIT}, v{vPT} offset:{4 + 128*(b+1)}")
            a(f"ds_read_b32 v{vWD[1-b]}, v{vPW} offset:{8*D + 128*(b+1)}")
        if s == 2:
            a(f"v_add_u32 v{vIA}, v{vIA}, v{vLA}\nv_add_u32 v{vIT}, v{vIT}, v{vLT}")
            rdA(1 - b)
        if s < 8: zclr(1 - b, s)
        T = dict(
            M0=f"v_mfma_f32_4x4x4_16b_bf16 {vr(vDD,4)}, {vr(vT[b],2)}, {vr(x,2)}, 0 cbsz:4 abid:{s}",
            M1=f"v_mfma_f32_4x4x4_16b_bf16 {vr(vDD+4,4)}, {vr(vT[b],2)}, {vr(x+2,2)}, 0 cbsz:4 abid:{s}",
            RL=f"v_readlane_b32 s{ring}, v{vWD[((i + 1) >> 4) & 1]}, {(i + 1) & 15}",
            AND=f"s_and_b32 s{sT2 + (i + 1) % 2}, s{ring}, {XM}",
            LD=f"buffer_load_dwordx4 {vr(xl,4)}, v{vLANE16}, s[{rX}:{rX+3}], s{sT2 + i % 2} offen",
            WT=f"s_waitcnt vmcnt({D-1})" + {1: " lgkmcnt(2)", min(zsteps): " lgkmcnt(0)"}.get(s, ""),
            F="\n".join(f"v_pk_fma_f32 {vr(vACC+2*q,2)}, {vr(Z(b, q >> 1, s & ~1),2)}, {vr(vDD+2*q,2)}, {vr(vACC+2*q,2)} {sel}" for q in range(4)),
            ON=f"s_set_gpr_idx_on s{sRING + i}, gpr_idx(SRC2,DST)", OFF="s_set_gpr_idx_off",
            E0=EXP(i+2, 0), E1=EXP(i+2, 1), R0=RCP(i+1, 0), R1=RCP(i+1, 1), PA=PADD(i+2), PM=PMUL(i+1),
            Z=zm(1 - b, zsteps.get(s, 0)))
        for t in ORD[1 if s in zsteps else 0]:
            a(T[t])
        if (i + 1) % G == 0:
            a("s_cbranch_scc0 L_exit")
    a(f"v_add_u32 v{vPW}, 256, v{vPW}\nv_add_u32 v{vPA}, 256, v{vPA}\nv_add_u32 v{vPT}, 256, v{vPT}")
    a("s_branch L_loop")
    a.c("a producer never showed up (cannot happen while all workgroups are resident): drop all records instead of reading unwritten data")
    a(f"L_giveup:\ns_mov_b64 exec, -1\nv_mov_b64 v[{TQ}:{TQ+1}], 0\nv_mov_b64 v[{TQ+2}:{TQ+3}], 0\nv_add_u32 v{TQ+4}, {L_TBL}, v{vLANE16}\nds_write_b128 v{TQ+4}, v[{TQ}:{TQ+3}]")
    for r in range(4): a(f"v_mov_b32 v{TQ+8+r}, 0x00300000")
    for j in range(6): a(f"ds_write_b128 v{vLANE16}, v[{TQ+8}:{TQ+11}] offset:{L_REC + 1024*j}")
    a("s_branch L_fok")
    a.c("a bin with more than CAP records: next round (the accumulators stay)")
    a(f"L_more:\ns_waitcnt vmcnt(0) lgkmcnt(0)\ns_barrier\nv_lshlrev_b32 v{C}, 4, v0")
    for j in range(1, 6):
        a(f"v_add_u32 v{C+j}, {8192*j}, v{C}")
    init_lds()
    a("s_branch L_round")
    a(f"L_exit:\ns_add_u32 s{sR0}, s{sR0}, {CAP}\ns_cmp_lt_u32 s{sR0}, s{sTOT}\ns_cbranch_scc1 L_more")
    stamp(a, o, 9, sST)
    if o.cyc: a(f"s_memtime s[{sST+4}:{sST+5}]")
    a.c("epilogue: aggregate (times -ln2, undoing the scaling of w_rad) -> LDS -> w_mix -> out")
    Q = vW
    a(f"s_mov_b32 s{sT2}, 0xbf317218\ns_mov_b32 s{sT2+1}, s{sT2}")
    for s in range(5):
        c = vACC + 8 * s
        a(f"s_and_b32 s3, s{sN+s}, 0xffff\ns_mul_i32 m0, s3, {AGS}")
        for q in range(4):
            a(f"v_pk_mul_f32 {vr(c+2*q,2)}, {vr(c+2*q,2)}, s[{sT2}:{sT2+1}]")
        for oo in range(4):
            a(f"v_cvt_pk_bf16_f32 v{c+oo}, v{c+oo}, v{c+4+oo}")
        for oo in range(4):
            a(f"ds_write_addtid_b32 v{c+oo} offset:{L_AGG + oo*AGS}")
    a("s_waitcnt lgkmcnt(0)\ns_barrier")
    stamp(a, o, 10, sST)
    AF, DF = vACC, vACC + 32
    def rdtile(k):
        for ks in range(4):
            a(f"ds_read_b128 {vr(AF+16*(k&1)+4*ks,4)}, v{vEA} offset:{L_AGG + 16*k*AGS + 64*ks}")
    def fin(kk):
        dd, t = DF + 8 * (kk & 1), Q + 8 + 4 * (kk & 1)
        r = [f"v_cvt_pk_bf16_f32 v{t+q}, v{dd+2*q}, v{dd+2*q+1}" for q in range(4)]
        return r + [f"s_mov_b32 s3, {kk << 20}\nbuffer_store_dwordx4 {vr(t,4)}, v{vEO}, s[{rOUT}:{rOUT+3}], s3 offen sc0 sc1"]
    rdtile(0)
    for k in range(5):
        if k < 4: rdtile(k + 1)
        else: a("s_nop 3")
        d = DF + 8 * (k & 1)
        f = fin(k - 1) if k else []
        for ks in range(4):
            a(f"s_waitcnt lgkmcnt({(4 if k < 4 else 0) + 3 - ks})")
            for par in range(2):
                a(f"v_mfma_f32_16x16x32_bf16 {vr(d+4*par,4)}, {vr(AF+16*(k&1)+4*ks,4)}, {vr(vB+8*ks+4*par,4)}, {'0' if ks == 0 else vr(d+4*par,4)}")
                if ks > 0:
                    for x in f[:2]: a(x)
                    f = f[2:]
    a.c("every workgroup has read the epoch word by now (this workgroup has seen all rows): advance it for the next launch")
    a(f"s_or_b32 s{sTMP}, s2, s{sW}\ns_cbranch_scc1 L_noep\nv_lshlrev_b32 v{Q}, 2, v{vL}\nv_mov_b32 v{Q+1}, s{sTAG}\nglobal_store_dword v{Q}, v{Q+1}, s[{sWS}:{sWS+1}] offset:{WS_EPOCH} sc0 sc1\nL_noep:")
    a("s_nop 5")
    for x in fin(4): a(x)
    if o.stamps:
        a("s_waitcnt vmcnt(0)")
    stamp(a, o, 11, sST)
    stamp_out(a, o, 12, sST, sWS, sW, 0, Q)
    a("L_end:\ns_endpgm")
    return a.text(), NV, 102

def build(o):
    ref = open("cdna_kernels/" + NAME + ".s.ref").read().split("\n")
    head = [l for l in ref if l.startswith(";") and "@launch" not in l and "Override" not in l and "grid=ceil" not in l]
    out = "\n".join(head) + "\n"
    nm = NAME + "_kernel"
    ks = [(nm,) + kern(o)]
    if o.probe:
        o.nw0 = 8
        ks.append(("tfn_probe_kernel",) + k3(o))
        out += f"; @launch kernel={nm} grid=(256,1,1) block=(512,1,1) lds={LDS}\n; @launch kernel=tfn_probe_kernel grid=(1,1,1) block=(64,1,1) lds=0\n"
    else:
        out += f"; @launch grid=(256,1,1) block=(512,1,1) lds={LDS}\n"
    out += """; generated by gen/gen8.py
;    (12-byte records {Y, src | window | dst >> 8} and the 32-byte edge features) with write-through stores, plus a table row
"""
    out += '.amdgcn_target "amdgcn-amd-amdhsa--gfx950"\n.text\n'
    for n, t, v, s in ks:
        out += f".globl {n}\n.p2align 8\n.type {n},@function\n{n}:\n" + t
    for n, t, v, s in ks:
        out += KD.format(name=n, v=v, s=s, acc=(v + 3) // 4 * 4)
    return out

def parser():
    p = argparse.ArgumentParser()
    p.add_argument("-o", default="cdna_kernels/" + NAME + ".s")
    p.add_argument("--D", type=int, default=7)
    p.add_argument("--xs", default="421")
    p.add_argument("--pd", default="23")
    p.add_argument("--efs", default="11211")
    p.add_argument("--w0", type=int, default=200)
    p.add_argument("--pfa", type=int, default=656)
    p.add_argument("--fs", type=int, default=16)
    p.add_argument("--order", default="WT R0 M0 E1 M1 E0 RL R1 PA PM AND ON LD F OFF | WT M1 M0 R1 Z E0 E1 RL R0 PA PM AND ON LD F OFF")
    p.add_argument("--spin", type=int, default=4000000)
    p.add_argument("--noflag", type=int, default=-1)
    p.add_argument("--probe", default="")
    p.add_argument("--sk", type=int, default=1)
    p.add_argument("--h2", type=int, default=1)
    p.add_argument("--fp", type=int, default=0)
    p.add_argument("--fw", default="sc1")
    p.add_argument("--cyc", type=int, default=0)
    p.add_argument("--stamps", type=int, default=0)
    return p

if __name__ == "__main__":
    o = parser().parse_args()
    open(o.o, "w").write(build(o))
```
